```python
import torch

def _softmax(x, axis=-1):
    return torch.softmax(x, dim=axis)
def _gelu(x):
    return torch.nn.functional.gelu(x, approximate="tanh")
def _silu(x):
    return torch.nn.functional.silu(x)
def _sigmoid(x):
    return torch.sigmoid(x)
def _layernorm(x, axis=-1, eps=1e-5):
    m = x.mean(dim=axis, keepdim=True)
    v = x.var(dim=axis, keepdim=True, unbiased=False)
    return (x - m) / torch.sqrt(v + eps)
def _scatter_add(tgt, idx, src, axis=0):
    return tgt.clone().index_add_(axis, idx, src)
def _segment_sum(src, seg, n):
    out = torch.zeros((n,) + src.shape[1:], dtype=src.dtype)
    return out.index_add_(0, seg, src)
def _pad(x, pw):
    flat = tuple(v for pair in reversed(pw) for v in pair)
    return torch.nn.functional.pad(x, flat)

kernel_name = 'recurrent_scan__spectral_fnet__glu_gated_bilinear__prompt'

def setup_inputs():

    _w = (lambda a: (lambda t: t.to(torch.bfloat16) if t.is_floating_point() else t)(torch.as_tensor(a)))
    def _A_setup():
        B, S, D = 1, 2048, 1024
        ns = torch.arange(S)[:, None] * torch.arange(S)[None, :]
        nd = torch.arange(D)[:, None] * torch.arange(D)[None, :]
        Ws_re = torch.cos(-2.0 * torch.pi * ns / S).to(float)
        Ws_im = torch.sin(-2.0 * torch.pi * ns / S).to(float)
        Wd_re = torch.cos(-2.0 * torch.pi * nd / D).to(float)
        Wd_im = torch.sin(-2.0 * torch.pi * nd / D).to(float)
        return {
            "x": _w((lambda *s: torch.randn(*s, dtype=torch.bfloat16) * 0.05)(B, S, D)),
            "dft_seq_re": _w(Ws_re),
            "dft_seq_im": _w(Ws_im),
            "dft_hid_re": _w(Wd_re),
            "dft_hid_im": _w(Wd_im),
        }
    _A_in = _A_setup()

    def _B_setup():
        B, S, D, F = 1, 2048, 1024, 3584
        return {
            "x": _w((lambda *s: torch.randn(*s, dtype=torch.bfloat16) * 0.05)(B, S, D)),
            "w_gate": _w((lambda *s: torch.randn(*s, dtype=torch.bfloat16) * 0.05)(D, F) * (D ** -0.5)),
            "w_up": _w((lambda *s: torch.randn(*s, dtype=torch.bfloat16) * 0.05)(D, F) * (D ** -0.5)),
            "w_down": _w((lambda *s: torch.randn(*s, dtype=torch.bfloat16) * 0.05)(F, D) * (F ** -0.5)),
        }
    _B_in = _B_setup()

    return {
        "A_x": _A_in["x"],
        "A_dft_seq_re": _A_in["dft_seq_re"],
        "A_dft_seq_im": _A_in["dft_seq_im"],
        "A_dft_hid_re": _A_in["dft_hid_re"],
        "A_dft_hid_im": _A_in["dft_hid_im"],
        "B_x": _B_in["x"],
        "B_w_gate": _B_in["w_gate"],
        "B_w_up": _B_in["w_up"],
        "B_w_down": _B_in["w_down"],
    }

def reference(A_x, A_dft_seq_re, A_dft_seq_im, A_dft_hid_re, A_dft_hid_im, B_x, B_w_gate, B_w_up, B_w_down):
    def _A_ref(x, dft_seq_re, dft_seq_im, dft_hid_re, dft_hid_im):
        a = torch.einsum("bsd,ed->bse", x, dft_hid_re)
        b = torch.einsum("bsd,ed->bse", x, dft_hid_im)
        y = torch.einsum("ts,bse->bte", dft_seq_re, a) - torch.einsum("ts,bse->bte", dft_seq_im, b)
        return y

    def _B_ref(x, w_gate, w_up, w_down):
        g = torch.einsum("bsd,df->bsf", x, w_gate)
        u = torch.einsum("bsd,df->bsf", x, w_up)
        h = g * u
        return torch.einsum("bsf,fd->bsd", h, w_down)

    x = A_x
    xn = _layernorm(x, axis=-1)
    s = _A_ref(xn, A_dft_seq_re, A_dft_seq_im, A_dft_hid_re, A_dft_hid_im)
    g = _silu(_B_ref(xn, B_w_gate, B_w_up, B_w_down))
    return x + s * g
```

```python
import sys

S, D, F = 2048, 1024, 3584
XN   = 0x0000000
H    = 0x0400000
XEE  = 0x1200000
XEEX = 0x1300000
XOO  = 0x1400000
AET  = 0x1500000
BOT  = 0x1600000
PP   = 0x1700000
QQ   = 0x1A00000
C1   = 0x1D00000
ALT  = 0x1D02000
C2   = 0x1D04000
RP   = 0x1D06000
PART = 0x2000000
WS_BYTES = 0x10000000
PQ_PITCH = 544 * 4

ARG = dict(x=0, seq_re=8, seq_im=16, hid_re=24, hid_im=32, bx=40, wg=48, wu=56, wd=64, out=72, dbg=80, ws=88)


class G:
    def __init__(s):
        s.L = []
        s.kds = []
        s.uid = 0

    def __call__(s, txt):
        for ln in txt.split("\n"):
            ln = ln.strip()
            if ln:
                s.L.append("  " + ln)

    def label(s, n):
        s.L.append(n + ":")

    def newlabel(s, p="L"):
        s.uid += 1
        return f"{p}_{s.uid}"

    def begin(s, name):
        s.L.append(f".globl {name}\n.p2align 8\n.type {name},@function\n{name}:")

    def kd(s, name, vgpr, sgpr, accum):
        s.kds.append(f""".p2align 6
.amdhsa_kernel {name}
  .amdhsa_next_free_vgpr {vgpr}
  .amdhsa_next_free_sgpr {sgpr}
  .amdhsa_accum_offset {accum}
  .amdhsa_group_segment_fixed_size 0
  .amdhsa_kernarg_size 96
  .amdhsa_user_sgpr_count 2
  .amdhsa_user_sgpr_kernarg_segment_ptr 1
  .amdhsa_system_sgpr_workgroup_id_x 1
.end_amdhsa_kernel""")

    def srd(s, d, lo, hi, nbytes, add=0):
        if add == 0:
            s(f"s_mov_b32 s{d}, s{lo}\ns_mov_b32 s{d+1}, s{hi}")
        elif add > 0:
            s(f"s_add_u32 s{d}, s{lo}, {add:#x}\ns_addc_u32 s{d+1}, s{hi}, 0")
        else:
            s(f"s_sub_u32 s{d}, s{lo}, {-add:#x}\ns_subb_u32 s{d+1}, s{hi}, 0")
        s(f"s_mov_b32 s{d+2}, {nbytes:#x}\ns_mov_b32 s{d+3}, 0x20000")


def vr(a, n):
    return f"v[{a}:{a+n-1}]" if n > 1 else f"v{a}"


def ar(a, n):
    return f"a[{a}:{a+n-1}]" if n > 1 else f"a{a}"


def wave_sum(g, regs):
    steps = ["quad_perm:[1,0,3,2] row_mask:0xf", "quad_perm:[2,3,0,1] row_mask:0xf", "row_half_mirror row_mask:0xf",
             "row_mirror row_mask:0xf", "row_bcast:15 row_mask:0xa", "row_bcast:31 row_mask:0xc"]
    for st in steps:
        g(f"s_nop 1")
        for r in regs:
            g(f"v_add_f32_dpp v{r}, v{r}, v{r} {st} bank_mask:0xf")
    g("s_nop 1")


K0_XP = 2064
K0_EP = 1040
K0_EB = 16 * K0_XP
K0_OB = K0_EB + 9 * K0_EP
K0_LDS = K0_OB + 8 * K0_EP


def k0(g, o):
    g.begin("k0_kernel")
    done = "k0_done"
    g(f"s_cmp_ge_u32 s2, 128\ns_cbranch_scc1 {done}")
    g(f"s_load_dwordx2 s[4:5], s[0:1], {ARG['x']}\ns_load_dwordx2 s[6:7], s[0:1], {ARG['ws']}")
    g("v_lshrrev_b32 v2, 6, v0\nv_and_b32 v1, 63, v0\ns_nop 0\nv_readfirstlane_b32 s3, v2")
    g("v_lshlrev_b32 v2, 4, v1\nv_sub_u32 v3, 0x7f0, v2")
    g("s_lshl_b32 s16, s2, 3\ns_add_u32 s16, s16, s3")
    g("s_sub_u32 s17, 2048, s16\ns_cmp_eq_u32 s16, 0\ns_cselect_b32 s17, 1024, s17")
    g("s_lshl_b32 s18, s16, 11\ns_lshl_b32 s19, s17, 11")
    g("s_waitcnt lgkmcnt(0)")
    g.srd(8, 4, 5, S * D * 2)
    g.srd(12, 6, 7, 0x2000000)
    g("buffer_load_dwordx4 v[8:11], v2, s[8:11], s18 offen\nbuffer_load_dwordx4 v[12:15], v3, s[8:11], s18 offen")
    g("buffer_load_dwordx4 v[16:19], v2, s[8:11], s19 offen\nbuffer_load_dwordx4 v[20:23], v3, s[8:11], s19 offen")
    XA, XB = 24, 40
    g("s_mov_b32 s20, 0xffff0000")
    g("s_waitcnt vmcnt(2)")
    for i in range(8):
        g(f"v_lshlrev_b32 v{XA+2*i}, 16, v{8+i}\nv_and_b32 v{XA+2*i+1}, s20, v{8+i}")
    g("s_waitcnt vmcnt(0)")
    for i in range(8):
        g(f"v_lshlrev_b32 v{XB+2*i}, 16, v{16+i}\nv_and_b32 v{XB+2*i+1}, s20, v{16+i}")
    for X, T in ((XA, 56), (XB, 60)):
        g(f"v_pk_add_f32 v[{T}:{T+1}], v[{X}:{X+1}], v[{X+2}:{X+3}]")
        g(f"v_pk_add_f32 v[{T+2}:{T+3}], v[{X+4}:{X+5}], v[{X+6}:{X+7}]")
        for i in (8, 12):
            g(f"v_pk_add_f32 v[{T}:{T+1}], v[{T}:{T+1}], v[{X+i}:{X+i+1}]")
            g(f"v_pk_add_f32 v[{T+2}:{T+3}], v[{T+2}:{T+3}], v[{X+i+2}:{X+i+3}]")
        g(f"v_pk_add_f32 v[{T}:{T+1}], v[{T}:{T+1}], v[{T+2}:{T+3}]")
        g(f"v_add_f32 v{T}, v{T}, v{T+1}")
    wave_sum(g, [56, 60])
    g("v_readlane_b32 s22, v56, 63\nv_readlane_b32 s23, v60, 63\ns_nop 1")
    g("v_mov_b32 v4, 0x3a800000")
    g("v_mul_f32 v56, s22, v4\nv_mul_f32 v60, s23, v4")
    g("v_mov_b32 v57, v56\nv_mov_b32 v61, v60")
    for X, M, T in ((XA, 56, 64), (XB, 60, 68)):
        g(f"v_mov_b32 v{T}, 0\nv_mov_b32 v{T+1}, 0")
        for i in range(0, 16, 2):
            g(f"v_pk_add_f32 v[{T+2}:{T+3}], v[{X+i}:{X+i+1}], v[{M}:{M+1}] neg_lo:[0,1] neg_hi:[0,1]")
            g(f"v_pk_fma_f32 v[{T}:{T+1}], v[{T+2}:{T+3}], v[{T+2}:{T+3}], v[{T}:{T+1}]")
        g(f"v_add_f32 v{T}, v{T}, v{T+1}")
    wave_sum(g, [64, 68])
    g("v_readlane_b32 s22, v64, 63\nv_readlane_b32 s23, v68, 63\ns_nop 1")
    g("v_mul_f32 v64, s22, v4\nv_mul_f32 v68, s23, v4")
    g("v_cvt_pk_bf16_f32 v58, v56, v60\nv_cvt_pk_bf16_f32 v65, v64, v68")
    g("v_lshlrev_b32 v56, 16, v58\nv_and_b32 v60, s20, v58\nv_lshlrev_b32 v64, 16, v65\nv_and_b32 v68, s20, v65")
    g("v_add_f32 v64, 0x3727c5ac, v64\nv_add_f32 v68, 0x3727c5ac, v68")
    g("v_cvt_pk_bf16_f32 v65, v64, v68")
    g("v_lshlrev_b32 v64, 16, v65\nv_and_b32 v68, s20, v65")
    g("v_sqrt_f32 v64, v64\nv_sqrt_f32 v68, v68\ns_nop 0")
    g("v_cvt_pk_bf16_f32 v65, v64, v68")
    g("v_lshlrev_b32 v64, 16, v65\nv_and_b32 v68, s20, v65")
    g("v_rcp_f32 v64, v64\nv_rcp_f32 v68, v68")
    g("v_mov_b32 v57, v56\nv_mov_b32 v61, v60\nv_mov_b32 v65, v64\nv_mov_b32 v69, v68")
    for X, M, R, PKD in ((XA, 56, 64, 8), (XB, 60, 68, 16)):
        for i in range(8):
            a = X + 2 * i
            g(f"v_pk_add_f32 v[{a}:{a+1}], v[{a}:{a+1}], v[{M}:{M+1}] neg_lo:[0,1] neg_hi:[0,1]")
        for i in range(8):
            a = X + 2 * i
            g(f"v_cvt_pk_bf16_f32 v{PKD+i}, v{a}, v{a+1}")
        for i in range(8):
            a = X + 2 * i
            g(f"v_lshlrev_b32 v{a}, 16, v{PKD+i}\nv_and_b32 v{a+1}, s20, v{PKD+i}")
        for i in range(8):
            a = X + 2 * i
            g(f"v_pk_mul_f32 v[{a}:{a+1}], v[{a}:{a+1}], v[{R}:{R+1}]")
        for i in range(8):
            a = X + 2 * i
            g(f"v_cvt_pk_bf16_f32 v{PKD+i}, v{a}, v{a+1}")
        for i in range(8):
            a = X + 2 * i
            g(f"v_lshlrev_b32 v{a}, 16, v{PKD+i}\nv_and_b32 v{a+1}, s20, v{PKD+i}")
    g(f"s_mul_i32 s21, s3, {K0_XP}")
    g("v_add_u32 v5, s21, v2\nv_add_u32 v6, s21, v3")
    g("ds_write_b128 v5, v[8:11]\nds_write_b128 v6, v[12:15]")
    g(f"ds_write_b128 v5, v[16:19] offset:{8*K0_XP}\nds_write_b128 v6, v[20:23] offset:{8*K0_XP}")
    g(f"s_mul_i32 s21, s3, {K0_EP}\nv_add_u32 v7, s21, v2")
    E, O = 72, 88
    g("s_mov_b64 s[24:25], exec")

    def dfold(src, sign, dst_pk, tmp):
        op = "v_add_f32" if sign > 0 else "v_sub_f32"
        g(f"s_nop 1\nv_mov_b32_dpp v{tmp+8}, v{src+8} wave_shr:1 row_mask:0xf bank_mask:0xf bound_ctrl:0")
        for j in range(1, 8):
            g(f"{op} v{tmp+j}, v{src+j}, v{src+16-j}")
        g(f"{op} v{tmp}, v{src}, v{tmp+8}")
        for j in range(4):
            g(f"v_cvt_pk_bf16_f32 v{dst_pk+j}, v{tmp+2*j}, v{tmp+2*j+1}")

    def even_row(src, lds_off, srow):
        dfold(src, +1, 104, 108)
        g(f"ds_write_b128 v7, v[104:107] offset:{lds_off}")
        g(f"v_pk_add_f32 v[108:109], v[{src}:{src+1}], v[{src+2}:{src+3}]")
        for i in range(4, 16, 2):
            g(f"v_pk_add_f32 v[108:109], v[108:109], v[{src+i}:{src+i+1}]")
        g("v_sub_f32 v108, v108, v109")
        wave_sum(g, [108])
        g(f"s_lshl_b32 s26, {srow}, 2\nv_mov_b32 v110, s26")
        g("s_mov_b32 exec_lo, 0\ns_mov_b32 exec_hi, 0x80000000")
        g(f"s_mov_b32 s27, {C1:#x}\ns_mov_b32 s28, {ALT:#x}")
        g(f"buffer_store_dword v{src+8}, v110, s[12:15], s27 offen\nbuffer_store_dword v108, v110, s[12:15], s28 offen")
        g("s_mov_b64 exec, s[24:25]")

    lz, lj = "k0_pair0", "k0_join"
    g(f"s_cmp_eq_u32 s16, 0\ns_cbranch_scc1 {lz}")
    for i in range(0, 16, 2):
        g(f"v_pk_add_f32 v[{E+i}:{E+i+1}], v[{XA+i}:{XA+i+1}], v[{XB+i}:{XB+i+1}]")
        g(f"v_pk_add_f32 v[{O+i}:{O+i+1}], v[{XA+i}:{XA+i+1}], v[{XB+i}:{XB+i+1}] neg_lo:[0,1] neg_hi:[0,1]")
    even_row(E, K0_EB, "s16")
    dfold(O, -1, 104, 108)
    g(f"ds_write_b128 v7, v[104:107] offset:{K0_OB}")
    g(f"s_branch {lj}")
    g.label(lz)
    even_row(XA, K0_EB, "s16")
    even_row(XB, K0_EB + 8 * K0_EP, "s17")
    g("v_mov_b32 v104, 0\nv_mov_b32 v105, 0\nv_mov_b32 v106, 0\nv_mov_b32 v107, 0")
    g(f"ds_write_b128 v7, v[104:107] offset:{K0_OB}")
    g.label(lj)
    g("s_waitcnt lgkmcnt(0)\ns_barrier")
    g("v_and_b32 v8, 7, v1\nv_lshrrev_b32 v9, 3, v1")
    g("s_lshl_b32 s21, s2, 3")
    g("v_add_u32 v10, s21, v8")
    g("v_sub_u32 v11, 0x800, v10\nv_cmp_eq_u32 vcc, 0, v10\nv_mov_b32 v12, 0x400\ns_nop 0\nv_cndmask_b32 v11, v11, v12, vcc")

    def rowoff(dst, m, tile_stride_log2):
        g(f"v_lshrrev_b32 v13, 8, v{m}\nv_lshlrev_b32 v{dst}, {tile_stride_log2}, v13")
        g(f"v_bfe_u32 v13, v{m}, 4, 4\nv_lshl_add_u32 v{dst}, v13, 10, v{dst}")
        g(f"v_and_b32 v13, 15, v{m}\nv_lshl_add_u32 v{dst}, v13, 4, v{dst}")
    rowoff(14, 10, 19)
    rowoff(15, 11, 19)
    rowoff(16, 10, 18)
    g("v_lshrrev_b32 v17, 2, v9\nv_and_b32 v18, 3, v9")
    g("v_lshlrev_b32 v19, 14, v17\nv_lshl_add_u32 v19, v18, 8, v19")
    g("v_lshlrev_b32 v20, 6, v17\nv_lshl_add_u32 v20, v18, 3, v20")
    g(f"v_mul_u32_u24 v21, {K0_XP}, v8\nv_add_u32 v21, v21, v20")
    g(f"v_mul_u32_u24 v22, {K0_EP}, v8\nv_add_u32 v22, v22, v20")
    g("s_lshl_b32 s22, s3, 8\nv_add_u32 v21, s22, v21")
    g("s_lshl_b32 s22, s3, 7\nv_add_u32 v22, s22, v22")
    g("v_add_u32 v14, v14, v19\nv_add_u32 v15, v15, v19\nv_add_u32 v16, v16, v19")
    g(f"v_add_u32 v23, {8*K0_XP}, v21")
    g(f"v_add_u32 v24, {K0_EB}, v22\nv_add_u32 v25, {K0_OB}, v22")
    g("ds_read2_b64 v[28:31], v21 offset0:0 offset1:4\nds_read2_b64 v[32:35], v21 offset0:16 offset1:20")
    g("ds_read2_b64 v[36:39], v23 offset0:0 offset1:4\nds_read2_b64 v[40:43], v23 offset0:16 offset1:20")
    g("ds_read2_b64 v[44:47], v24 offset0:0 offset1:4\nds_read2_b64 v[48:51], v25 offset0:0 offset1:4")
    g(f"s_lshl_b32 s22, s3, 16\ns_add_u32 s23, s22, 0x8000")
    g(f"s_lshl_b32 s26, s3, 15\ns_add_u32 s27, s26, {XOO:#x}\ns_add_u32 s26, s26, {XEE:#x}")
    g("s_waitcnt lgkmcnt(5)\nbuffer_store_dwordx4 v[28:31], v14, s[12:15], s22 offen")
    g("s_waitcnt lgkmcnt(4)\nbuffer_store_dwordx4 v[32:35], v14, s[12:15], s23 offen")
    g("s_waitcnt lgkmcnt(3)\nbuffer_store_dwordx4 v[36:39], v15, s[12:15], s22 offen")
    g("s_waitcnt lgkmcnt(2)\nbuffer_store_dwordx4 v[40:43], v15, s[12:15], s23 offen")
    g("s_waitcnt lgkmcnt(1)\nbuffer_store_dwordx4 v[44:47], v16, s[12:15], s26 offen")
    g("s_waitcnt lgkmcnt(0)\nbuffer_store_dwordx4 v[48:51], v16, s[12:15], s27 offen")
    g(f"s_cmp_lg_u32 s16, 0\ns_cbranch_scc1 {done}")
    g("v_lshrrev_b32 v17, 2, v1\nv_and_b32 v18, 3, v1")
    g("v_lshlrev_b32 v19, 10, v17\nv_lshl_add_u32 v19, v18, 8, v19")
    g("v_lshlrev_b32 v20, 6, v17\nv_lshl_add_u32 v20, v18, 3, v20")
    g(f"v_add_u32 v20, {K0_EB + 8*K0_EP}, v20")
    g("ds_read2_b64 v[52:55], v20 offset0:0 offset1:4")
    g(f"s_mov_b32 s26, {XEEX:#x}")
    g("s_waitcnt lgkmcnt(0)\nbuffer_store_dwordx4 v[52:55], v19, s[12:15], s26 offen")
    g.label(done)
    g("s_endpgm")
    g.kd("k0_kernel", 120, 40, 120)
    return f"; @launch kernel=k0_kernel grid=(128,1,1) block=(512,1,1) lds={K0_LDS}"


class Core:
    NS = 4

    def __init__(s, g, MF, nh, SUBS, act_first, wpitch, extra=False, vacc0=32, span=0.85):
        s.g, s.MF, s.nh, s.SUBS, s.act_first, s.wpitch, s.extra = g, MF, nh, SUBS, act_first, wpitch, extra
        s.NF = 4 * nh
        s.nA = MF // 2
        s.actb = 2 * MF * 1024
        s.subb = s.actb + nh * 8192
        s.slotb = s.subb * SUBS
        s.ringb = s.slotb * s.NS
        s.xbase = s.ringb
        s.lds = s.ringb + (16384 if extra else 0)
        s.ndma = (s.nA + 2 * nh) * SUBS
        s.span = span
        s.act_sc1 = False
        s.MFx = MF + (1 if extra else 0)
        ntile = s.NF * s.MFx
        s.acc = {}
        v, a = vacc0, 128
        for j in range(s.NF):
            for i in range(s.MFx):
                if v + 4 <= 256:
                    s.acc[j, i] = ("v", v); v += 4
                else:
                    s.acc[j, i] = ("a", a); a += 4
        s.vtop, s.atop = v, a
        per = (s.MFx + s.NF) * 4 * SUBS
        assert 2 * per <= 128
        s.fper = per
        s.vArd = [2, 3]
        s.vWrd = [[4, 5, 6, 7], [8, 9, 10, 11]]
        s.vAdma = 12
        s.vWdma = [13, 14, 15, 16]
        s.vX = 17
        s.sAoff, s.sWoff, s.sMA, s.sMW, s.sCnt = 32, 33, 34, 35, 36

    def accr(s, j, i):
        k, r = s.acc[j, i]
        return f"{k}[{r}:{r+3}]"

    def fa(s, st, u, i):
        return st * s.fper + u * (s.MFx + s.NF) * 4 + i * 4

    def fw(s, st, u, j):
        return st * s.fper + u * (s.MFx + s.NF) * 4 + (s.MFx + j) * 4

    def setup(s, wave="s3", lane="v1", tmp=(20, 21, 22, 23)):
        g = s.g
        t0, t1, t2, t3 = tmp
        g(f"s_lshr_b32 s37, {wave}, 1\ns_and_b32 s38, {wave}, 1")
        g(f"v_lshlrev_b32 v{t0}, 4, {lane}")
        g(f"s_mul_i32 s39, s37, {s.MF*1024}\nv_add_u32 v{s.vArd[0]}, s39, v{t0}")
        g(f"v_add_u32 v{s.vArd[1]}, {2*s.slotb}, v{s.vArd[0]}")
        g(f"s_mul_i32 s{s.sMA}, {wave}, {s.nA*1024}\nv_add_u32 v{s.vAdma}, s{s.sMA}, v{t0}")
        g(f"s_mul_i32 s{s.sMW}, {wave}, {s.nh*2048}\ns_add_u32 s{s.sMW}, s{s.sMW}, {s.actb}")
        if s.extra:
            g(f"v_add_u32 v{s.vX}, {s.xbase}, v{t0}")
        g(f"v_bfe_u32 v{t1}, {lane}, 2, 3")
        g(f"v_lshrrev_b32 v{t2}, 5, {lane}\nv_mul_u32_u24 v{t2}, {s.nh*2048}, v{t2}")
        g(f"v_lshl_add_u32 v{t2}, v{t1}, 8, v{t2}")
        g(f"v_and_b32 v{t3}, 3, {lane}\nv_lshl_add_u32 v{t2}, v{t3}, 3, v{t2}")
        g(f"v_add_u32 v{t2}, {s.actb}, v{t2}")
        g(f"s_lshl_b32 s39, s38, 2")
        for jj in range(4):
            g(f"s_add_u32 s40, s39, {jj}\nv_xor_b32 v{t3}, s40, v{t1}")
            g(f"v_lshl_add_u32 v{s.vWrd[0][jj]}, v{t3}, 5, v{t2}")
            g(f"v_add_u32 v{s.vWrd[1][jj]}, {2*s.slotb}, v{s.vWrd[0][jj]}")
        g(f"v_lshrrev_b32 v{t1}, 4, {lane}\nv_and_b32 v{t2}, 15, {lane}")
        g(f"s_mov_b32 s40, {s.wpitch}\ns_mul_i32 s39, {wave}, {8*s.wpitch}")
        for u in range(2):
            g(f"v_add_u32 v{t3}, {4*u}, v{t1}")
            g(f"v_mul_lo_u32 v{t0}, v{t3}, s40\nv_add_u32 v{t0}, s39, v{t0}")
            g(f"v_lshlrev_b32 v{t3}, 1, v{t3}\nv_xor_b32 v{t3}, v{t3}, v{t2}")
            g(f"v_lshl_add_u32 v{t0}, v{t3}, 4, v{t0}")
            for h in range(s.nh):
                g(f"v_add_u32 v{s.vWdma[2*h+u]}, {4096 - (2*h+u)*1024}, v{t0}")

    def zero_acc(s):
        for (k, r) in s.acc.values():
            for x in range(4):
                s.g(f"v_mov_b32 v{r+x}, 0" if k == "v" else f"v_accvgpr_write_b32 a{r+x}, 0")

    def dma_items(s, slot):
        it = []
        for u in range(s.SUBS):
            base = slot * s.slotb + u * s.subb
            first = [f"s_add_u32 m0, s{s.sMA}, {base}"]
            for i in range(s.nA):
                ins = f"buffer_load_dwordx4 v{s.vAdma}, s[8:11], s{s.sAoff} offen offset:{i*1024}{' sc1' if s.act_sc1 else ''} lds"
                it.append(first + ["@"] + [ins] if first else [ins])
                first = []
            it[-1].append(f"s_add_u32 s{s.sAoff}, s{s.sAoff}, {s.actb}")
            first = [f"s_add_u32 m0, s{s.sMW}, {base}"]
            for h in range(s.nh):
                for uu in range(2):
                    ins = f"buffer_load_dwordx4 v{s.vWdma[2*h+uu]}, s[{12+4*h}:{15+4*h}], s{s.sWoff} offen offset:{(2*h+uu)*1024} lds"
                    it.append(first + ["@"] + [ins] if first else [ins])
                    first = []
            it[-1].append(f"s_add_u32 s{s.sWoff}, s{s.sWoff}, {32*s.wpitch}")
        return it

    def read_items(s, slot, st):
        it = []
        hi = slot >> 1
        for u in range(s.SUBS):
            base = (slot & 1) * s.slotb + u * s.subb
            wl, al = [], []
            for j in range(s.NF):
                h, jj = divmod(j, 4)
                r = s.fw(st, u, j)
                for half in range(2):
                    wl.append(f"ds_read_b64_tr_b16 a[{r+2*half}:{r+2*half+1}], v{s.vWrd[hi][jj]} offset:{base + h*2048 + half*2*s.nh*2048}")
            for i in range(s.MF):
                r = s.fa(st, u, i)
                al.append(f"ds_read_b128 a[{r}:{r+3}], v{s.vArd[hi]} offset:{base + i*1024}")
            if s.extra:
                r = s.fa(st, u, s.MF)
                al.append(f"ds_read_b128 a[{r}:{r+3}], v{s.vX}")
            while wl or al:
                if al: it.append([al.pop(0)])
                if wl: it.append([wl.pop(0)])
                if wl: it.append([wl.pop(0)])
            if s.extra:
                it.append([f"v_add_u32 v{s.vX}, 1024, v{s.vX}"])
        return it

    def mfmas(s, st):
        out = []
        for u in range(s.SUBS):
            for j in range(s.NF):
                for i in range(s.MFx):
                    a, w = s.fa(st, u, i), s.fw(st, u, j)
                    A, W = f"a[{a}:{a+3}]", f"a[{w}:{w+3}]"
                    x, y = (A, W) if s.act_first else (W, A)
                    out.append(f"v_mfma_f32_16x16x32_bf16 {s.accr(j,i)}, {x}, {y}, {s.accr(j,i)}")
        return out

    def flat(s, items):
        for grp in items:
            for ins in grp:
                s.g("s_nop 0" if ins == "@" else ins)

    def prologue(s, pre_wait=None):
        g = s.g
        nx = 0
        if s.extra:
            g(f"s_lshl_b32 s39, s3, 12\ns_add_u32 m0, s39, {s.xbase}\nv_lshlrev_b32 v20, 4, v1")
            for i in range(4):
                g(f"buffer_load_dwordx4 v20, s[28:31], s39 offen offset:{i*1024} lds")
        for slot in range(s.NS):
            s.flat(s.dma_items(slot))
        s.zero_acc()
        if pre_wait:
            pre_wait()
        g(f"s_waitcnt vmcnt({3*s.ndma})\ns_barrier")
        s.flat(s.read_items(0, 0))

    def phase(s, p, tail=None, extra_vm=0):
        g = s.g
        st = p & 1
        g(f"s_waitcnt vmcnt({2*s.ndma + extra_vm}) lgkmcnt(0)\ns_barrier")
        rd = s.read_items((p + 1) % s.NS, st ^ 1)
        dm = s.dma_items(p % s.NS)
        fill = []
        nr, nd = len(rd), len(dm)
        ri = di = 0
        while ri < nr or di < nd:
            if di < nd and (ri >= nr or di * nr <= ri * nd):
                fill.append(dm[di]); di += 1
            else:
                fill.append(rd[ri]); ri += 1
        flat = []
        for grp in fill:
            cur = []
            for ins in grp:
                if ins == "@":
                    flat.append(cur); cur = []
                else:
                    cur.append(ins)
            flat.append(cur)
        mf = s.mfmas(st)
        n = len(mf)
        lim = max(1, int(n * s.span))
        pos = {}
        for idx, grp in enumerate(flat):
            pos.setdefault(min(n - 1, idx * lim // len(flat)), []).append(grp)
        for k, m in enumerate(mf):
            g(m)
            grps = pos.get(k, [])
            for gi, grp in enumerate(grps):
                if gi and grps[gi-1] and grps[gi-1][-1].startswith("s_add_u32 m0"):
                    g("s_nop 0")
                for ins in grp:
                    g(ins)
            if tail and k == n - 2:
                g(tail)

    def loop(s, nphase, name):
        g = s.g
        assert nphase % s.NS == 0
        g(f"s_mov_b32 s{s.sCnt}, {nphase // s.NS}")
        g.label(name)
        for p in range(s.NS):
            s.phase(p, tail=(f"s_sub_u32 s{s.sCnt}, s{s.sCnt}, 1\ns_cmp_lg_u32 s{s.sCnt}, 0" if p == s.NS - 1 else None))
        g(f"s_cbranch_scc1 {name}")


def common_entry(g, nwg, done):
    g(f"s_cmp_ge_u32 s2, {nwg}\ns_cbranch_scc1 {done}")
    g("v_lshrrev_b32 v2, 6, v0\nv_and_b32 v1, 63, v0\ns_nop 0\nv_readfirstlane_b32 s3, v2")


def srd_dyn(g, d, lo, hi, soff, nbytes_sgpr_or_imm, const=0):
    g(f"s_add_u32 s{d}, s{lo}, {soff}\ns_addc_u32 s{d+1}, s{hi}, 0")
    if const > 0:
        g(f"s_add_u32 s{d}, s{d}, {const:#x}\ns_addc_u32 s{d+1}, s{d+1}, 0")
    elif const < 0:
        g(f"s_sub_u32 s{d}, s{d}, {-const:#x}\ns_subb_u32 s{d+1}, s{d+1}, 0")
    g(f"s_mov_b32 s{d+2}, {nbytes_sgpr_or_imm}\ns_mov_b32 s{d+3}, 0x20000")


def accv(g, core, j, i, tmp):
    k, r = core.acc[j, i]
    if k == "v":
        return r
    for x in range(4):
        g(f"v_accvgpr_read_b32 v{tmp+x}, a{r+x}")
    return tmp


def k1(g, o):
    g.begin("k1_kernel")
    done = "k1_done"
    common_entry(g, 256, done)
    g(f"s_load_dwordx2 s[6:7], s[0:1], {ARG['ws']}")
    g("s_and_b32 s41, s2, 7\ns_lshr_b32 s42, s2, 3")
    g("s_cmp_lt_u32 s42, 4\ns_cbranch_scc1 k1_fft")
    g(f"s_load_dwordx4 s[44:47], s[0:1], {ARG['wg']}")
    g("s_sub_u32 s42, s42, 4")
    if o.get("map1", "4x7") == "4x7":
        g("s_and_b32 s48, s41, 1\ns_lshl_b32 s48, s48, 2\ns_and_b32 s50, s42, 3\ns_add_u32 s48, s48, s50")
        g("s_lshr_b32 s49, s41, 1\ns_mul_i32 s49, s49, 7\ns_lshr_b32 s50, s42, 2\ns_add_u32 s49, s49, s50")
    else:
        g("s_and_b32 s48, s41, 3\ns_lshl_b32 s48, s48, 1\ns_and_b32 s50, s42, 1\ns_add_u32 s48, s48, s50")
        g("s_lshr_b32 s49, s41, 2\ns_mul_i32 s49, s49, 14\ns_lshr_b32 s50, s42, 1\ns_add_u32 s49, s49, s50")
    c = Core(g, MF=8, nh=2, SUBS=1, act_first=False, wpitch=F * 2, span=o.get("span1", 0.85))
    c.setup()
    g("s_lshl_b32 s50, s48, 19\ns_lshl_b32 s51, s49, 8")
    g(f"s_sub_u32 s52, {D*F*2 + 4096}, s51")
    g("s_waitcnt lgkmcnt(0)")
    srd_dyn(g, 8, 6, 7, "s50", 0x80000, XN)
    srd_dyn(g, 12, 44, 45, "s51", "s52", -4096)
    srd_dyn(g, 16, 46, 47, "s51", "s52", -4096)
    g(f"s_mov_b32 s{c.sAoff}, 0\ns_mov_b32 s{c.sWoff}, 0")
    c.prologue()
    c.loop(32, "k1_g1_loop")
    g.srd(20, 6, 7, S * F * 2, H)
    g(f"s_lshl_b32 s50, s48, 1\ns_add_u32 s50, s50, s37\ns_mul_i32 s50, s50, {112*8192}")
    g("s_lshl_b32 s51, s49, 2\ns_lshl_b32 s52, s38, 1\ns_add_u32 s51, s51, s52\ns_lshl_b32 s51, s51, 13")
    g("s_add_u32 s50, s50, s51\ns_add_u32 s51, s50, 0x2000")
    g("v_lshlrev_b32 v2, 4, v1\nv_add_u32 v3, 0x1000, v2\ns_nop 7")
    k = 0
    for kbl in range(2):
        for i in range(8):
            o4 = 4 + 4 * (k & 1); k += 1
            for jj in range(2):
                j = 2 * kbl + jj
                gr = accv(g, c, j, i, 12)
                ur = accv(g, c, 4 + j, i, 16)
                g(f"v_pk_mul_f32 v[{gr}:{gr+1}], v[{gr}:{gr+1}], v[{ur}:{ur+1}]")
                g(f"v_pk_mul_f32 v[{gr+2}:{gr+3}], v[{gr+2}:{gr+3}], v[{ur+2}:{ur+3}]")
                g(f"v_cvt_pk_bf16_f32 v{o4+2*jj}, v{gr}, v{gr+1}\nv_cvt_pk_bf16_f32 v{o4+2*jj+1}, v{gr+2}, v{gr+3}")
            g(f"buffer_store_dwordx4 v[{o4}:{o4+3}], v{2 + (i >> 2)}, s[20:23], s{50+kbl} offen offset:{(i&3)*1024}")
    g("s_endpgm")
    lds1 = c.lds

    g.label("k1_fft")
    g("s_and_b32 s48, s41, 1\ns_lshr_b32 s49, s41, 1")
    g(f"s_lshl_b32 s50, s48, 3\ns_add_u32 s50, s50, {ARG['hid_re']}\ns_load_dwordx2 s[44:45], s[0:1], s50")
    g(f"s_sub_u32 s50, s50, 16\ns_load_dwordx2 s[46:47], s[0:1], s50")
    g(f"s_load_dwordx2 s[54:55], s[0:1], {ARG['dbg']}")
    c = Core(g, MF=8, nh=1, SUBS=1, act_first=True, wpitch=D * 2, extra=True)
    c.setup()
    g(f"s_mul_i32 s50, s48, {XOO - XEE}\ns_lshl_b32 s51, s42, 18\ns_add_u32 s50, s50, s51")
    g(f"s_lshl_b32 s51, s49, 8\ns_sub_u32 s52, {512*2048 + 4096}, s51")
    g("s_waitcnt lgkmcnt(0)")
    srd_dyn(g, 8, 6, 7, "s50", 0x40000, XEE)
    srd_dyn(g, 12, 44, 45, "s51", "s52", -4096)
    g.srd(28, 6, 7, 16384, XEEX)
    g(f"s_mov_b32 s{c.sAoff}, 0\ns_mov_b32 s{c.sWoff}, 0")
    c.prologue()
    c.loop(16, "k1_f1_loop")
    g("s_cmp_eq_u32 s48, 0\ns_cselect_b32 s53, 0x10000, 0")
    g(f"s_add_u32 s24, s6, {C1:#x}\ns_addc_u32 s25, s7, 0\ns_mov_b32 s26, s53\ns_mov_b32 s27, 0x20000")
    T = c.vtop
    assert T + 72 + 8 <= 256
    g("v_lshrrev_b32 v2, 4, v1\nv_lshlrev_b32 v2, 4, v2")
    g("s_lshl_b32 s50, s42, 10\ns_lshl_b32 s51, s37, 9\ns_add_u32 s50, s50, s51")
    g(f"s_add_u32 s51, s50, {ALT - C1}\ns_mov_b32 s52, 4096\ns_mov_b32 s56, {ALT - C1 + 4096}")
    for i in range(8):
        g(f"buffer_load_dwordx4 v[{T+4*i}:{T+4*i+3}], v2, s[24:27], s50 offen offset:{i*64}")
    g(f"buffer_load_dwordx4 v[{T+32}:{T+35}], v2, s[24:27], s52 offen")
    for i in range(8):
        g(f"buffer_load_dwordx4 v[{T+36+4*i}:{T+36+4*i+3}], v2, s[24:27], s51 offen offset:{i*64}")
    g(f"buffer_load_dwordx4 v[{T+68}:{T+71}], v2, s[24:27], s56 offen")
    g("v_and_b32 v3, 1, v1\nv_lshlrev_b32 v3, 31, v3\nv_or_b32 v3, 1.0, v3")
    g("s_or_b32 s56, s48, s49\ns_or_b32 s56, s56, s38\ns_cmp_eq_u32 s56, 0\ns_cselect_b32 s58, 0x00010001, 0\ns_mov_b32 s59, s58")
    g("s_waitcnt vmcnt(9)")
    for j in range(4):
        for i in range(9):
            r = c.acc[j, i][1]
            for x in range(4):
                g(f"v_fmac_f32 v{r+x}, v{T+4*i+x}, v3")
    g("s_waitcnt vmcnt(0)")
    for i in range(9):
        r = c.acc[0, i][1]
        for x in range(4):
            g(f"v_cndmask_b32 v{r+x}, v{r+x}, v{T+36+4*i+x}, s[58:59]")
    g(f"s_mul_i32 s50, s48, {BOT - AET}\ns_lshl_b32 s51, s49, 18\ns_add_u32 s50, s50, s51")
    srd_dyn(g, 20, 6, 7, "s50", 0x40000, AET)
    g("s_lshl_b32 s50, s42, 16\ns_lshl_b32 s51, s37, 15\ns_add_u32 s50, s50, s51\ns_lshl_b32 s51, s38, 12\ns_add_u32 s50, s50, s51")
    g("v_lshlrev_b32 v2, 4, v1")
    k = 0
    for ip in range(4):
        for j in range(4):
            o4 = 4 + 4 * (k & 1); k += 1
            for ii in range(2):
                r = c.acc[j, 2 * ip + ii][1]
                g(f"v_cvt_pk_bf16_f32 v{o4+2*ii}, v{r}, v{r+1}\nv_cvt_pk_bf16_f32 v{o4+2*ii+1}, v{r+2}, v{r+3}")
            g(f"buffer_store_dwordx4 v[{o4}:{o4+3}], v2, s[20:23], s50 offen offset:{j*1024} sc1")
        g("s_add_u32 s50, s50, 0x2000")
    g("v_and_b32 v2, 15, v1\nv_lshlrev_b32 v2, 2, v2")
    g(f"s_lshl_b32 s50, s42, 1\ns_add_u32 s50, s50, s37\ns_lshl_b32 s50, s50, 11\ns_lshl_b32 s51, s49, 9\ns_add_u32 s50, s50, s51")
    g(f"s_lshl_b32 s51, s38, 8\ns_add_u32 s50, s50, s51\ns_add_u32 s50, s50, {RP - C1}")
    for j in range(4):
        r0 = c.acc[j, 0][1]
        g(f"v_pk_add_f32 v[{T}:{T+1}], v[{r0}:{r0+1}], v[{r0+2}:{r0+3}]")
        for i in range(1, 8):
            r = c.acc[j, i][1]
            g(f"v_pk_add_f32 v[{T}:{T+1}], v[{T}:{T+1}], v[{r}:{r+1}]\nv_pk_add_f32 v[{T}:{T+1}], v[{T}:{T+1}], v[{r+2}:{r+3}]")
        g(f"v_sub_f32 v{T+4+j}, v{T}, v{T+1}")
        g(f"v_mov_b32 v{T+2}, v{T+4+j}\ns_nop 1\nv_permlane32_swap_b32 v{T+4+j}, v{T+2}\ns_nop 1\nv_add_f32 v{T+4+j}, v{T+4+j}, v{T+2}")
        g(f"v_mov_b32 v{T+2}, v{T+4+j}\ns_nop 1\nv_permlane16_swap_b32 v{T+4+j}, v{T+2}\ns_nop 1\nv_add_f32 v{T+4+j}, v{T+4+j}, v{T+2}")
        g(f"buffer_store_dword v{T+4+j}, v2, s[24:27], s50 offen offset:{j*64} sc1")
    g("s_or_b32 s50, s42, s37\ns_cmp_lg_u32 s50, 0\ns_cbranch_scc1 k1_f1_noc2")
    g(f"s_lshl_b32 s50, s49, 9\ns_lshl_b32 s51, s38, 8\ns_add_u32 s50, s50, s51\ns_add_u32 s50, s50, {C2 - C1}")
    g("s_mov_b64 exec, 0xffff")
    for j in range(4):
        g(f"buffer_store_dword v{c.acc[j,8][1]}, v2, s[24:27], s50 offen offset:{j*64} sc1")
    g("s_mov_b64 exec, -1")
    g.label("k1_f1_noc2")
    g.srd(28, 54, 55, 256)
    g("s_waitcnt vmcnt(0)\ns_barrier")
    g("s_cmp_lg_u32 s3, 0\ns_cbranch_scc1 k1_f_go")
    g("s_lshl_b32 s50, s41, 5\nv_mov_b32 v2, s50\nv_mov_b32 v3, 1\ns_mov_b64 exec, 1")
    g("buffer_atomic_add v3, v2, s[28:31], 0 offen sc1\ns_mov_b32 s51, 0x40000")
    g.label("k1_f_poll")
    g("s_sleep 2\nbuffer_load_dword v4, v2, s[28:31], 0 offen sc1\ns_waitcnt vmcnt(0)\nv_readfirstlane_b32 s50, v4")
    g("s_sub_u32 s51, s51, 1\ns_cselect_b32 s50, 4, s50")
    g("s_cmp_lt_u32 s50, 4\ns_cbranch_scc1 k1_f_poll")
    g("s_mov_b64 exec, -1")
    g.label("k1_f_go")
    g("s_barrier")
    lds2 = c.lds
    c = Core(g, MF=4, nh=2, SUBS=1, act_first=True, wpitch=S * 2)
    c.act_sc1 = True
    c.setup()
    g(f"s_mul_i32 s50, s48, {BOT - AET}\ns_lshl_b32 s51, s49, 18\ns_add_u32 s50, s50, s51")
    srd_dyn(g, 8, 6, 7, "s50", 0x40000, AET)
    g(f"s_lshl_b32 s51, s42, 9\ns_sub_u32 s52, {1024*4096 + 4096}, s51")
    srd_dyn(g, 12, 46, 47, "s51", "s52", -4096)
    g("s_sub_u32 s52, s52, 256")
    srd_dyn(g, 16, 46, 47, "s51", "s52", -4096 + 256)
    g(f"s_mov_b32 s{c.sAoff}, 0\ns_mov_b32 s{c.sWoff}, 0")
    c.prologue()
    c.loop(32, "k1_f2_loop")
    T = c.vtop
    g("v_lshrrev_b32 v2, 4, v1\nv_lshlrev_b32 v2, 4, v2")
    g(f"s_lshl_b32 s50, s49, 9\ns_lshl_b32 s51, s37, 8\ns_add_u32 s50, s50, s51\ns_add_u32 s51, s50, {C2 - C1}")
    for i in range(4):
        g(f"buffer_load_dwordx4 v[{T+4*i}:{T+4*i+3}], v2, s[24:27], s51 offen offset:{i*64} sc1")
    g("v_and_b32 v3, 1, v1\nv_lshlrev_b32 v3, 31, v3\nv_or_b32 v3, 1.0, v3")
    g(f"s_mul_i32 s52, s48, {QQ - PP}")
    srd_dyn(g, 20, 6, 7, "s52", 1025 * PQ_PITCH, PP)
    g(f"v_and_b32 v4, 15, v1\nv_mul_u32_u24 v4, {PQ_PITCH}, v4")
    g("v_add_u32 v5, v4, v2")
    g(f"s_lshl_b32 s52, s42, 8\ns_lshl_b32 s53, s38, 6\ns_add_u32 s52, s52, s53\ns_mul_i32 s52, s52, {PQ_PITCH}")
    g("s_add_u32 s50, s50, s52")
    g("s_or_b32 s56, s49, s37\ns_cmp_eq_u32 s56, 0\ns_cselect_b32 s58, 0xffff, 0\ns_mov_b32 s59, 0")
    g("s_waitcnt vmcnt(0)")
    for j in range(8):
        for i in range(4):
            r = c.acc[j, i][1]
            for x in range(4):
                g(f"v_fmac_f32 v{r+x}, v{T+4*i+x}, v3")
    g("s_cmp_eq_u32 s58, 0\ns_cbranch_scc1 k1_f2_nodc")
    g("s_mov_b64 exec, 0xffff")
    for j in range(8):
        h, jj = divmod(j, 4)
        r = c.acc[j, 0][1]
        g(f"s_add_u32 s53, s52, {(h*128 + jj*16) * PQ_PITCH}")
        g(f"buffer_store_dword v{r}, v4, s[20:23], s53 offen offset:2048")
    g("s_nop 0")
    for j in range(8):
        g(f"v_mov_b32 v{c.acc[j,0][1]}, 0")
    g("s_mov_b64 exec, -1")
    g.label("k1_f2_nodc")
    for j in range(8):
        h, jj = divmod(j, 4)
        g(f"s_add_u32 s53, s50, {(h*128 + jj*16) * PQ_PITCH}")
        for i in range(4):
            r = c.acc[j, i][1]
            g(f"buffer_store_dwordx4 v[{r}:{r+3}], v5, s[20:23], s53 offen offset:{i*64}")
    g(f"s_cmp_lg_u32 s42, 0\ns_cbranch_scc1 {done}\ns_cmp_ge_u32 s3, 2\ns_cbranch_scc1 {done}")
    g("v_lshlrev_b32 v2, 2, v0\ns_lshl_b32 s50, s49, 9\nv_add_u32 v2, s50, v2")
    g(f"s_mov_b32 s51, {RP - C1}\ns_mov_b32 s53, {RP - C1 + 4096}\ns_mov_b32 s56, {RP - C1 + 8192}\ns_mov_b32 s57, {RP - C1 + 12288}\ns_mov_b32 s52, {C2 - C1}")
    for k, sr in enumerate((51, 53, 56, 57)):
        g(f"buffer_load_dword v{8+2*k}, v2, s[24:27], s{sr} offen sc1\nbuffer_load_dword v{9+2*k}, v2, s[24:27], s{sr} offen offset:2048 sc1")
    g("buffer_load_dword v16, v2, s[24:27], s52 offen sc1\ns_waitcnt vmcnt(0)")
    for k in range(8):
        g(f"v_add_f32 v16, v16, v{8+k}")
    g(f"s_mov_b32 s51, {1024 * PQ_PITCH}")
    g("v_cmp_eq_u32 vcc, 0, v2\nv_mov_b32 v17, 0\ns_nop 0\nv_cndmask_b32 v18, v16, v17, vcc")
    g("buffer_store_dword v18, v2, s[20:23], s51 offen")
    g(f"s_and_saveexec_b64 s[56:57], vcc\ns_cbranch_execz {done}")
    g("buffer_store_dword v16, v2, s[20:23], s51 offen offset:2048")
    g.label(done)
    g("s_endpgm")
    g.kd("k1_kernel", 256 + 160, 96, 256)
    return f"; @launch kernel=k1_kernel grid=(256,1,1) block=(256,1,1) lds={max(lds1, lds2, c.lds)}"


def k2(g, o):
    g.begin("k2_kernel")
    done = "k2_done"
    common_entry(g, 128, done)
    g(f"s_load_dwordx2 s[6:7], s[0:1], {ARG['ws']}\ns_load_dwordx4 s[44:47], s[0:1], {ARG['wd']}\ns_load_dwordx2 s[54:55], s[0:1], {ARG['x']}")
    g("s_and_b32 s41, s2, 7\ns_lshr_b32 s42, s2, 3")
    g("s_lshl_b32 s48, s41, 1\ns_lshr_b32 s50, s42, 3\ns_add_u32 s48, s48, s50\ns_and_b32 s49, s42, 7")
    c = Core(g, MF=4, nh=1, SUBS=2, act_first=False, wpitch=D * 2)
    c.setup()
    g(f"s_mul_i32 s50, s48, {112*8192}\ns_lshl_b32 s51, s49, 8\ns_sub_u32 s52, {F*D*2 + 4096}, s51")
    g("s_waitcnt lgkmcnt(0)")
    srd_dyn(g, 8, 6, 7, "s50", 112 * 8192, H)
    srd_dyn(g, 12, 44, 45, "s51", "s52", -4096)
    g(f"s_mov_b32 s{c.sAoff}, 0\ns_mov_b32 s{c.sWoff}, 0")
    c.prologue()
    c.loop(56, "k2_loop")
    k2_epilogue(g, c, o)
    g.label(done)
    g("s_endpgm")
    g.kd("k2_kernel", 256 + 128, 96, 256)
    return f"; @launch kernel=k2_kernel grid=(128,1,1) block=(256,1,1) lds={c.lds}"


def k2_epilogue(g, c, o):
    T = c.vtop
    PV, QV, XV = T, T + 64, T + 128
    assert XV + 32 <= 256
    g.srd(16, 6, 7, 1025 * PQ_PITCH, PP)
    g.srd(24, 6, 7, 1025 * PQ_PITCH, QQ)
    g.srd(28, 54, 55, S * D * 2)
    g.srd(20, 46, 47, S * D * 2)
    g("v_and_b32 v2, 15, v1\ns_lshl_b32 s50, s48, 7\ns_lshl_b32 s51, s37, 6\ns_add_u32 s50, s50, s51\nv_add_u32 v2, s50, v2")
    g("v_lshrrev_b32 v3, 4, v1\nv_lshlrev_b32 v3, 2, v3\ns_lshl_b32 s50, s49, 7\ns_lshl_b32 s51, s38, 6\ns_add_u32 s50, s50, s51\nv_add_u32 v3, s50, v3")
    g("v_lshlrev_b32 v4, 11, v2\nv_lshl_add_u32 v4, v3, 1, v4")
    g("v_sub_u32 v5, 2000, v2\ns_cmp_ge_u32 s48, 8\ns_cselect_b64 s[56:57], -1, 0\nv_cndmask_b32 v5, v2, v5, s[56:57]")
    g("v_sub_u32 v6, 973, v3\ns_cmp_ge_u32 s49, 4\ns_cselect_b64 s[58:59], -1, 0\nv_cndmask_b32 v6, v3, v6, s[58:59]")
    g(f"v_mul_u32_u24 v5, {PQ_PITCH}, v5\nv_lshl_add_u32 v5, v6, 2, v5")
    st = 16 * PQ_PITCH
    g(f"s_mov_b32 s68, {st}\ns_mov_b32 s69, {2*st}\ns_cmp_ge_u32 s48, 8")
    g(f"s_cselect_b32 s60, {3*st}, 0\ns_cselect_b32 s61, s69, s68\ns_cselect_b32 s62, s68, s69\ns_cselect_b32 s63, 0, {3*st}")
    g("s_xor_b32 s56, s56, s58\ns_cmp_lg_u32 s56, 0\ns_cselect_b32 s56, 1.0, -1.0")
    for i in range(4):
        g(f"s_mov_b32 s{64+i}, {i*32768}")
    for rev in (0, 1):
        lab = f"k2_ep{rev}"
        if rev == 0:
            g("s_cmp_ge_u32 s49, 4\ns_cbranch_scc1 k2_ep1")
        else:
            g.label(lab)
        for i in range(4):
            for j in range(4):
                t = (i * 4 + j)
                off = (3 - j) * 64 if rev else j * 64
                g(f"buffer_load_dwordx4 v[{PV+4*t}:{PV+4*t+3}], v5, s[16:19], s{60+i} offen offset:{off}")
                g(f"buffer_load_dwordx4 v[{QV+4*t}:{QV+4*t+3}], v5, s[24:27], s{60+i} offen offset:{off}")
                g(f"buffer_load_dwordx2 v[{XV+2*t}:{XV+2*t+1}], v4, s[28:31], s{64+i} offen offset:{j*32}")
        g("s_mov_b32 s57, 0xbfb8aa3b\ns_mov_b32 s58, 0xffff0000")
        for i in range(4):
            for j in range(4):
                t = i * 4 + j
                r = c.acc[j, i][1]
                g(f"s_waitcnt vmcnt({min(63, 3 * (15 - t) + t)})")
                for x in range(4):
                    g(f"v_mul_f32 v{8+x}, s57, v{r+x}")
                for x in range(4):
                    g(f"v_exp_f32 v{8+x}, v{8+x}")
                for x in range(4):
                    px = 3 - x if rev else x
                    g(f"v_fma_f32 v{12+x}, v{QV+4*t+px}, s56, v{PV+4*t+px}")
                for x in range(4):
                    g(f"v_add_f32 v{8+x}, 1.0, v{8+x}")
                for x in range(4):
                    g(f"v_rcp_f32 v{8+x}, v{8+x}")
                g(f"v_lshlrev_b32 v16, 16, v{XV+2*t}\nv_and_b32 v17, s58, v{XV+2*t}\nv_lshlrev_b32 v18, 16, v{XV+2*t+1}\nv_and_b32 v19, s58, v{XV+2*t+1}")
                for x in range(4):
                    g(f"v_mul_f32 v{8+x}, v{8+x}, v{r+x}")
                for x in range(4):
                    g(f"v_fmac_f32 v{16+x}, v{8+x}, v{12+x}")
                g(f"v_cvt_pk_bf16_f32 v{XV+2*t}, v16, v17\nv_cvt_pk_bf16_f32 v{XV+2*t+1}, v18, v19")
                g(f"buffer_store_dwordx2 v[{XV+2*t}:{XV+2*t+1}], v4, s[20:23], s{64+i} offen offset:{j*32}")
        g("s_endpgm")


HEADER = open("recurrent_scan__spectral_fnet__glu_gated_bilinear__prompt.s.ref").read().split("\n")


def build(o=None):
    o = o or {}
    g = G()
    launches = [k0(g, o), k1(g, o), k2(g, o)]
    n = o.get("nk", 3)
    head = [l for l in HEADER[:13]]
    txt = "\n".join(head + launches[:n]) + '\n.amdgcn_target "amdgcn-amd-amdhsa--gfx950"\n.text\n'
    txt += "\n".join(g.L) + '\n.section .rodata,"a"\n' + "\n".join(g.kds) + "\n"
    return txt


if __name__ == "__main__":
    out = sys.argv[1] if len(sys.argv) > 1 else "recurrent_scan__spectral_fnet__glu_gated_bilinear__prompt.s"
    o = eval(sys.argv[2]) if len(sys.argv) > 2 else {}
    open(out, "w").write(build(o))
```

```python
import sys

S, D, F = 2048, 1024, 3584
XN   = 0x0000000
H    = 0x0400000
XEE  = 0x1200000
XEEX = 0x1300000
XOO  = 0x1400000
AET  = 0x1500000
BOT  = 0x1600000
PP   = 0x1700000
QQ   = 0x1900000
REC  = 0x1D00000
C2   = 0x1D09000
RP   = 0x1D0A000
FLG  = 0x1E00000
PART = 0x2000000
STAMP = 0x3000000
PQ_PITCH = 1152
NAME = "recurrent_scan__spectral_fnet__glu_gated_bilinear__prompt_kernel"
PX, PSR, PSI, PHR, PHI, PWG, PWU, PWD, POUT, PDBG, PWS = 64, 66, 68, 70, 72, 76, 78, 80, 82, 84, 86
LDS_AUX = 0x20000
LDS_TOTAL = 0x28000
VST = 31
ASC = ' sc1'


class G:
    def __init__(s):
        s.L = []
        s.kds = []
        s.uid = 0

    def __call__(s, txt):
        for ln in txt.split("\n"):
            ln = ln.strip()
            if ln:
                s.L.append("  " + ln)

    def label(s, n):
        s.L.append(n + ":")

    def newlabel(s, p="L"):
        s.uid += 1
        return f"{p}_{s.uid}"

    def begin(s, name):
        s.L.append(f".globl {name}\n.p2align 8\n.type {name},@function\n{name}:")

    def kd(s, name, vgpr, sgpr, accum):
        s.kds.append(f""".p2align 6
.amdhsa_kernel {name}
  .amdhsa_next_free_vgpr {vgpr}
  .amdhsa_next_free_sgpr {sgpr}
  .amdhsa_accum_offset {accum}
  .amdhsa_group_segment_fixed_size 0
  .amdhsa_kernarg_size 96
  .amdhsa_user_sgpr_count 2
  .amdhsa_user_sgpr_kernarg_segment_ptr 1
  .amdhsa_system_sgpr_workgroup_id_x 1
.end_amdhsa_kernel""")

    def srd(s, d, ptr, nbytes, const=0, soff=None):
        lo, hi = ptr, ptr + 1
        if soff is not None:
            s(f"s_add_u32 s{d}, s{lo}, {soff}\ns_addc_u32 s{d+1}, s{hi}, 0")
            lo, hi = d, d + 1
        if const > 0:
            s(f"s_add_u32 s{d}, s{lo}, {const:#x}\ns_addc_u32 s{d+1}, s{hi}, 0")
        elif const < 0:
            s(f"s_sub_u32 s{d}, s{lo}, {-const:#x}\ns_subb_u32 s{d+1}, s{hi}, 0")
        elif soff is None:
            s(f"s_mov_b32 s{d}, s{lo}\ns_mov_b32 s{d+1}, s{hi}")
        nb = nbytes if isinstance(nbytes, str) else f"{nbytes:#x}"
        s(f"s_mov_b32 s{d+2}, {nb}\ns_mov_b32 s{d+3}, 0x20000")


def stamp(g, o, idx):
    if o.get("stamp"):
        g(f"s_memtime s[88:89]\ns_waitcnt lgkmcnt(0)\nv_writelane_b32 v{VST}, s88, {idx}")
        if idx == 0:
            g(f"s_memrealtime s[88:89]\ns_waitcnt lgkmcnt(0)\nv_writelane_b32 v{VST}, s88, 14")


def stamp_flush(g, o, idx):
    if not o.get("stamp"):
        return
    lab = g.newlabel("st")
    g("s_waitcnt vmcnt(0)")
    stamp(g, o, idx)
    g(f"s_memrealtime s[88:89]\ns_waitcnt lgkmcnt(0)\nv_writelane_b32 v{VST}, s88, 15")
    g(f"s_cmp_lg_u32 s3, 0\ns_cbranch_scc1 {lab}")
    g.srd(92, PWS, 0x100000, STAMP)
    g("v_lshlrev_b32 v0, 2, v1\ns_lshl_b32 s90, s2, 6\ns_mov_b64 exec, 0xffff")
    g(f"buffer_store_dword v{VST}, v0, s[92:95], s90 offen")
    g.label(lab)


def wave_sum(g, regs):
    steps = ["quad_perm:[1,0,3,2] row_mask:0xf", "quad_perm:[2,3,0,1] row_mask:0xf", "row_half_mirror row_mask:0xf",
             "row_mirror row_mask:0xf", "row_bcast:15 row_mask:0xa", "row_bcast:31 row_mask:0xc"]
    for st in steps:
        g("s_nop 1" if len(regs) == 1 else "s_nop 0")
        for r in regs:
            g(f"v_add_f32_dpp v{r}, v{r}, v{r} {st} bank_mask:0xf")
    g("s_nop 1")


def tag_issue(g):
    lab = g.newlabel("tg")
    g.srd(28, PDBG, 256)
    g(f"v_mov_b32 v18, 0\ns_or_b32 s4, s2, s3\ns_cmp_lg_u32 s4, 0\ns_cbranch_scc1 {lab}")
    g("s_memrealtime s[4:5]\ns_waitcnt lgkmcnt(0)\ns_lshl_b32 s4, s4, 3\ns_or_b32 s4, s4, 0x80000000\nv_mov_b32 v19, s4")
    g("buffer_store_dword v19, v18, s[28:31], 0 offen sc1")
    g.label(lab)


def tag_load(g):
    g("buffer_load_dword v30, v18, s[28:31], 0 offen sc1")


def tag_get(g):
    l0, l1 = g.newlabel("tg"), g.newlabel("tgd")
    g("s_mov_b32 s5, 0x80000\nv_mov_b32 v18, 0")
    g.label(l0)
    g(f"v_readfirstlane_b32 s100, v30\ns_sub_u32 s5, s5, 1\ns_cbranch_scc1 {l1}\ns_cmp_lg_u32 s100, 0\ns_cbranch_scc1 {l1}")
    g(f"s_sleep 1\nbuffer_load_dword v30, v18, s[28:31], 0 offen sc1\ns_waitcnt vmcnt(0)\ns_branch {l0}")
    g.label(l1)
    g.srd(28, PWS, 0x8000, FLG)


def publish(g, val, first=False, younger=0):
    lab = g.newlabel("pub")
    if first:
        l2 = g.newlabel("pubw")
        g(f"s_cmp_eq_u32 s3, 3\ns_cbranch_scc1 {l2}\ns_waitcnt vmcnt(0)")
        g.label(l2)
        tag_get(g)
    else:
        g(f"s_waitcnt vmcnt({younger})")
    g("s_barrier")
    g(f"s_cmp_lg_u32 s3, 0\ns_cbranch_scc1 {lab}")
    g(f"s_lshl_b32 s4, s43, 7\ns_add_u32 s5, s100, {val}\nv_mov_b32 v18, s4\nv_mov_b32 v19, s5\ns_mov_b64 exec, 1")
    g("buffer_store_dword v19, v18, s[28:31], 0 offen sc1\ns_mov_b64 exec, -1")
    g.label(lab)


def flag_bad(g, vals):
    for k, (vf, thr) in enumerate(vals):
        g(f"v_subrev_u32 v{vf}, s100, v{vf}\nv_subrev_u32 v{vf}, {thr}, v{vf}")
        if k:
            g(f"v_max_u32 v{vals[0][0]}, v{vals[0][0]}, v{vf}")
    g(f"v_cmp_lt_u32 vcc, 7, v{vals[0][0]}")


def poll(g, addrs, sleep=1):
    l0, l1 = g.newlabel("poll"), g.newlabel("polld")
    g(f"s_cmp_lg_u32 s3, 0\ns_cbranch_scc1 {l1}\ns_mov_b32 s5, 0x80000")
    g.label(l0)
    for k, (va, thr) in enumerate(addrs):
        g(f"buffer_load_dword v{18+k}, v{va}, s[28:31], 0 offen sc1")
    g("s_waitcnt vmcnt(0)")
    flag_bad(g, [(18 + k, thr) for k, (va, thr) in enumerate(addrs)])
    g(f"s_sub_u32 s5, s5, 1\ns_cbranch_scc1 {l1}")
    g(f"s_cbranch_vccz {l1}\ns_sleep {sleep}\ns_branch {l0}")
    g.label(l1)
    g("s_barrier")


XP, EP = 2064, 1040
LN_EB = LDS_AUX + 8 * XP
LN_OB = LN_EB + 5 * EP
LN_RB = LN_OB + 4 * EP


def ln_loads(g):
    g("v_lshlrev_b32 v32, 4, v1\nv_sub_u32 v33, 0x7f0, v32")
    g("s_lshl_b32 s44, s43, 2\ns_add_u32 s44, s44, s3")
    g("s_sub_u32 s45, 2048, s44\ns_cmp_eq_u32 s44, 0\ns_cselect_b32 s45, 1024, s45")
    g("s_lshl_b32 s46, s44, 11\ns_lshl_b32 s47, s45, 11")
    g.srd(20, PX, S * D * 2)
    g("buffer_load_dwordx4 v[40:43], v32, s[20:23], s46 offen\nbuffer_load_dwordx4 v[44:47], v33, s[20:23], s46 offen")
    g("buffer_load_dwordx4 v[48:51], v32, s[20:23], s47 offen\nbuffer_load_dwordx4 v[52:55], v33, s[20:23], s47 offen")


def ln_body(g0, o, younger, pfx, fill, warm):
    fill = list(fill)

    class Spr:
        n = 0
        on = False

        def __call__(s, txt):
            for ln in txt.split("\n"):
                g0(ln)
                if s.on and ln.strip().startswith("v_") and "dpp" not in ln and "readlane" not in ln and "v_cmp" not in ln:
                    s.n += 1
                    if s.n % 10 == 0 and fill:
                        for ins in fill.pop(0):
                            g0("s_nop 0" if ins == "@" else ins)

        def __getattr__(s, k):
            return getattr(g0, k)
    g = Spr()
    XA, XB = 56, 72
    g.srd(24, PWS, 0x2000000)
    g("s_mov_b32 s48, 0xffff0000")
    g(f"s_waitcnt vmcnt({younger + 2})")
    stamp(g, o, 1)
    for i in range(8):
        g(f"v_lshlrev_b32 v{XA+2*i}, 16, v{40+i}\nv_and_b32 v{XA+2*i+1}, s48, v{40+i}")
    g("s_waitcnt vmcnt(0)")
    if warm:
        g(f"s_cmp_lg_u32 s3, 3\ns_cbranch_scc1 {pfx}_nowarm")
        warm()
        g.label(pfx + "_nowarm")
    g.on = True
    for i in range(8):
        g(f"v_lshlrev_b32 v{XB+2*i}, 16, v{48+i}\nv_and_b32 v{XB+2*i+1}, s48, v{48+i}")
    MA, MB, VA, VB = 88, 92, 96, 100
    for X, T in ((XA, MA), (XB, MB)):
        g(f"v_pk_add_f32 v[{T}:{T+1}], v[{X}:{X+1}], v[{X+2}:{X+3}]")
        g(f"v_pk_add_f32 v[{T+2}:{T+3}], v[{X+4}:{X+5}], v[{X+6}:{X+7}]")
        for i in (8, 12):
            g(f"v_pk_add_f32 v[{T}:{T+1}], v[{T}:{T+1}], v[{X+i}:{X+i+1}]")
            g(f"v_pk_add_f32 v[{T+2}:{T+3}], v[{T+2}:{T+3}], v[{X+i+2}:{X+i+3}]")
        g(f"v_pk_add_f32 v[{T}:{T+1}], v[{T}:{T+1}], v[{T+2}:{T+3}]")
        g(f"v_add_f32 v{T}, v{T}, v{T+1}")
    wave_sum(g, [MA, MB])
    g(f"v_readlane_b32 s50, v{MA}, 63\nv_readlane_b32 s51, v{MB}, 63\nv_mov_b32 v34, 0x3a800000\ns_nop 0")
    g(f"v_mul_f32 v{MA}, s50, v34\nv_mul_f32 v{MB}, s51, v34\nv_mov_b32 v{MA+1}, v{MA}\nv_mov_b32 v{MB+1}, v{MB}")
    for T in (VA, VB):
        g(f"v_mov_b32 v{T}, 0\nv_mov_b32 v{T+1}, 0")
    for i in range(0, 16, 2):
        for X, M, T in ((XA, MA, VA), (XB, MB, VB)):
            g(f"v_pk_add_f32 v[{T+2}:{T+3}], v[{X+i}:{X+i+1}], v[{M}:{M+1}] neg_lo:[0,1] neg_hi:[0,1]")
        for X, M, T in ((XA, MA, VA), (XB, MB, VB)):
            g(f"v_pk_fma_f32 v[{T}:{T+1}], v[{T+2}:{T+3}], v[{T+2}:{T+3}], v[{T}:{T+1}]")
    g(f"v_add_f32 v{VA}, v{VA}, v{VA+1}\nv_add_f32 v{VB}, v{VB}, v{VB+1}")
    wave_sum(g, [VA, VB])
    g(f"v_readlane_b32 s50, v{VA}, 63\nv_readlane_b32 s51, v{VB}, 63")
    g(f"v_cvt_pk_bf16_f32 v{MA+2}, v{MA}, v{MB}\ns_nop 0")
    g(f"v_mul_f32 v{VA}, s50, v34\nv_mul_f32 v{VB}, s51, v34")
    g(f"v_lshlrev_b32 v{MA}, 16, v{MA+2}\nv_and_b32 v{MB}, s48, v{MA+2}")
    g(f"v_cvt_pk_bf16_f32 v{VA+1}, v{VA}, v{VB}")
    g(f"v_mov_b32 v{MA+1}, v{MA}\nv_mov_b32 v{MB+1}, v{MB}")
    g(f"v_lshlrev_b32 v{VA}, 16, v{VA+1}\nv_and_b32 v{VB}, s48, v{VA+1}")
    g(f"v_add_f32 v{VA}, 0x3727c5ac, v{VA}\nv_add_f32 v{VB}, 0x3727c5ac, v{VB}")
    g(f"v_cvt_pk_bf16_f32 v{VA+1}, v{VA}, v{VB}")
    g(f"v_lshlrev_b32 v{VA}, 16, v{VA+1}\nv_and_b32 v{VB}, s48, v{VA+1}")
    g(f"v_sqrt_f32 v{VA}, v{VA}\nv_sqrt_f32 v{VB}, v{VB}")
    for X, M, PKD in ((XA, MA, 40), (XB, MB, 48)):
        for i in range(8):
            a = X + 2 * i
            g(f"v_pk_add_f32 v[{a}:{a+1}], v[{a}:{a+1}], v[{M}:{M+1}] neg_lo:[0,1] neg_hi:[0,1]")
    g(f"v_cvt_pk_bf16_f32 v{VA+1}, v{VA}, v{VB}")
    g(f"v_lshlrev_b32 v{VA}, 16, v{VA+1}\nv_and_b32 v{VB}, s48, v{VA+1}")
    g(f"v_rcp_f32 v{VA}, v{VA}\nv_rcp_f32 v{VB}, v{VB}")
    for X, PKD in ((XA, 40), (XB, 48)):
        for i in range(8):
            g(f"v_cvt_pk_bf16_f32 v{PKD+i}, v{X+2*i}, v{X+2*i+1}")
    g(f"v_mov_b32 v{VA+1}, v{VA}\nv_mov_b32 v{VB+1}, v{VB}")
    for X, R, PKD in ((XA, VA, 40), (XB, VB, 48)):
        for i in range(8):
            a = X + 2 * i
            g(f"v_lshlrev_b32 v{a}, 16, v{PKD+i}\nv_and_b32 v{a+1}, s48, v{PKD+i}")
        for i in range(8):
            a = X + 2 * i
            g(f"v_pk_mul_f32 v[{a}:{a+1}], v[{a}:{a+1}], v[{R}:{R+1}]")
        for i in range(8):
            g(f"v_cvt_pk_bf16_f32 v{PKD+i}, v{X+2*i}, v{X+2*i+1}")
    g.on = False
    assert not fill
    g(f"s_mul_i32 s49, s3, {XP}\ns_add_u32 s49, s49, {LDS_AUX}")
    g("v_add_u32 v35, s49, v32\nv_add_u32 v36, s49, v33")
    g("ds_write_b128 v35, v[40:43]\nds_write_b128 v36, v[44:47]")
    g(f"ds_write_b128 v35, v[48:51] offset:{4*XP}\nds_write_b128 v36, v[52:55] offset:{4*XP}")
    for X, PKD in ((XA, 40), (XB, 48)):
        for i in range(8):
            a = X + 2 * i
            g(f"v_lshlrev_b32 v{a}, 16, v{PKD+i}\nv_and_b32 v{a+1}, s48, v{PKD+i}")
    g(f"s_mul_i32 s49, s3, {EP}\ns_add_u32 s49, s49, {LN_EB}\nv_add_u32 v37, s49, v32")
    E, O, PK, TM = 104, 120, 136, 140

    def dfold(src, sign):
        op = "v_add_f32" if sign > 0 else "v_sub_f32"
        g(f"s_nop 1\nv_mov_b32_dpp v{TM+8}, v{src+8} wave_shr:1 row_mask:0xf bank_mask:0xf bound_ctrl:0")
        for j in range(1, 8):
            g(f"{op} v{TM+j}, v{src+j}, v{src+16-j}")
        g(f"{op} v{TM}, v{src}, v{TM+8}")
        for j in range(4):
            g(f"v_cvt_pk_bf16_f32 v{PK+j}, v{TM+2*j}, v{TM+2*j+1}")

    def even_row(src, lds_off, own):
        dfold(src, +1)
        g(f"ds_write_b128 v37, v[{PK}:{PK+3}] offset:{lds_off}")
        g(f"v_pk_add_f32 v[{TM}:{TM+1}], v[{src}:{src+1}], v[{src+2}:{src+3}]")
        for i in range(4, 16, 2):
            g(f"v_pk_add_f32 v[{TM}:{TM+1}], v[{TM}:{TM+1}], v[{src+i}:{src+i+1}]")
        g(f"v_sub_f32 v{TM}, v{TM}, v{TM+1}")
        wave_sum(g, [TM])
        g("s_mov_b32 exec_lo, 0\ns_mov_b32 exec_hi, 0x80000000")
        if own:
            g(f"s_lshl_b32 s50, s3, 2\ns_add_u32 s50, s50, {LN_RB}\nv_mov_b32 v{TM+2}, s50")
            g(f"ds_write_b32 v{TM+2}, v{src+8}\nds_write_b32 v{TM+2}, v{TM} offset:16")
        else:
            g(f"v_mov_b32 v{TM+2}, 0\ns_mov_b32 s50, {REC + 256*128:#x}")
            g(f"buffer_store_dword v{src+8}, v{TM+2}, s[24:27], s50 offen sc1\nbuffer_store_dword v{TM}, v{TM+2}, s[24:27], s50 offen offset:16 sc1")
        g("s_mov_b64 exec, -1")

    lz, lj, ld = pfx + "_pair0", pfx + "_join", pfx + "_lnd"
    g(f"s_cmp_eq_u32 s44, 0\ns_cbranch_scc1 {lz}")
    for i in range(0, 16, 2):
        g(f"v_pk_add_f32 v[{O+i}:{O+i+1}], v[{XA+i}:{XA+i+1}], v[{XB+i}:{XB+i+1}] neg_lo:[0,1] neg_hi:[0,1]")
    for i in range(0, 16, 2):
        g(f"v_pk_add_f32 v[{E+i}:{E+i+1}], v[{XA+i}:{XA+i+1}], v[{XB+i}:{XB+i+1}]")
    dfold(O, -1)
    g(f"ds_write_b128 v37, v[{PK}:{PK+3}] offset:{LN_OB - LN_EB}")
    even_row(E, 0, True)
    g(f"s_branch {lj}")
    g.label(lz)
    even_row(XA, 0, True)
    even_row(XB, 4 * EP, False)
    for j in range(4):
        g(f"v_mov_b32 v{PK+j}, 0")
    g(f"ds_write_b128 v37, v[{PK}:{PK+3}] offset:{LN_OB - LN_EB}")
    g.label(lj)
    g("v_and_b32 v40, 3, v1\nv_lshrrev_b32 v41, 2, v1\ns_lshl_b32 s49, s43, 2")
    g("v_add_u32 v42, s49, v40")
    g("v_sub_u32 v43, 0x800, v42\nv_cmp_eq_u32 vcc, 0, v42\nv_mov_b32 v44, 0x400\ns_cmp_eq_u32 s3, 1\nv_cndmask_b32 v43, v43, v44, vcc")
    g("s_cselect_b64 s[50:51], -1, 0\nv_cndmask_b32 v42, v42, v43, s[50:51]")
    g(f"s_cselect_b32 s49, {LDS_AUX + 4*XP}, {LDS_AUX}" if False else f"s_mov_b32 s49, {LDS_AUX}\ns_cselect_b32 s49, {LDS_AUX + 4*XP}, s49")
    g(f"s_mov_b32 s50, 19\ns_mov_b32 s51, {XP}\ns_mov_b32 s52, 1024\ns_mov_b32 s53, 0x40000\ns_cmp_eq_u32 s3, 2")
    g(f"s_cselect_b32 s49, {LN_EB}, s49\ns_cselect_b32 s50, 18, s50\ns_cselect_b32 s51, {EP}, s51\ns_cselect_b32 s52, {LN_OB - LN_EB}, s52")
    g(f"s_cselect_b32 s53, {XOO:#x}, s53\ns_cselect_b32 s48, {XEE:#x}, 0")
    g("v_lshrrev_b32 v45, 8, v42\nv_lshlrev_b32 v46, s50, v45")
    g("v_bfe_u32 v45, v42, 4, 4\nv_lshl_add_u32 v46, v45, 10, v46\nv_and_b32 v45, 15, v42\nv_lshl_add_u32 v46, v45, 4, v46")
    g("v_lshrrev_b32 v49, 2, v41\nv_and_b32 v50, 3, v41")
    g("v_lshl_add_u32 v46, v49, 14, v46\nv_lshl_add_u32 v46, v50, 8, v46")
    g("v_mul_lo_u32 v53, v40, s51\nv_lshl_add_u32 v53, v49, 6, v53\nv_lshl_add_u32 v53, v50, 3, v53\nv_add_u32 v53, s49, v53\nv_add_u32 v54, s52, v53")
    g("s_waitcnt lgkmcnt(0)\ns_barrier")
    stamp(g, o, 2)
    g(f"s_cmp_eq_u32 s3, 3\ns_cbranch_scc1 {ld}")
    for n in range(8):
        g(f"ds_read2_b64 v[{56+4*n}:{59+4*n}], v{53 + (n >> 2)} offset0:{(n&3)*32} offset1:{(n&3)*32+4}")
    for n in range(8):
        sr = 48 if n < 4 else 53
        g(f"s_waitcnt lgkmcnt({7-n})\nbuffer_store_dwordx4 v[{56+4*n}:{59+4*n}], v46, s[24:27], s{sr} offen sc1\ns_add_u32 s{sr}, s{sr}, 0x10000")
    g(f"s_cmp_lg_u32 s3, 2\ns_cbranch_scc1 {ld}")
    g(f"v_lshlrev_b32 v51, 2, v1\nv_add_u32 v52, {LN_RB}, v51\ns_lshl_b32 s52, s43, 7\ns_add_u32 s52, s52, {REC:#x}\ns_mov_b64 exec, 0xff")
    g("ds_read_b32 v90, v52\ns_waitcnt lgkmcnt(0)\nbuffer_store_dword v90, v51, s[24:27], s52 offen sc1\ns_mov_b64 exec, -1")
    g(f"s_cmp_lg_u32 s43, 0\ns_cbranch_scc1 {ld}")
    g("v_lshrrev_b32 v49, 2, v1\nv_and_b32 v50, 3, v1\nv_lshlrev_b32 v51, 4, v1")
    g("v_lshlrev_b32 v52, 6, v49\nv_lshl_add_u32 v52, v50, 3, v52")
    g(f"v_add_u32 v52, {LN_EB + 4*EP}, v52")
    g("ds_read2_b64 v[92:95], v52 offset0:0 offset1:4")
    g(f"s_mov_b32 s52, {XEEX:#x}")
    g("s_waitcnt lgkmcnt(0)\nbuffer_store_dwordx4 v[92:95], v51, s[24:27], s52 offen sc1")
    g.label(ld)


class Core:
    NS = 4

    def __init__(s, g, MF, nh, SUBS, act_first, wpitch, xblocks=0, span=0.85, wsrd=12, vW=13, sW=(33, 35), tch=False, dact=False):
        s.g, s.MF, s.nh, s.SUBS, s.act_first, s.wpitch = g, MF, nh, SUBS, act_first, wpitch
        s.dact = dact
        s.NF = (8 if dact else 4) * nh
        s.nA = MF if dact else MF // 2
        s.gact = (4 if dact else 2) * MF * 1024
        s.actb = 0 if dact else s.gact
        s.subb = s.actb + nh * 8192
        s.slotb = s.subb * SUBS
        s.ringb = s.slotb * s.NS
        s.xb = xblocks
        s.xbase = s.ringb
        assert s.ringb + xblocks * 1024 <= LDS_AUX
        s.pA, s.pW = s.nA * SUBS, 2 * nh * SUBS
        s.tch = tch
        s.ndma = s.pA + s.pW + (1 if tch else 0)
        s.span = span
        s.acc = {}
        v, a = 32, 128
        order = [(j, i) for i in range(MF) for j in range(s.NF)] if dact else [(j, i) for j in range(s.NF) for i in range(MF)]
        for j, i in order:
            if True:
                if v + 4 <= 256:
                    s.acc[j, i] = ("v", v); v += 4
                else:
                    s.acc[j, i] = ("a", a); a += 4
        if s.xb:
            s.accx = v; v += 4
        s.vtop = v
        s.nfr = (0 if dact else MF) + s.NF + (2 if s.xb else 0)
        s.fper = s.nfr * 4 * SUBS
        assert 2 * s.fper <= 128
        s.vArd = [2, 3]
        s.vWrd = [[4, 5, 6, 7], [8, 9, 10, 11]]
        s.vAdma = 12
        s.vWdma = [vW + k for k in range(2 * nh)]
        s.vX, s.vXW = 17, (22, 23)
        s.wsrd = wsrd
        s.sAoff, s.sMA, s.sCnt = 32, 34, 36
        s.sWoff, s.sMW = sW

    def accr(s, j, i):
        k, r = s.acc[j, i]
        return f"{k}[{r}:{r+3}]"

    def fr(s, st, u, n):
        return st * s.fper + u * s.nfr * 4 + n * 4

    def fw(s, st, u, j):
        return s.fr(st, u, (0 if s.dact else s.MF) + j)

    def fa(s, p, u, i):
        if s.dact:
            return 128 + ((p & 3) * s.SUBS + u) * s.MF * 4 + i * 4
        return s.fr(p & 1, u, i)

    def setup_w(s):
        g = s.g
        g(f"s_mul_i32 s{s.sMW}, s3, {s.nh*2048}\ns_add_u32 s{s.sMW}, s{s.sMW}, {s.actb}\ns_mov_b32 s{s.sWoff}, 0")
        g("v_lshrrev_b32 v19, 4, v1\nv_and_b32 v20, 15, v1")
        g(f"s_mov_b32 s40, {s.wpitch}\ns_mul_i32 s39, s3, {8*s.wpitch}")
        for u in range(2):
            g(f"v_add_u32 v21, {4*u}, v19")
            g("v_mul_lo_u32 v18, v21, s40\nv_add_u32 v18, s39, v18")
            g("v_lshlrev_b32 v21, 1, v21\nv_xor_b32 v21, v21, v20\nv_lshl_add_u32 v18, v21, 4, v18")
            for h in range(s.nh):
                g(f"v_add_u32 v{s.vWdma[2*h+u]}, {4096 - (2*h+u)*1024}, v18")

    def setup_r(s, xsel=None):
        g = s.g
        g("v_lshlrev_b32 v18, 4, v1")
        if s.dact:
            assert s.ringb <= 65536 and s.nh == 1
            g(f"s_mul_i32 s39, s3, {s.nA*1024}\nv_add_u32 v18, s39, v18\ns_mov_b32 s{s.sAoff}, 0")
            for i in range(4):
                g(f"s_add_u32 s39, s58, {i}\ns_and_b32 s39, s39, 3\ns_lshl_b32 s39, s39, 10\nv_add_u32 v{12+i}, s39, v18")
            g("v_bfe_u32 v19, v1, 2, 3\nv_lshrrev_b32 v20, 5, v1\nv_lshlrev_b32 v20, 11, v20\nv_lshl_add_u32 v20, v19, 8, v20")
            g("v_and_b32 v21, 3, v1\nv_lshl_add_u32 v20, v21, 3, v20\nv_lshl_add_u32 v20, v19, 5, v20")
            for j in range(8):
                g(f"v_xor_b32 v{4+j}, {32*j}, v20")
            return
        g(f"s_mul_i32 s39, s37, {s.MF*1024}\nv_add_u32 v{s.vArd[0]}, s39, v18\nv_add_u32 v{s.vArd[1]}, {2*s.slotb}, v{s.vArd[0]}")
        g(f"s_mul_i32 s{s.sMA}, s3, {s.nA*1024}\nv_add_u32 v{s.vAdma}, s{s.sMA}, v18\ns_mov_b32 s{s.sAoff}, 0")
        if s.xb:
            g(f"v_add_u32 v{s.vX}, {s.xbase}, v18")
        g("v_bfe_u32 v19, v1, 2, 3")
        g(f"v_lshrrev_b32 v20, 5, v1\nv_mul_u32_u24 v20, {s.nh*2048}, v20\nv_lshl_add_u32 v20, v19, 8, v20")
        g(f"v_and_b32 v21, 3, v1\nv_lshl_add_u32 v20, v21, 3, v20\nv_add_u32 v20, {s.actb}, v20")
        g("s_lshl_b32 s39, s38, 2")
        for jj in range(4):
            g(f"s_add_u32 s40, s39, {jj}\nv_xor_b32 v21, s40, v19")
            g(f"v_lshl_add_u32 v{s.vWrd[0][jj]}, v21, 5, v20\nv_add_u32 v{s.vWrd[1][jj]}, {2*s.slotb}, v{s.vWrd[0][jj]}")
        if s.xb:
            g(f"s_and_b32 s40, {xsel}, 3\ns_add_u32 s40, s40, s39\nv_xor_b32 v21, s40, v19\nv_lshl_add_u32 v{s.vXW[0]}, v21, 5, v20")
            g(f"s_lshr_b32 s40, {xsel}, 2\ns_lshl_b32 s40, s40, 11\nv_add_u32 v{s.vXW[0]}, s40, v{s.vXW[0]}")
            g(f"v_add_u32 v{s.vXW[1]}, {2*s.slotb}, v{s.vXW[0]}")

    def dma_a(s, slot):
        it = []
        for u in range(s.SUBS):
            if s.dact:
                for i in range(s.MF):
                    r = s.fa(slot, u, i)
                    it.append([f"buffer_load_dwordx4 a[{r}:{r+3}], v{12+i}, s[8:11], s{s.sAoff} offen{ASC}"])
                it[-1].append(f"s_add_u32 s{s.sAoff}, s{s.sAoff}, {s.gact}")
                continue
            first = [f"s_add_u32 m0, s{s.sMA}, {slot * s.slotb + u * s.subb}", "@"]
            for i in range(s.nA):
                it.append(first + [f"buffer_load_dwordx4 v{s.vAdma}, s[8:11], s{s.sAoff} offen offset:{i*1024}{ASC} lds"])
                first = []
            it[-1].append(f"s_add_u32 s{s.sAoff}, s{s.sAoff}, {s.gact}")
        return it

    def dma_w(s, slot):
        it = []
        for u in range(s.SUBS):
            first = [f"s_add_u32 m0, s{s.sMW}, {slot * s.slotb + u * s.subb}", "@"]
            for h in range(s.nh):
                for uu in range(2):
                    r = s.wsrd + 4 * h
                    it.append(first + [f"buffer_load_dwordx4 v{s.vWdma[2*h+uu]}, s[{r}:{r+3}], s{s.sWoff} offen offset:{(2*h+uu)*1024} lds"])
                    first = []
            it[-1].append(f"s_add_u32 s{s.sWoff}, s{s.sWoff}, {32*s.wpitch}")
        return it

    def touch(s):
        return [["buffer_load_dword v29, v26, s[24:27], 0 offen", "v_add_u32 v26, s62, v26"]] if s.tch else []

    def group(s, p):
        return s.touch() + s.dma_a(p + 3 if s.dact else p) + s.dma_w(p)

    def reads(s, slot, st):
        it = []
        hi = slot >> 1
        for u in range(s.SUBS):
            if s.dact:
                for j in range(s.NF):
                    r = s.fw(st, u, j)
                    for half in range(2):
                        it.append([f"ds_read_b64_tr_b16 a[{r+2*half}:{r+2*half+1}], v{4+j} offset:{slot*s.slotb + u*s.subb + half*4096}"])
                continue
            base = (slot & 1) * s.slotb + u * s.subb
            wl, al = [], []
            for j in range(s.NF):
                h, jj = divmod(j, 4)
                r = s.fr(st, u, s.MF + j)
                for half in range(2):
                    wl.append(f"ds_read_b64_tr_b16 a[{r+2*half}:{r+2*half+1}], v{s.vWrd[hi][jj]} offset:{base + h*2048 + half*2*s.nh*2048}")
            for i in range(s.MF):
                r = s.fr(st, u, i)
                al.append(f"ds_read_b128 a[{r}:{r+3}], v{s.vArd[hi]} offset:{base + i*1024}")
            if s.xb:
                r = s.fr(st, u, s.MF + s.NF)
                al.append(f"ds_read_b128 a[{r}:{r+3}], v{s.vX}")
                for half in range(2):
                    wl.append(f"ds_read_b64_tr_b16 a[{r+4+2*half}:{r+5+2*half}], v{s.vXW[hi]} offset:{base + half*2*s.nh*2048}")
            while wl or al:
                if al: it.append([al.pop(0)])
                if wl: it.append([wl.pop(0)])
                if wl: it.append([wl.pop(0)])
            if s.xb:
                it.append([f"v_add_u32 v{s.vX}, 1024, v{s.vX}"])
        return it

    def mfmas(s, p, zero):
        out = []
        st = p & 1
        for u in range(s.SUBS):
            z = zero and u == 0
            for j in range(s.NF):
                ii = range(s.MF) if j % 2 == 0 else range(s.MF - 1, -1, -1)
                for i in ii:
                    a, w = s.fa(p, u, i), s.fw(st, u, j)
                    A, W = f"a[{a}:{a+3}]", f"a[{w}:{w+3}]"
                    x, y = (A, W) if s.act_first else (W, A)
                    out.append(f"v_mfma_f32_16x16x32_bf16 {s.accr(j,i)}, {x}, {y}, {'0' if z else s.accr(j,i)}")
            if s.xb:
                a = s.fr(st, u, s.MF + s.NF)
                c = f"v[{s.accx}:{s.accx+3}]"
                out.append(f"v_mfma_f32_16x16x32_bf16 {c}, a[{a}:{a+3}], a[{a+4}:{a+7}], {'0' if z else c}")
        return out

    def flat(s, items):
        for grp in items:
            for ins in grp:
                s.g("s_nop 0" if ins == "@" else ins)

    def phase(s, p, vm, dma, rd=True, zero=False, tail=None, pre=None):
        g = s.g
        st = p & 1
        g(f"s_waitcnt vmcnt({vm}) lgkmcnt(0)" if vm is not None else "s_waitcnt lgkmcnt(0)")
        g("s_barrier")
        if pre:
            pre()
        rdl = s.reads((p + 1) % s.NS, st ^ 1) if rd else []
        fill = []
        nr, nd = len(rdl), len(dma)
        ri = di = 0
        while ri < nr or di < nd:
            if di < nd and (ri >= nr or di * nr <= ri * nd):
                fill.append(dma[di]); di += 1
            else:
                fill.append(rdl[ri]); ri += 1
        flat = []
        for grp in fill:
            cur = []
            for ins in grp:
                if ins == "@":
                    flat.append(cur); cur = []
                else:
                    cur.append(ins)
            flat.append(cur)
        mf = s.mfmas(p, zero)
        n = len(mf)
        lim = max(1, int(n * s.span))
        pos = {}
        for idx, grp in enumerate(flat):
            pos.setdefault(min(n - 2, idx * lim // len(flat)), []).append(grp)
        for k, m in enumerate(mf):
            g(m)
            grps = pos.get(k, [])
            for gi, grp in enumerate(grps):
                if gi and grps[gi-1] and grps[gi-1][-1].startswith("s_add_u32 m0"):
                    g("s_nop 0")
                for ins in grp:
                    g(ins)
            if tail and k == n - 2:
                g(tail)

    def start(s, nT=0, touch=None):
        g = s.g
        if s.dact:
            for slot in range(3):
                s.flat(s.dma_a(slot))
            g(f"s_waitcnt vmcnt({3*s.pA})\ns_barrier")
            s.flat(s.reads(0, 0))
            vms = [2 * s.pA, s.pA + s.ndma, 2 * s.ndma, 2 * s.ndma]
            for p in range(4):
                s.phase(p, vms[p], s.group(p), zero=(p == 0))
            return
        for slot in range(s.NS):
            s.flat(s.dma_a(slot))
        if touch:
            touch()
        g(f"s_waitcnt vmcnt({3*s.pA + nT}) lgkmcnt(0)\ns_barrier")
        s.flat(s.reads(0, 0))
        vms = [2 * s.pA + nT, s.pA + nT + s.ndma, nT + 2 * s.ndma, 2 * s.ndma]
        for p in range(4):
            s.phase(p, vms[p], s.group(p), zero=(p == 0))

    def loop(s, cnt, name, head=None):
        g = s.g
        g(f"s_mov_b32 s{s.sCnt}, {cnt}")
        g.label(name)
        if head:
            head()
        for p in range(4):
            s.phase(p, 2 * s.ndma, s.group(p),
                    tail=(f"s_sub_u32 s{s.sCnt}, s{s.sCnt}, 1\ns_cmp_lg_u32 s{s.sCnt}, 0" if p == 3 else None))
        g(f"s_cbranch_scc1 {name}")

    def last(s, fills=None, pres=None):
        fills = fills or [[], [], [], []]
        pres = pres or [None] * 4
        cnt = lambda f: sum(1 for grp in f for ins in grp if ins.startswith("buffer_"))
        if s.dact:
            fills = [s.dma_a(3) + fills[0]] + list(fills[1:])
        n = [cnt(f) for f in fills]
        vms = [2 * s.ndma, s.ndma + n[0], n[0] + n[1], (n[0] - s.pA + n[1] + n[2]) if s.dact else None]
        for p in range(4):
            s.phase(p, vms[p], fills[p], rd=(p < 3), pre=pres[p])


def accv(g, core, j, i, tmp):
    k, r = core.acc[j, i]
    if k == "v":
        return r
    for x in range(4):
        g(f"v_accvgpr_read_b32 v{tmp+x}, a{r+x}")
    return tmp


def warm_lines(g, ptr, nbytes, first, rl, pitch, n, step):
    g.srd(8, ptr, nbytes)
    g(f"v_add_u32 v26, {first}, v1\nv_lshrrev_b32 v27, {rl}, v26\nv_lshlrev_b32 v28, {rl}, v27\nv_sub_u32 v26, v26, v28")
    g(f"s_mov_b32 s4, {pitch}\nv_mul_lo_u32 v27, v27, s4\nv_lshl_add_u32 v26, v26, 7, v27")
    for k in range(n):
        g("buffer_load_dword v29, v26, s[8:11], 0 offen")
        if k + 1 < n:
            g(f"v_add_u32 v26, {(step >> rl) * pitch}, v26")


def cnt_vm(items):
    return sum(1 for grp in items for ins in grp if ins.startswith("buffer_"))


def k2_ids(g, o):
    g("s_and_b32 s56, s41, 1\ns_lshl_b32 s56, s56, 2\ns_and_b32 s57, s42, 3\ns_add_u32 s56, s56, s57\ns_lshr_b32 s57, s42, 2\ns_lshr_b32 s58, s41, 1")
    c2 = Core(g, MF=4, nh=1, SUBS=1, act_first=False, wpitch=D * 2, wsrd=20, vW=24, sW=(59, 60), span=o.get("span2", 0.9), dact=True)
    c2.setup_w()
    g(f"s_mul_i32 s59, s58, {896 * D * 2}")
    g(f"s_lshl_b32 s44, s57, 8\ns_sub_u32 s45, {F*D*2 + 4096}, s44")
    g.srd(20, PWD, "s45", -4096, "s44")
    return c2


def main_kernel(g, o):
    g.begin(NAME)
    g("s_cmp_ge_u32 s2, 256\ns_cbranch_scc1 L_done")
    g("s_load_dwordx16 s[64:79], s[0:1], 0\ns_load_dwordx8 s[80:87], s[0:1], 64")
    g("v_lshrrev_b32 v2, 6, v0\nv_and_b32 v1, 63, v0\ns_nop 0\nv_readfirstlane_b32 s3, v2")
    if o.get("stamp"):
        g(f"v_mov_b32 v{VST}, 0")
    stamp(g, o, 0)
    g("s_and_b32 s41, s2, 7\ns_lshr_b32 s42, s2, 3\ns_lshr_b32 s37, s3, 1\ns_and_b32 s38, s3, 1")
    g("s_cmp_lt_u32 s42, 4\ns_cbranch_scc1 L_fft")

    g("s_sub_u32 s44, s42, 4")
    g("s_and_b32 s54, s41, 1\ns_lshl_b32 s54, s54, 2\ns_and_b32 s45, s44, 3\ns_add_u32 s54, s54, s45")
    g("s_lshr_b32 s55, s41, 1\ns_mul_i32 s55, s55, 7\ns_lshr_b32 s45, s44, 2\ns_add_u32 s55, s55, s45")
    g("s_mul_i32 s43, s54, 28\ns_add_u32 s43, s43, s55")
    c1 = Core(g, MF=8, nh=2, SUBS=1, act_first=False, wpitch=F * 2, span=o.get("span1", 0.85), tch=o.get("pf", 1))
    c1.setup_w()
    g("s_waitcnt lgkmcnt(0)")
    tag_issue(g)
    ln_loads(g)
    tag_load(g)
    g(f"s_lshl_b32 s46, s55, 8\ns_sub_u32 s47, {D*F*2 + 4096}, s46")
    g.srd(12, PWG, "s47", -4096, "s46")
    g.srd(16, PWU, "s47", -4096, "s46")
    nW, nC = o.get("nW", 0), o.get("nC", 0)

    def warm_g():
        g(f"s_cmp_ge_u32 s43, 112\ns_cselect_b32 s62, s{PWU}, s{PWG}\ns_cselect_b32 s63, s{PWU+1}, s{PWG+1}\ns_cselect_b32 s61, 112, 0\ns_sub_u32 s61, s43, s61")
        g(f"s_lshl_b32 s61, s61, 6\ns_add_u32 s61, s61, {128*56}")
        warm_lines(g, 62, D * F * 2, "s61", 0, 128, nW, 7168)
        if not nC:
            return
        g(f"s_bitcmp1_b32 s43, 0\ns_cselect_b32 s62, s{PSI}, s{PSR}\ns_cselect_b32 s63, s{PSI+1}, s{PSR+1}\ns_lshr_b32 s61, s43, 1\ns_lshl_b32 s61, s61, 6")
        warm_lines(g, 62, 1024 * 4096, "s61", 4, 4096, nC, 7168)
    pf = o.get("pf", 1)
    ln_body(g, o, 1, "g", sum((c1.dma_w(slot) for slot in range(4)), []), warm_g if (nW or nC) else None)
    c1.setup_r()
    g("s_sub_u32 s46, 7, s54\ns_cmp_lt_u32 s54, 4\ns_cselect_b32 s46, s54, s46\ns_lshl_b32 s46, s46, 13")
    g("v_lshl_add_u32 v22, v1, 7, s46\ns_add_u32 s46, s46, 0x2000\ns_and_b32 s46, s46, 0x7fff\nv_mov_b32 v23, s46")
    publish(g, 1, True, 16)
    stamp(g, o, 3)
    poll(g, [(22, 1), (23, 1)])
    stamp(g, o, 4)
    g("s_lshl_b32 s46, s54, 19")
    g.srd(8, PWS, 0x80000, XN, "s46")
    g(f"s_cmp_ge_u32 s43, 112\ns_cselect_b32 s96, s{PWU}, s{PWG}\ns_cselect_b32 s97, s{PWU+1}, s{PWG+1}\ns_cselect_b32 s46, 112, 0\ns_sub_u32 s46, s43, s46")
    g(f"s_bitcmp1_b32 s43, 0\ns_cselect_b32 s98, s{PSI}, s{PSR}\ns_cselect_b32 s99, s{PSI+1}, s{PSR+1}")
    g("v_lshrrev_b32 v18, 3, v1\nv_min_u32 v18, 1, v18\nv_lshlrev_b32 v18, 31, v18\ns_lshl_b32 s47, s3, 3\nv_add_u32 v19, s47, v1")
    g("s_lshl_b32 s46, s46, 5\nv_add_u32 v20, s46, v19\nv_lshl_or_b32 v22, v20, 7, v18")
    g("s_lshl_b32 s46, s43, 5\nv_add_u32 v20, s46, v19\nv_lshl_or_b32 v23, v20, 7, v18")
    g("s_lshr_b32 s46, s43, 1\ns_lshl_b32 s46, s46, 5\nv_add_u32 v20, s46, v19\nv_and_b32 v21, 15, v20\nv_lshrrev_b32 v20, 4, v20")
    g("v_lshlrev_b32 v20, 12, v20\nv_lshl_add_u32 v20, v21, 7, v20\nv_or_b32 v27, v20, v18")
    plan = {0: (96, D*F*2, 22, 256*F*2, 64*F*2), 1: (98, 1024*4096, 27, 0, 224*4096), 2: (96, D*F*2, 22, 512*F*2, 64*F*2),
            3: (96, D*F*2, 22, 768*F*2, 64*F*2), 4: (PWD, F*D*2, 23, 0, 7168*128), 6: (98, 1024*4096, 27, 896*4096, 224*4096)}
    plan = o.get("plan", plan)

    def region(it):
        ptr, nb, va, off, step = plan[it]
        g.srd(24, ptr, nb)
        g(f"s_mov_b32 s62, {step}\nv_add_u32 v26, {off}, v{va}")
    region(0)
    c1.start()

    def switch():
        done = g.newlabel("sw")
        for it in sorted(plan):
            if it:
                lab = g.newlabel("sw")
                g(f"s_cmp_lg_u32 s{c1.sCnt}, {7 - it}\ns_cbranch_scc1 {lab}")
                region(it)
                g(f"s_branch {done}")
                g.label(lab)
        g.label(done)
    c1.loop(6, "L_g1", switch if pf else None)
    c2 = k2_ids(g, o)
    c1.last([c2.dma_w(p) for p in range(4)])
    stamp(g, o, 5)
    g.srd(24, PWS, S * F * 2, H)
    g(f"s_mul_i32 s50, s54, {112*16384}\ns_lshl_b32 s51, s37, 13\ns_add_u32 s50, s50, s51")
    g("s_lshl_b32 s51, s55, 2\ns_lshl_b32 s52, s38, 1\ns_add_u32 s51, s51, s52\ns_lshl_b32 s51, s51, 14")
    g("s_add_u32 s50, s50, s51\ns_add_u32 s51, s50, 0x4000")
    g("v_lshlrev_b32 v2, 4, v1\nv_add_u32 v3, 0x1000, v2\ns_nop 7")
    k = 0
    for kbl in range(2):
        for i in range(8):
            o4 = 4 + 4 * (k & 1); k += 1
            for jj in range(2):
                j = 2 * kbl + jj
                gr = accv(g, c1, j, i, 12)
                ur = accv(g, c1, 4 + j, i, 16)
                g(f"v_pk_mul_f32 v[{gr}:{gr+1}], v[{gr}:{gr+1}], v[{ur}:{ur+1}]")
                g(f"v_pk_mul_f32 v[{gr+2}:{gr+3}], v[{gr+2}:{gr+3}], v[{ur+2}:{ur+3}]")
                g(f"v_cvt_pk_bf16_f32 v{o4+2*jj}, v{gr}, v{gr+1}\nv_cvt_pk_bf16_f32 v{o4+2*jj+1}, v{gr+2}, v{gr+3}")
            g(f"buffer_store_dwordx4 v[{o4}:{o4+3}], v{2 + (i >> 2)}, s[24:27], s{50+kbl} offen offset:{(i&3)*1024} sc1")
    c2.setup_r()
    publish(g, 2)
    stamp(g, o, 6)
    g("s_branch L_k2")

    g.label("L_fft")
    g("s_and_b32 s54, s41, 1\ns_lshr_b32 s55, s41, 1")
    g("s_lshl_b32 s43, s41, 2\ns_add_u32 s43, s43, s42\ns_add_u32 s43, s43, 224")
    f1 = Core(g, MF=8, nh=1, SUBS=1, act_first=True, wpitch=D * 2, xblocks=16)
    f1.setup_w()
    g("s_waitcnt lgkmcnt(0)")
    tag_issue(g)
    ln_loads(g)
    tag_load(g)
    g("s_cmp_eq_u32 s54, 0")
    g(f"s_cselect_b32 s96, s{PHR}, s{PHI}\ns_cselect_b32 s97, s{PHR+1}, s{PHI+1}\ns_cselect_b32 s98, s{PSR}, s{PSI}\ns_cselect_b32 s99, s{PSR+1}, s{PSI+1}")
    g(f"s_lshl_b32 s46, s55, 8\ns_sub_u32 s47, {512*2048 + 4096}, s46")
    g.srd(12, 96, "s47", -4096, "s46")

    def warm_f():
        g(f"s_lshl_b32 s61, s55, 2\ns_add_u32 s61, s61, s42\ns_lshl_b32 s61, s61, 6\ns_add_u32 s62, s61, {128*8}\ns_add_u32 s61, s61, 14336")
        warm_lines(g, 96, 512 * 2048, "s62", 3, 2048, 3, 1024)
        if nC:
            warm_lines(g, 98, 1024 * 4096, "s61", 4, 4096, nC, 1024)
    ln_body(g, o, 1, "f", sum((f1.dma_w(slot) for slot in range(4)), []), warm_f if pf else None)
    g("s_lshl_b32 s63, s42, 1\ns_add_u32 s63, s63, s37\ns_and_b32 s63, s63, 3")
    f1.setup_r("s63")
    g("s_lshl_b32 s46, s42, 13\nv_lshl_add_u32 v24, v1, 7, s46\nv_mov_b32 v25, 0")
    publish(g, 1, True, 8)
    stamp(g, o, 3)
    poll(g, [(24, 1), (25, 1)])
    stamp(g, o, 4)
    g(f"s_mul_i32 s46, s54, {XOO - XEE}\ns_lshl_b32 s47, s42, 18\ns_add_u32 s46, s46, s47")
    g.srd(8, PWS, 0x40000, XEE, "s46")
    g.srd(16, PWS, 1024, XEEX)
    g("v_lshlrev_b32 v24, 4, v1\nbuffer_load_dwordx4 v[40:43], v24, s[16:19], 0 offen sc1")

    def t2():
        g(f"v_lshlrev_b32 v24, 8, v1\nv_add_u32 v24, {f1.xbase}, v24\ns_waitcnt vmcnt({4 * f1.pA})\nds_write_b128 v24, v[40:43]")
    f1.start(0, t2)
    f1.loop(2, "L_f1")
    g("s_lshl_b32 s62, s42, 1\ns_add_u32 s62, s62, s37")
    f2 = Core(g, MF=4, nh=2, SUBS=1, act_first=True, wpitch=S * 2, xblocks=32, wsrd=16, vW=24, sW=(59, 60))
    f2.setup_w()
    g(f"s_lshl_b32 s46, s42, 9\ns_sub_u32 s47, {1024*4096 + 4096}, s46")
    g.srd(16, 98, "s47", -4096, "s46")
    g("s_sub_u32 s47, s47, 256")
    g.srd(20, 98, "s47", -4096 + 256, "s46")
    g("s_cmp_eq_u32 s54, 0\ns_cselect_b32 s47, 0x10000, 0")
    g.srd(24, PWS, "s47", REC)
    T = f1.vtop
    g("v_lshrrev_b32 v28, 4, v1\nv_lshlrev_b32 v28, 7, v28")
    g("s_lshl_b32 s50, s42, 13\ns_lshl_b32 s51, s37, 12\ns_add_u32 s50, s50, s51\ns_mov_b32 s51, 0x8000")
    lc1 = [[f"buffer_load_dwordx4 v[{T+4*i}:{T+4*i+3}], v28, s[24:27], s50 offen offset:{i*512} sc1"] for i in range(8)]
    lc1.append([f"buffer_load_dword v{T+32}, v28, s[24:27], s51 offen sc1"])
    f1.last([f2.dma_w(0) + lc1, f2.dma_w(1), f2.dma_w(2), f2.dma_w(3)])
    stamp(g, o, 5)
    g(f"s_waitcnt vmcnt({3 * f2.pW})")
    g("v_and_b32 v3, 1, v1\nv_lshlrev_b32 v3, 31, v3\nv_or_b32 v3, 1.0, v3")
    g(f"s_mul_i32 s46, s54, {BOT - AET}\ns_lshl_b32 s47, s55, 18\ns_add_u32 s46, s46, s47")
    g.srd(8, PWS, 0x40000, AET, "s46")
    g("s_lshl_b32 s50, s42, 16\ns_lshl_b32 s51, s37, 15\ns_add_u32 s50, s50, s51\ns_lshl_b32 s51, s38, 12\ns_add_u32 s50, s50, s51")
    g("v_lshlrev_b32 v2, 4, v1\ns_nop 4")
    k = 0
    for ip in range(4):
        for j in range(4):
            o4 = 4 + 4 * (k & 1); k += 1
            for ii in range(2):
                i = 2 * ip + ii
                r = f1.acc[j, i][1]
                for x in range(4):
                    g(f"v_fmac_f32 v{r+x}, v{T+4*i+x}, v3")
                g(f"v_cvt_pk_bf16_f32 v{o4+2*ii}, v{r}, v{r+1}\nv_cvt_pk_bf16_f32 v{o4+2*ii+1}, v{r+2}, v{r+3}")
            g(f"buffer_store_dwordx4 v[{o4}:{o4+3}], v2, s[8:11], s50 offen offset:{j*1024} sc1")
        g("s_add_u32 s50, s50, 0x2000")
    g("v_and_b32 v2, 15, v1\nv_lshlrev_b32 v2, 2, v2")
    g("s_lshl_b32 s50, s62, 11\ns_lshl_b32 s51, s55, 9\ns_add_u32 s50, s50, s51")
    g(f"s_lshl_b32 s52, s38, 8\ns_add_u32 s50, s50, s52\ns_add_u32 s50, s50, {RP - REC}")
    U = T + 36
    for j in range(4):
        r0 = f1.acc[j, 0][1]
        g(f"v_pk_add_f32 v[{U}:{U+1}], v[{r0}:{r0+1}], v[{r0+2}:{r0+3}]")
        for i in range(1, 8):
            r = f1.acc[j, i][1]
            g(f"v_pk_add_f32 v[{U}:{U+1}], v[{U}:{U+1}], v[{r}:{r+1}]\nv_pk_add_f32 v[{U}:{U+1}], v[{U}:{U+1}], v[{r+2}:{r+3}]")
        g(f"v_sub_f32 v{U+4+j}, v{U}, v{U+1}")
        g(f"v_mov_b32 v{U+2}, v{U+4+j}\ns_nop 1\nv_permlane32_swap_b32 v{U+4+j}, v{U+2}\ns_nop 1\nv_add_f32 v{U+4+j}, v{U+4+j}, v{U+2}")
        g(f"v_mov_b32 v{U+2}, v{U+4+j}\ns_nop 1\nv_permlane16_swap_b32 v{U+4+j}, v{U+2}\ns_nop 1\nv_add_f32 v{U+4+j}, v{U+4+j}, v{U+2}")
        g(f"buffer_store_dword v{U+4+j}, v2, s[24:27], s50 offen offset:{j*64} sc1")
    g("s_cmp_ge_u32 s62, 4\ns_cbranch_scc1 L_f1_noc2")
    g(f"v_fmac_f32 v{f1.accx}, v{T+32}, v3")
    g(f"s_add_u32 s50, s51, s52\ns_lshl_b32 s52, s62, 6\ns_add_u32 s50, s50, s52\ns_add_u32 s50, s50, {C2 - REC}")
    g(f"s_mov_b64 exec, 0xffff\nbuffer_store_dword v{f1.accx}, v2, s[24:27], s50 offen sc1\ns_mov_b64 exec, -1")
    g.label("L_f1_noc2")
    g("s_lshl_b32 s62, s55, 1\ns_add_u32 s62, s62, s37")
    f2.setup_r("s62")
    g("s_and_b32 s46, s43, 0xfc\nv_and_b32 v28, 3, v1\nv_add_u32 v28, s46, v28\nv_lshlrev_b32 v28, 7, v28")
    publish(g, 2)
    stamp(g, o, 6)
    poll(g, [(28, 2)])
    stamp(g, o, 7)
    g("s_lshl_b32 s46, s3, 13\nv_lshl_add_u32 v28, v1, 7, s46\nbuffer_load_dwordx4 v[40:43], v28, s[24:27], 0 offen offset:16 sc1")

    def x2():
        g("v_lshrrev_b32 v28, 3, v1\nv_lshlrev_b32 v28, 10, v28\nv_and_b32 v29, 3, v1\nv_lshl_add_u32 v28, v29, 8, v28")
        g(f"v_bfe_u32 v29, v1, 2, 1\nv_lshl_add_u32 v28, v29, 3, v28\ns_add_u32 s46, s46, {f2.xbase}\nv_add_u32 v28, s46, v28")
        g(f"s_waitcnt vmcnt({4 * f2.pA})\nv_cvt_pk_bf16_f32 v40, v40, v41\nv_cvt_pk_bf16_f32 v41, v42, v43\nds_write_b64 v28, v[40:41]")
    f2.start(0, x2)
    f2.loop(6, "L_f2")
    T = f2.vtop
    g("v_lshrrev_b32 v28, 4, v1\nv_lshlrev_b32 v28, 4, v28")
    g(f"s_lshl_b32 s50, s55, 9\ns_lshl_b32 s51, s37, 8\ns_add_u32 s50, s50, s51\ns_add_u32 s50, s50, {C2 - REC}\ns_mov_b32 s51, {0x8000 + 16}")
    lc2 = [[f"buffer_load_dwordx4 v[{T+4*i}:{T+4*i+3}], v28, s[24:27], s50 offen offset:{i*64} sc1"] for i in range(4)]
    lc2.append([f"buffer_load_dword v{T+16}, v28, s[24:27], s51 offen sc1"])
    f2.last([lc2, [], [], []])
    stamp(g, o, 8)
    c2 = k2_ids(g, o)
    g("s_barrier")
    for slot in range(4):
        c2.flat(c2.dma_w(slot))
    g(f"s_waitcnt vmcnt({4 * c2.pW})")
    g("v_and_b32 v3, 1, v1\nv_lshlrev_b32 v3, 31, v3\nv_or_b32 v3, 1.0, v3")
    g(f"s_mul_i32 s46, s54, {QQ - PP}")
    g.srd(8, PWS, 1025 * PQ_PITCH, PP, "s46")
    g(f"s_lshl_b32 s46, s3, 13\ns_add_u32 s46, s46, {LDS_AUX}")
    g("v_and_b32 v4, 15, v1\nv_and_b32 v5, 7, v1\nv_lshrrev_b32 v6, 5, v1\nv_bfe_u32 v7, v1, 4, 1")
    g("v_lshlrev_b32 v8, 7, v4\nv_lshl_add_u32 v8, v7, 3, v8\nv_add_u32 v8, s46, v8")
    for i in range(4):
        g(f"v_add_u32 v9, {2*i}, v6\nv_xor_b32 v9, v9, v5\nv_lshl_add_u32 v{10+i}, v9, 4, v8")
    g("v_lshrrev_b32 v6, 3, v1\nv_xor_b32 v9, v6, v5\nv_lshlrev_b32 v14, 7, v6\nv_lshl_add_u32 v14, v9, 4, v14\nv_add_u32 v14, s46, v14")
    g(f"v_mul_u32_u24 v15, {PQ_PITCH}, v6\nv_lshl_add_u32 v15, v5, 4, v15")
    g(f"s_lshl_b32 s50, s42, 8\ns_lshl_b32 s51, s38, 6\ns_add_u32 s50, s50, s51\ns_mul_i32 s52, s50, {PQ_PITCH}")
    g("s_lshl_b32 s50, s55, 8\ns_lshl_b32 s51, s37, 7\ns_add_u32 s50, s50, s51\ns_add_u32 s50, s50, s52")
    B = T + 20
    for h in range(2):
        for jj in range(4):
            for i in range(4):
                r = f2.acc[4 * h + jj, i][1]
                for x in range(4):
                    g(f"v_fmac_f32 v{r+x}, v{T+4*i+x}, v3")
                g(f"v_cvt_pk_bf16_f32 v{r}, v{r}, v{r+1}\nv_cvt_pk_bf16_f32 v{r+1}, v{r+2}, v{r+3}")
                g(f"ds_write_b64 v{10+i}, v[{r}:{r+1}] offset:{jj*2048}")
        g("s_waitcnt lgkmcnt(0)")
        for n in range(8):
            g(f"ds_read_b128 v[{B+4*n}:{B+4*n+3}], v14 offset:{n*1024}")
        for n in range(8):
            g(f"s_add_u32 s51, s50, {(h*128 + n*8) * PQ_PITCH}\ns_waitcnt lgkmcnt({7-n})")
            g(f"buffer_store_dwordx4 v[{B+4*n}:{B+4*n+3}], v15, s[8:11], s51 offen sc1")
    g(f"v_fmac_f32 v{f2.accx}, v{T+16}, v3\ns_cmp_eq_u32 s54, 0\ns_cselect_b32 s46, -1, 0")
    g(f"v_cvt_pk_bf16_f32 v16, v{f2.accx}, v{f2.accx}\nv_and_b32 v16, s46, v16\nv_mul_u32_u24 v17, {PQ_PITCH}, v4")
    g(f"s_lshr_b32 s46, s62, 2\ns_lshl_b32 s46, s46, 7\ns_and_b32 s47, s62, 3\ns_lshl_b32 s47, s47, 4\ns_add_u32 s46, s46, s47")
    g(f"s_mul_i32 s46, s46, {PQ_PITCH}\ns_add_u32 s46, s46, s52")
    g("s_mov_b64 exec, 0xffff\nbuffer_store_short v16, v17, s[8:11], s46 offen offset:1024 sc1\ns_mov_b64 exec, -1")
    g("s_cmp_lg_u32 s42, 0\ns_cbranch_scc1 L_f2_done\ns_cmp_ge_u32 s3, 2\ns_cbranch_scc1 L_f2_corner")
    g("v_lshlrev_b32 v2, 2, v0\ns_lshl_b32 s50, s55, 9\nv_add_u32 v2, s50, v2")
    for k in range(4):
        g(f"s_mov_b32 s51, {RP - REC + 4096 * k}")
        g(f"buffer_load_dword v{4+2*k}, v2, s[24:27], s51 offen sc1\nbuffer_load_dword v{5+2*k}, v2, s[24:27], s51 offen offset:2048 sc1")
    g(f"s_mov_b32 s51, {C2 - REC}\nbuffer_load_dword v12, v2, s[24:27], s51 offen sc1\ns_waitcnt vmcnt(0)")
    for k in range(8):
        g(f"v_add_f32 v12, v12, v{4+k}")
    g(f"v_cvt_pk_bf16_f32 v12, v12, v12\nv_lshrrev_b32 v2, 1, v2\ns_mov_b32 s51, {1024 * PQ_PITCH}")
    g("buffer_store_short v12, v2, s[8:11], s51 offen sc1\ns_branch L_f2_done")
    g.label("L_f2_corner")
    g("s_cmp_lg_u32 s3, 2\ns_cbranch_scc1 L_f2_done\ns_cmp_lg_u32 s55, 0\ns_cbranch_scc1 L_f2_done")
    g("v_lshlrev_b32 v2, 7, v1")
    for k in range(4):
        g(f"s_mov_b32 s51, {k * 0x2000}\nbuffer_load_dwordx4 v[{4+4*k}:{7+4*k}], v2, s[24:27], s51 offen offset:16 sc1")
    g("s_waitcnt vmcnt(0)")
    g("v_pk_add_f32 v[4:5], v[4:5], v[6:7]")
    for k in range(8, 20, 2):
        g(f"v_pk_add_f32 v[4:5], v[4:5], v[{k}:{k+1}]")
    g("v_sub_f32 v4, v4, v5")
    wave_sum(g, [4])
    g(f"v_readlane_b32 s50, v4, 63\ns_mov_b32 s51, {1024 * PQ_PITCH + 1024}\ns_nop 0\nv_add_f32 v4, s50, v{T+16}\nv_cvt_pk_bf16_f32 v4, v4, v4\nv_mov_b32 v2, 0")
    g("s_mov_b64 exec, 1\nbuffer_store_short v4, v2, s[8:11], s51 offen sc1\ns_mov_b64 exec, -1")
    g.label("L_f2_done")
    c2.setup_r()
    publish(g, 3)
    stamp(g, o, 9)

    g.label("L_k2")
    g(f"s_mul_i32 s44, s56, {112*16384}\ns_mul_i32 s45, s58, {28*16384}\ns_add_u32 s44, s44, s45")
    g.srd(8, PWS, 28 * 16384, H, "s44")
    g("s_mul_i32 s44, s56, 28\ns_mul_i32 s45, s58, 7\ns_add_u32 s44, s44, s45")
    g("v_min_u32 v22, 6, v1\nv_add_u32 v22, s44, v22\nv_lshlrev_b32 v22, 7, v22")
    XS, PS = 160, 164

    def tile_src(dst, pitch, mirror):
        g("v_lshrrev_b32 v18, 4, v1\nv_and_b32 v19, 15, v1")
        for n in range(4):
            g(f"v_add_u32 v20, {4*n}, v18\nv_xor_b32 v21, v20, v19")
            if mirror:
                g(f"v_sub_u32 v{dst+n}, 15, v20\nv_cndmask_b32 v20, v20, v{dst+n}, {mirror}")
            g(f"v_mul_u32_u24 v20, {pitch}, v20\nv_lshl_add_u32 v20, v21, 4, v20\nv_add_u32 v{dst+n}, {4096 - n*1024}, v20")

    def tile_dma(srd, va, off, sc):
        g(f"s_add_u32 m0, s55, {off}\ns_nop 0")
        for n in range(4):
            g(f"buffer_load_dwordx4 v{va+n}, s[{srd}:{srd+3}], 0 offen offset:{n*1024}{sc} lds")
    g("s_mul_i32 s55, s3, 12288\ns_add_u32 s55, s55, 0x8000")
    g("s_lshl_b32 s54, s56, 8\ns_lshl_b32 s44, s3, 6\ns_add_u32 s54, s54, s44\ns_lshl_b32 s44, s58, 4\ns_add_u32 s54, s54, s44")
    tile_src(XS, 2048, None)
    g(f"s_lshl_b32 s61, s54, 11\ns_lshl_b32 s45, s57, 8\ns_add_u32 s61, s61, s45\ns_sub_u32 s45, {S*D*2 + 4096}, s61")
    g.srd(12, PX, "s45", -4096, "s61")
    tile_dma(12, XS, 0, "")
    poll(g, [(22, 2)])
    stamp(g, o, 10)
    c2.start()
    c2.loop(5, "L_k2_loop")
    stamp(g, o, 13)
    g("s_cmp_ge_u32 s56, 4\ns_cselect_b64 s[62:63], -1, 0")
    tile_src(PS, PQ_PITCH, "s[62:63]")
    g("s_sub_u32 s45, 2033, s54\ns_cmp_ge_u32 s56, 4\ns_cselect_b32 s44, s45, s54")
    g(f"s_mul_i32 s44, s44, {PQ_PITCH}\ns_lshl_b32 s45, s57, 8\ns_sub_u32 s48, 1794, s45\ns_cmp_ge_u32 s57, 4\ns_cselect_b32 s45, s48, s45")
    g(f"s_cselect_b32 s48, 248, 0\ns_cselect_b32 s49, -1, 0\ns_add_u32 s44, s44, s45\ns_sub_u32 s45, {1025*PQ_PITCH + 4096}, s44")
    g.srd(12, PWS, "s45", PP - 4096, "s44")
    g.srd(16, PWS, "s45", QQ - 4096, "s44")
    g("s_xor_b32 s62, s62, s49\ns_cmp_lg_u32 s62, 0\ns_cselect_b32 s62, 1.0, -1.0\ns_mov_b32 s63, s62")
    AX, AP, RB, GO = 168, 176, 184, 188
    g("v_and_b32 v18, 15, v1\nv_lshrrev_b32 v19, 5, v1\nv_xor_b32 v19, v19, v18")
    g("v_lshlrev_b32 v19, 4, v19\nv_lshl_add_u32 v19, v18, 8, v19\nv_bfe_u32 v20, v1, 4, 1\nv_lshl_add_u32 v19, v20, 3, v19")
    for j in range(8):
        g(f"v_xor_b32 v20, {32*j}, v19\nv_add_u32 v{AX+j}, s55, v20\nv_xor_b32 v20, s48, v20\nv_add_u32 v{AP+j}, s55, v20")
    g("v_lshrrev_b32 v18, 4, v1\nv_and_b32 v19, 15, v1")
    for n in range(4):
        g(f"v_add_u32 v21, {4*n}, v18\nv_xor_b32 v20, v21, v19\nv_lshlrev_b32 v20, 4, v20\nv_lshl_add_u32 v20, v21, 8, v20\nv_add_u32 v{RB+n}, s55, v20")
    g(f"v_lshlrev_b32 v{GO}, 11, v18\nv_lshl_add_u32 v{GO}, v19, 4, v{GO}")
    g(f"s_lshl_b32 s44, s56, 3\ns_add_u32 s44, s44, s57\ns_mul_i32 s44, s44, {4*49152}\ns_lshl_b32 s45, s3, 12\ns_add_u32 s44, s44, s45")
    g.srd(24, PWS, 4 * 49152, PART, "s44")
    for i in range(1, 4):
        g(f"s_add_u32 s{49+i}, s58, {i}\ns_and_b32 s{49+i}, s{49+i}, 3\ns_mul_i32 s{49+i}, s{49+i}, 49152\ns_add_u32 s{49+i}, s{49+i}, {(i-1)*16384}")
    g("s_mul_i32 s53, s58, 49152\nv_lshlrev_b32 v29, 4, v1")
    g("v_and_b32 v22, 31, v1\nv_add_u32 v22, 224, v22\nv_lshlrev_b32 v22, 7, v22")
    g("s_cmp_lt_u32 s42, 4\ns_cselect_b32 s44, 8, 7\nv_min_u32 v23, 2, v1\nv_add_u32 v23, 1, v23\nv_add_u32 v23, s58, v23\nv_and_b32 v23, 3, v23")
    g("s_mul_i32 s45, s58, s44\ns_sub_u32 s45, s43, s45\nv_mul_u32_u24 v23, s44, v23\nv_add_u32 v23, s45, v23\nv_lshlrev_b32 v23, 7, v23")
    g("s_lshl_b32 s44, s3, 2\ns_add_u32 s44, s44, 16\nv_add_u32 v23, s44, v23\ns_lshl_b32 s45, s43, 7\ns_add_u32 s44, s44, s45\nv_mov_b32 v27, s44")
    c2.last([[], [["buffer_load_dword v30, v22, s[28:31], 0 offen sc1"]], [], []])
    stamp(g, o, 11)
    g("s_nop 7")
    for i in range(1, 4):
        for k in range(4):
            d = 192 + 4 * ((4 * i + k) & 3)
            for jj in range(2):
                r = c2.acc[2 * k + jj, i][1]
                g(f"v_cvt_pk_bf16_f32 v{d+2*jj}, v{r}, v{r+1}\nv_cvt_pk_bf16_f32 v{d+2*jj+1}, v{r+2}, v{r+3}")
            g(f"buffer_store_dwordx4 v[{d}:{d+3}], v29, s[24:27], s{49+i} offen offset:{k*1024} sc1")
    g("s_add_u32 s44, s100, 7\nv_mov_b32 v28, s44\ns_mov_b32 s5, 0x80000\ns_waitcnt vmcnt(0)")
    g("s_mov_b64 exec, 1\nbuffer_store_dword v28, v27, s[28:31], 0 offen sc1\ns_mov_b64 exec, -1")
    stamp(g, o, 7)

    def spin(va, thr, first_loaded):
        l0, l1, l2 = g.newlabel("sp"), g.newlabel("spd"), g.newlabel("spc")
        if first_loaded:
            g(f"s_branch {l2}")
        g.label(l0)
        g(f"buffer_load_dword v30, v{va}, s[28:31], 0 offen sc1\ns_waitcnt vmcnt(0)")
        g.label(l2)
        flag_bad(g, [(30, thr)])
        g(f"s_sub_u32 s5, s5, 1\ns_cbranch_scc1 {l1}\ns_cbranch_vccnz {l0}")
        g.label(l1)
    spin(22, 3, True)
    tile_dma(12, PS, 4096, " sc1")
    tile_dma(16, PS, 8192, " sc1")
    g("buffer_load_dword v30, v23, s[28:31], 0 offen sc1")
    g.srd(20, POUT, S * D * 2)
    g("s_mov_b32 s44, 0xbfb8aa3b\ns_mov_b32 s45, 0xbfb8aa3b\ns_mov_b32 s54, 0xffff0000\ns_mov_b32 s46, 1.0\ns_mov_b32 s47, 1.0")
    g("s_mov_b32 s48, 0x3f80\ns_mov_b32 s49, 0x3f800000")
    Y, XF, PT, RD = 64, 96, 192, 128
    g("s_waitcnt vmcnt(1)")
    for j in range(8):
        g(f"ds_read_b64 v[{RD+4*j}:{RD+4*j+1}], v{AP+j} offset:4096\nds_read_b64 v[{RD+4*j+2}:{RD+4*j+3}], v{AP+j} offset:8192")
    g("s_cmp_ge_u32 s57, 4\ns_cbranch_scc1 L_k2_rev")
    for rev in (0, 1):
        if rev:
            g("s_branch L_k2_y")
            g.label("L_k2_rev")
        for j in range(8):
            g(f"s_waitcnt lgkmcnt({14 - 2*j})")
            for src, dst in ((RD + 4 * j, Y + 4 * j), (RD + 4 * j + 2, 4)):
                for x in range(4):
                    d = dst + (3 - x if rev else x)
                    w = src + (x >> 1)
                    g(f"v_and_b32 v{d}, s54, v{w}" if x & 1 else f"v_lshlrev_b32 v{d}, 16, v{w}")
            y = Y + 4 * j
            g(f"v_pk_fma_f32 v[{y}:{y+1}], v[4:5], s[62:63], v[{y}:{y+1}]\nv_pk_fma_f32 v[{y+2}:{y+3}], v[6:7], s[62:63], v[{y+2}:{y+3}]")
    g.label("L_k2_y")
    for j in range(8):
        g(f"ds_read_b64 v[{RD+2*j}:{RD+2*j+1}], v{AX+j}")
    g("s_waitcnt vmcnt(0)")
    spin(23, 7, True)
    stamp(g, o, 8)
    for k in range(4):
        for i in range(3):
            g(f"s_add_u32 s4, s53, {i*16384}\nbuffer_load_dwordx4 v[{PT+16*i+4*k}:{PT+16*i+4*k+3}], v29, s[24:27], s4 offen offset:{k*1024} sc1")
    for j in range(8):
        g(f"s_waitcnt lgkmcnt({7 - j})")
        g(f"v_lshlrev_b32 v{XF+4*j}, 16, v{RD+2*j}\nv_and_b32 v{XF+4*j+1}, s54, v{RD+2*j}\nv_lshlrev_b32 v{XF+4*j+2}, 16, v{RD+2*j+1}\nv_and_b32 v{XF+4*j+3}, s54, v{RD+2*j+1}")
    for j in range(8):
        r = c2.acc[j, 0][1]
        if j % 2 == 0:
            g(f"s_waitcnt vmcnt({9 - 3 * (j >> 1)})")
        for i in range(3):
            w = PT + 16 * i + 2 * j
            for x in range(4):
                g(f"v_dot2c_f32_bf16 v{r+x}, s{48 + (x & 1)}, v{w + (x >> 1)}")
        g(f"s_nop 1\nv_pk_mul_f32 v[4:5], v[{r}:{r+1}], s[44:45]\nv_pk_mul_f32 v[6:7], v[{r+2}:{r+3}], s[44:45]")
        for x in range(4):
            g(f"v_exp_f32 v{4+x}, v{4+x}")
        g("s_nop 0\nv_pk_add_f32 v[4:5], v[4:5], s[46:47]\nv_pk_add_f32 v[6:7], v[6:7], s[46:47]")
        for x in range(4):
            g(f"v_rcp_f32 v{4+x}, v{4+x}")
        y, xf = Y + 4 * j, XF + 4 * j
        g(f"v_pk_mul_f32 v[{y}:{y+1}], v[{y}:{y+1}], v[{r}:{r+1}]\nv_pk_mul_f32 v[{y+2}:{y+3}], v[{y+2}:{y+3}], v[{r+2}:{r+3}]")
        g(f"v_pk_fma_f32 v[{xf}:{xf+1}], v[4:5], v[{y}:{y+1}], v[{xf}:{xf+1}]\nv_pk_fma_f32 v[{xf+2}:{xf+3}], v[6:7], v[{y+2}:{y+3}], v[{xf+2}:{xf+3}]")
        g(f"v_cvt_pk_bf16_f32 v{xf}, v{xf}, v{xf+1}\nv_cvt_pk_bf16_f32 v{xf+1}, v{xf+2}, v{xf+3}")
        g(f"ds_write_b64 v{AX+j}, v[{xf}:{xf+1}]")
    for n in range(4):
        g(f"ds_read_b128 v[{RD+4*n}:{RD+4*n+3}], v{RB+n}")
    for n in range(4):
        g(f"s_add_u32 s4, s61, {n*4*2048}\ns_waitcnt lgkmcnt({3-n})\nbuffer_store_dwordx4 v[{RD+4*n}:{RD+4*n+3}], v{GO}, s[20:23], s4 offen")
    stamp_flush(g, o, 12)
    g.label("L_done")
    g("s_endpgm")
    g.kd(NAME, 256 + 192, 102, 256)


HEADER = open("recurrent_scan__spectral_fnet__glu_gated_bilinear__prompt.s.ref").read().split("\n")


def build(o=None):
    o = dict(o or {})
    global ASC
    ASC = ' sc1' if o.get('asc1', 1) else ''
    g = G()
    main_kernel(g, o)
    if o.get("aslist"):
        launch = f"; @launch kernel={NAME} grid=(256,1,1) block=(256,1,1) lds={LDS_TOTAL}"
    else:
        launch = f"; @launch grid=(256,1,1) block=(256,1,1) lds={LDS_TOTAL}"
    txt = "\n".join(HEADER[:13] + [launch]) + '\n.amdgcn_target "amdgcn-amd-amdhsa--gfx950"\n.text\n'
    txt += "\n".join(g.L) + '\n.section .rodata,"a"\n' + "\n".join(g.kds) + "\n"
    return txt


if __name__ == "__main__":
    out = sys.argv[1] if len(sys.argv) > 1 else "recurrent_scan__spectral_fnet__glu_gated_bilinear__prompt.s"
    o = eval(sys.argv[2]) if len(sys.argv) > 2 else {}
    open(out, "w").write(build(o))
```

```python
import sys

S, D, F = 2048, 1024, 3584
XN   = 0x0000000
H    = 0x0400000
XEE  = 0x1200000
XEEX = 0x1300000
XOO  = 0x1400000
AET  = 0x1500000
BOT  = 0x1600000
PP   = 0x1700000
QQ   = 0x1900000
REC  = 0x1D00000
C2   = 0x1D09000
RP   = 0x1D0A000
FLG  = 0x1E00000
PART = 0x2000000
STAMP = 0x3000000
PQ_PITCH = 1152
NAME = "recurrent_scan__spectral_fnet__glu_gated_bilinear__prompt_kernel"
PX, PSR, PSI, PHR, PHI, PWG, PWU, PWD, POUT, PDBG, PWS = 64, 66, 68, 70, 72, 76, 78, 80, 82, 84, 86
LDS_AUX = 0x20000
LDS_TOTAL = 0x28000
VST = 31
ASC = ' sc1'


class G:
    def __init__(s):
        s.L = []
        s.kds = []
        s.uid = 0

    def __call__(s, txt):
        for ln in txt.split("\n"):
            ln = ln.strip()
            if ln:
                s.L.append("  " + ln)

    def label(s, n):
        s.L.append(n + ":")

    def newlabel(s, p="L"):
        s.uid += 1
        return f"{p}_{s.uid}"

    def begin(s, name):
        s.L.append(f".globl {name}\n.p2align 8\n.type {name},@function\n{name}:")

    def kd(s, name, vgpr, sgpr, accum):
        s.kds.append(f""".p2align 6
.amdhsa_kernel {name}
  .amdhsa_next_free_vgpr {vgpr}
  .amdhsa_next_free_sgpr {sgpr}
  .amdhsa_accum_offset {accum}
  .amdhsa_group_segment_fixed_size 0
  .amdhsa_kernarg_size 96
  .amdhsa_user_sgpr_count 2
  .amdhsa_user_sgpr_kernarg_segment_ptr 1
  .amdhsa_system_sgpr_workgroup_id_x 1
.end_amdhsa_kernel""")

    def srd(s, d, ptr, nbytes, const=0, soff=None):
        lo, hi = ptr, ptr + 1
        if soff is not None:
            s(f"s_add_u32 s{d}, s{lo}, {soff}\ns_addc_u32 s{d+1}, s{hi}, 0")
            lo, hi = d, d + 1
        if const > 0:
            s(f"s_add_u32 s{d}, s{lo}, {const:#x}\ns_addc_u32 s{d+1}, s{hi}, 0")
        elif const < 0:
            s(f"s_sub_u32 s{d}, s{lo}, {-const:#x}\ns_subb_u32 s{d+1}, s{hi}, 0")
        elif soff is None:
            s(f"s_mov_b32 s{d}, s{lo}\ns_mov_b32 s{d+1}, s{hi}")
        nb = nbytes if isinstance(nbytes, str) else f"{nbytes:#x}"
        s(f"s_mov_b32 s{d+2}, {nb}\ns_mov_b32 s{d+3}, 0x20000")


def stamp(g, o, idx):
    if o.get("stamp"):
        g(f"s_memtime s[88:89]\ns_waitcnt lgkmcnt(0)\nv_writelane_b32 v{VST}, s88, {idx}")
        if idx == 0:
            g(f"s_memrealtime s[88:89]\ns_waitcnt lgkmcnt(0)\nv_writelane_b32 v{VST}, s88, 30")


def stamp_flush(g, o, idx):
    if not o.get("stamp"):
        return
    lab = g.newlabel("st")
    g("s_waitcnt vmcnt(0)")
    stamp(g, o, idx)
    g(f"s_memrealtime s[88:89]\ns_waitcnt lgkmcnt(0)\nv_writelane_b32 v{VST}, s88, 31")
    g(f"s_cmp_lg_u32 s3, 0\ns_cbranch_scc1 {lab}")
    g.srd(92, PWS, 0x100000, STAMP)
    g("v_lshlrev_b32 v0, 2, v1\ns_lshl_b32 s90, s2, 7\ns_mov_b64 exec, 0xffffffff")
    g(f"buffer_store_dword v{VST}, v0, s[92:95], s90 offen")
    g.label(lab)


def wave_sum(g, regs):
    steps = ["quad_perm:[1,0,3,2] row_mask:0xf", "quad_perm:[2,3,0,1] row_mask:0xf", "row_half_mirror row_mask:0xf",
             "row_mirror row_mask:0xf", "row_bcast:15 row_mask:0xa", "row_bcast:31 row_mask:0xc"]
    for st in steps:
        g("s_nop 1" if len(regs) == 1 else "s_nop 0")
        for r in regs:
            g(f"v_add_f32_dpp v{r}, v{r}, v{r} {st} bank_mask:0xf")
    g("s_nop 1")


def tag_issue(g):
    lab = g.newlabel("tg")
    g.srd(28, PDBG, 256)
    g(f"v_mov_b32 v18, 0\ns_or_b32 s4, s2, s3\ns_cmp_lg_u32 s4, 0\ns_cbranch_scc1 {lab}")
    g("s_memrealtime s[4:5]\ns_waitcnt lgkmcnt(0)\ns_lshl_b32 s4, s4, 3\ns_or_b32 s4, s4, 0x80000000\nv_mov_b32 v19, s4")
    g("buffer_store_dword v19, v18, s[28:31], 0 offen sc1")
    g.label(lab)


def tag_load(g):
    g("buffer_load_dword v30, v18, s[28:31], 0 offen sc1")


def tag_get(g):
    l0, l1 = g.newlabel("tg"), g.newlabel("tgd")
    g("s_mov_b32 s5, 0x80000\nv_mov_b32 v18, 0")
    g.label(l0)
    g(f"v_readfirstlane_b32 s100, v30\ns_sub_u32 s5, s5, 1\ns_cbranch_scc1 {l1}\ns_cmp_lg_u32 s100, 0\ns_cbranch_scc1 {l1}")
    g(f"s_sleep 1\nbuffer_load_dword v30, v18, s[28:31], 0 offen sc1\ns_waitcnt vmcnt(0)\ns_branch {l0}")
    g.label(l1)
    g.srd(28, PWS, 0x8000, FLG)


def publish(g, val, first=False, younger=0):
    lab = g.newlabel("pub")
    g(f"s_waitcnt vmcnt({younger})")
    if first:
        tag_get(g)
    g("s_barrier")
    g(f"s_cmp_lg_u32 s3, 0\ns_cbranch_scc1 {lab}")
    g(f"s_lshl_b32 s4, s43, 7\ns_add_u32 s5, s100, {val}\nv_mov_b32 v18, s4\nv_mov_b32 v19, s5\ns_mov_b64 exec, 1")
    g("buffer_store_dword v19, v18, s[28:31], 0 offen sc1\ns_mov_b64 exec, -1")
    g.label(lab)


def flag_bad(g, vals):
    for k, (vf, thr) in enumerate(vals):
        g(f"v_subrev_u32 v{vf}, s100, v{vf}\nv_subrev_u32 v{vf}, {thr}, v{vf}")
        if k:
            g(f"v_max_u32 v{vals[0][0]}, v{vals[0][0]}, v{vf}")
    g(f"v_cmp_lt_u32 vcc, 7, v{vals[0][0]}")


def poll(g, addrs, sleep=1):
    l0, l1 = g.newlabel("poll"), g.newlabel("polld")
    g(f"s_cmp_lg_u32 s3, 0\ns_cbranch_scc1 {l1}\ns_mov_b32 s5, 0x80000")
    g.label(l0)
    for k, (va, thr) in enumerate(addrs):
        g(f"buffer_load_dword v{18+k}, v{va}, s[28:31], 0 offen sc1")
    g("s_waitcnt vmcnt(0)")
    flag_bad(g, [(18 + k, thr) for k, (va, thr) in enumerate(addrs)])
    g(f"s_sub_u32 s5, s5, 1\ns_cbranch_scc1 {l1}")
    g(f"s_cbranch_vccz {l1}\ns_sleep {sleep}\ns_branch {l0}")
    g.label(l1)
    g("s_barrier")


XP, EP = 2064, 1040
LN_EB = LDS_AUX + 8 * XP
LN_OB = LN_EB + 5 * EP
LN_RB = LN_OB + 4 * EP


def ln_loads(g):
    g("v_lshlrev_b32 v32, 4, v1\nv_sub_u32 v33, 0x7f0, v32")
    g("s_lshl_b32 s44, s43, 2\ns_add_u32 s44, s44, s3")
    g("s_sub_u32 s45, 2048, s44\ns_cmp_eq_u32 s44, 0\ns_cselect_b32 s45, 1024, s45")
    g("s_lshl_b32 s46, s44, 11\ns_lshl_b32 s47, s45, 11")
    g.srd(20, PX, S * D * 2)
    g("buffer_load_dwordx4 v[40:43], v32, s[20:23], s46 offen\nbuffer_load_dwordx4 v[44:47], v33, s[20:23], s46 offen")
    g("buffer_load_dwordx4 v[48:51], v32, s[20:23], s47 offen\nbuffer_load_dwordx4 v[52:55], v33, s[20:23], s47 offen")


def ln_body(g0, o, younger, pfx, fill, warm):
    fill = list(fill)

    class Spr:
        n = 0
        on = False

        def __call__(s, txt):
            for ln in txt.split("\n"):
                g0(ln)
                if s.on and ln.strip().startswith("v_") and "dpp" not in ln and "readlane" not in ln and "v_cmp" not in ln:
                    s.n += 1
                    if s.n % 10 == 0 and fill:
                        for ins in fill.pop(0):
                            g0("s_nop 0" if ins == "@" else ins)

        def __getattr__(s, k):
            return getattr(g0, k)
    g = Spr()
    XA, XB = 56, 72
    g.srd(24, PWS, 0x2000000)
    g("s_mov_b32 s48, 0xffff0000")
    g(f"s_waitcnt vmcnt({younger + 2})")
    stamp(g, o, 1)
    for i in range(8):
        g(f"v_lshlrev_b32 v{XA+2*i}, 16, v{40+i}\nv_and_b32 v{XA+2*i+1}, s48, v{40+i}")
    g(f"s_waitcnt vmcnt({younger})")
    if warm:
        g(f"s_cmp_lg_u32 s3, 3\ns_cbranch_scc1 {pfx}_nowarm")
        warm()
        g.label(pfx + "_nowarm")
    g.on = True
    for i in range(8):
        g(f"v_lshlrev_b32 v{XB+2*i}, 16, v{48+i}\nv_and_b32 v{XB+2*i+1}, s48, v{48+i}")
    MA, MB, VA, VB = 88, 92, 96, 100
    for X, T in ((XA, MA), (XB, MB)):
        g(f"v_pk_add_f32 v[{T}:{T+1}], v[{X}:{X+1}], v[{X+2}:{X+3}]")
        g(f"v_pk_add_f32 v[{T+2}:{T+3}], v[{X+4}:{X+5}], v[{X+6}:{X+7}]")
        for i in (8, 12):
            g(f"v_pk_add_f32 v[{T}:{T+1}], v[{T}:{T+1}], v[{X+i}:{X+i+1}]")
            g(f"v_pk_add_f32 v[{T+2}:{T+3}], v[{T+2}:{T+3}], v[{X+i+2}:{X+i+3}]")
        g(f"v_pk_add_f32 v[{T}:{T+1}], v[{T}:{T+1}], v[{T+2}:{T+3}]")
        g(f"v_add_f32 v{T}, v{T}, v{T+1}")
    wave_sum(g, [MA, MB])
    g(f"v_readlane_b32 s50, v{MA}, 63\nv_readlane_b32 s51, v{MB}, 63\nv_mov_b32 v34, 0x3a800000\ns_nop 0")
    g(f"v_mul_f32 v{MA}, s50, v34\nv_mul_f32 v{MB}, s51, v34\nv_mov_b32 v{MA+1}, v{MA}\nv_mov_b32 v{MB+1}, v{MB}")
    for T in (VA, VB):
        g(f"v_mov_b32 v{T}, 0\nv_mov_b32 v{T+1}, 0")
    for i in range(0, 16, 2):
        for X, M, T in ((XA, MA, VA), (XB, MB, VB)):
            g(f"v_pk_add_f32 v[{T+2}:{T+3}], v[{X+i}:{X+i+1}], v[{M}:{M+1}] neg_lo:[0,1] neg_hi:[0,1]")
        for X, M, T in ((XA, MA, VA), (XB, MB, VB)):
            g(f"v_pk_fma_f32 v[{T}:{T+1}], v[{T+2}:{T+3}], v[{T+2}:{T+3}], v[{T}:{T+1}]")
    g(f"v_add_f32 v{VA}, v{VA}, v{VA+1}\nv_add_f32 v{VB}, v{VB}, v{VB+1}")
    wave_sum(g, [VA, VB])
    g(f"v_readlane_b32 s50, v{VA}, 63\nv_readlane_b32 s51, v{VB}, 63")
    g(f"v_cvt_pk_bf16_f32 v{MA+2}, v{MA}, v{MB}\ns_nop 0")
    g(f"v_mul_f32 v{VA}, s50, v34\nv_mul_f32 v{VB}, s51, v34")
    g(f"v_lshlrev_b32 v{MA}, 16, v{MA+2}\nv_and_b32 v{MB}, s48, v{MA+2}")
    g(f"v_cvt_pk_bf16_f32 v{VA+1}, v{VA}, v{VB}")
    g(f"v_mov_b32 v{MA+1}, v{MA}\nv_mov_b32 v{MB+1}, v{MB}")
    g(f"v_lshlrev_b32 v{VA}, 16, v{VA+1}\nv_and_b32 v{VB}, s48, v{VA+1}")
    g(f"v_add_f32 v{VA}, 0x3727c5ac, v{VA}\nv_add_f32 v{VB}, 0x3727c5ac, v{VB}")
    g(f"v_cvt_pk_bf16_f32 v{VA+1}, v{VA}, v{VB}")
    g(f"v_lshlrev_b32 v{VA}, 16, v{VA+1}\nv_and_b32 v{VB}, s48, v{VA+1}")
    g(f"v_sqrt_f32 v{VA}, v{VA}\nv_sqrt_f32 v{VB}, v{VB}")
    for X, M, PKD in ((XA, MA, 40), (XB, MB, 48)):
        for i in range(8):
            a = X + 2 * i
            g(f"v_pk_add_f32 v[{a}:{a+1}], v[{a}:{a+1}], v[{M}:{M+1}] neg_lo:[0,1] neg_hi:[0,1]")
    g(f"v_cvt_pk_bf16_f32 v{VA+1}, v{VA}, v{VB}")
    g(f"v_lshlrev_b32 v{VA}, 16, v{VA+1}\nv_and_b32 v{VB}, s48, v{VA+1}")
    g(f"v_rcp_f32 v{VA}, v{VA}\nv_rcp_f32 v{VB}, v{VB}")
    for X, PKD in ((XA, 40), (XB, 48)):
        for i in range(8):
            g(f"v_cvt_pk_bf16_f32 v{PKD+i}, v{X+2*i}, v{X+2*i+1}")
    g(f"v_mov_b32 v{VA+1}, v{VA}\nv_mov_b32 v{VB+1}, v{VB}")
    for X, R, PKD in ((XA, VA, 40), (XB, VB, 48)):
        for i in range(8):
            a = X + 2 * i
            g(f"v_lshlrev_b32 v{a}, 16, v{PKD+i}\nv_and_b32 v{a+1}, s48, v{PKD+i}")
        for i in range(8):
            a = X + 2 * i
            g(f"v_pk_mul_f32 v[{a}:{a+1}], v[{a}:{a+1}], v[{R}:{R+1}]")
        for i in range(8):
            g(f"v_cvt_pk_bf16_f32 v{PKD+i}, v{X+2*i}, v{X+2*i+1}")
    g.on = False
    assert not fill
    g(f"s_mul_i32 s49, s3, {XP}\ns_add_u32 s49, s49, {LDS_AUX}")
    g("v_add_u32 v35, s49, v32\nv_add_u32 v36, s49, v33")
    g("ds_write_b128 v35, v[40:43]\nds_write_b128 v36, v[44:47]")
    g(f"ds_write_b128 v35, v[48:51] offset:{4*XP}\nds_write_b128 v36, v[52:55] offset:{4*XP}")
    for X, PKD in ((XA, 40), (XB, 48)):
        for i in range(8):
            a = X + 2 * i
            g(f"v_lshlrev_b32 v{a}, 16, v{PKD+i}\nv_and_b32 v{a+1}, s48, v{PKD+i}")
    g(f"s_mul_i32 s49, s3, {EP}\ns_add_u32 s49, s49, {LN_EB}\nv_add_u32 v37, s49, v32")
    E, O, PK, TM = 104, 120, 136, 140

    def dfold(src, sign):
        op = "v_add_f32" if sign > 0 else "v_sub_f32"
        g(f"s_nop 1\nv_mov_b32_dpp v{TM+8}, v{src+8} wave_shr:1 row_mask:0xf bank_mask:0xf bound_ctrl:0")
        for j in range(1, 8):
            g(f"{op} v{TM+j}, v{src+j}, v{src+16-j}")
        g(f"{op} v{TM}, v{src}, v{TM+8}")
        for j in range(4):
            g(f"v_cvt_pk_bf16_f32 v{PK+j}, v{TM+2*j}, v{TM+2*j+1}")

    def even_row(src, lds_off, own):
        dfold(src, +1)
        g(f"ds_write_b128 v37, v[{PK}:{PK+3}] offset:{lds_off}")
        g(f"v_pk_add_f32 v[{TM}:{TM+1}], v[{src}:{src+1}], v[{src+2}:{src+3}]")
        for i in range(4, 16, 2):
            g(f"v_pk_add_f32 v[{TM}:{TM+1}], v[{TM}:{TM+1}], v[{src+i}:{src+i+1}]")
        g(f"v_sub_f32 v{TM}, v{TM}, v{TM+1}")
        wave_sum(g, [TM])
        g("s_mov_b32 exec_lo, 0\ns_mov_b32 exec_hi, 0x80000000")
        if own:
            g(f"s_lshl_b32 s50, s3, 2\ns_add_u32 s50, s50, {LN_RB}\nv_mov_b32 v{TM+2}, s50")
            g(f"ds_write_b32 v{TM+2}, v{src+8}\nds_write_b32 v{TM+2}, v{TM} offset:16")
        else:
            g(f"v_mov_b32 v{TM+2}, 0\ns_mov_b32 s50, {REC + 256*128:#x}")
            g(f"buffer_store_dword v{src+8}, v{TM+2}, s[24:27], s50 offen sc1\nbuffer_store_dword v{TM}, v{TM+2}, s[24:27], s50 offen offset:16 sc1")
        g("s_mov_b64 exec, -1")

    lz, lj, ld = pfx + "_pair0", pfx + "_join", pfx + "_lnd"
    g(f"s_cmp_eq_u32 s44, 0\ns_cbranch_scc1 {lz}")
    for i in range(0, 16, 2):
        g(f"v_pk_add_f32 v[{O+i}:{O+i+1}], v[{XA+i}:{XA+i+1}], v[{XB+i}:{XB+i+1}] neg_lo:[0,1] neg_hi:[0,1]")
    for i in range(0, 16, 2):
        g(f"v_pk_add_f32 v[{E+i}:{E+i+1}], v[{XA+i}:{XA+i+1}], v[{XB+i}:{XB+i+1}]")
    dfold(O, -1)
    g(f"ds_write_b128 v37, v[{PK}:{PK+3}] offset:{LN_OB - LN_EB}")
    even_row(E, 0, True)
    g(f"s_branch {lj}")
    g.label(lz)
    even_row(XA, 0, True)
    even_row(XB, 4 * EP, False)
    for j in range(4):
        g(f"v_mov_b32 v{PK+j}, 0")
    g(f"ds_write_b128 v37, v[{PK}:{PK+3}] offset:{LN_OB - LN_EB}")
    g.label(lj)
    g("v_and_b32 v40, 3, v1\nv_lshrrev_b32 v41, 2, v1\ns_lshl_b32 s49, s43, 2")
    g("v_add_u32 v42, s49, v40")
    g("v_sub_u32 v43, 0x800, v42\nv_cmp_eq_u32 vcc, 0, v42\nv_mov_b32 v44, 0x400\ns_cmp_eq_u32 s3, 1\nv_cndmask_b32 v43, v43, v44, vcc")
    g("s_cselect_b64 s[50:51], -1, 0\nv_cndmask_b32 v42, v42, v43, s[50:51]")
    g(f"s_cselect_b32 s49, {LDS_AUX + 4*XP}, {LDS_AUX}" if False else f"s_mov_b32 s49, {LDS_AUX}\ns_cselect_b32 s49, {LDS_AUX + 4*XP}, s49")
    g(f"s_mov_b32 s50, 19\ns_mov_b32 s51, {XP}\ns_mov_b32 s52, 1024\ns_mov_b32 s53, 0x40000\ns_cmp_eq_u32 s3, 2")
    g(f"s_cselect_b32 s49, {LN_EB}, s49\ns_cselect_b32 s50, 18, s50\ns_cselect_b32 s51, {EP}, s51\ns_cselect_b32 s52, {LN_OB - LN_EB}, s52")
    g(f"s_cselect_b32 s53, {XOO:#x}, s53\ns_cselect_b32 s48, {XEE:#x}, 0")
    g("v_lshrrev_b32 v45, 8, v42\nv_lshlrev_b32 v46, s50, v45")
    g("v_bfe_u32 v45, v42, 4, 4\nv_lshl_add_u32 v46, v45, 10, v46\nv_and_b32 v45, 15, v42\nv_lshl_add_u32 v46, v45, 4, v46")
    g("v_lshrrev_b32 v49, 2, v41\nv_and_b32 v50, 3, v41")
    g("v_lshl_add_u32 v46, v49, 14, v46\nv_lshl_add_u32 v46, v50, 8, v46")
    g("v_mul_lo_u32 v53, v40, s51\nv_lshl_add_u32 v53, v49, 6, v53\nv_lshl_add_u32 v53, v50, 3, v53\nv_add_u32 v53, s49, v53\nv_add_u32 v54, s52, v53")
    g("v_mov_b32 v18, 0\ns_waitcnt lgkmcnt(0)\ns_barrier")
    stamp(g, o, 2)
    tag_load(g)
    g(f"s_cmp_eq_u32 s3, 3\ns_cbranch_scc1 {ld}")
    for n in range(8):
        g(f"ds_read2_b64 v[{56+4*n}:{59+4*n}], v{53 + (n >> 2)} offset0:{(n&3)*32} offset1:{(n&3)*32+4}")
    for n in range(8):
        sr = 48 if n < 4 else 53
        g(f"s_waitcnt lgkmcnt({7-n})\nbuffer_store_dwordx4 v[{56+4*n}:{59+4*n}], v46, s[24:27], s{sr} offen sc1\ns_add_u32 s{sr}, s{sr}, 0x10000")
    g(f"s_cmp_lg_u32 s3, 2\ns_cbranch_scc1 {ld}")
    g(f"v_lshlrev_b32 v51, 2, v1\nv_add_u32 v52, {LN_RB}, v51\ns_lshl_b32 s52, s43, 7\ns_add_u32 s52, s52, {REC:#x}\ns_mov_b64 exec, 0xff")
    g("ds_read_b32 v90, v52\ns_waitcnt lgkmcnt(0)\nbuffer_store_dword v90, v51, s[24:27], s52 offen sc1\ns_mov_b64 exec, -1")
    g(f"s_cmp_lg_u32 s43, 0\ns_cbranch_scc1 {ld}")
    g("v_lshrrev_b32 v49, 2, v1\nv_and_b32 v50, 3, v1\nv_lshlrev_b32 v51, 4, v1")
    g("v_lshlrev_b32 v52, 6, v49\nv_lshl_add_u32 v52, v50, 3, v52")
    g(f"v_add_u32 v52, {LN_EB + 4*EP}, v52")
    g("ds_read2_b64 v[92:95], v52 offset0:0 offset1:4")
    g(f"s_mov_b32 s52, {XEEX:#x}")
    g("s_waitcnt lgkmcnt(0)\nbuffer_store_dwordx4 v[92:95], v51, s[24:27], s52 offen sc1")
    g.label(ld)


class Core:
    NS = 4

    def __init__(s, g, MF, nh, SUBS, act_first, wpitch, xblocks=0, span=0.85, wsrd=12, vW=13, sW=(33, 35), tch=False, dact=False):
        s.g, s.MF, s.nh, s.SUBS, s.act_first, s.wpitch = g, MF, nh, SUBS, act_first, wpitch
        s.dact = dact
        s.NF = (8 if dact else 4) * nh
        s.nA = MF if dact else MF // 2
        s.gact = (4 if dact else 2) * MF * 1024
        s.actb = 0 if dact else s.gact
        s.subb = s.actb + nh * 8192
        s.slotb = s.subb * SUBS
        s.ringb = s.slotb * s.NS
        s.xb = xblocks
        s.xbase = s.ringb
        assert s.ringb + xblocks * 1024 <= LDS_AUX
        s.pA, s.pW = s.nA * SUBS, 2 * nh * SUBS
        s.tch = tch
        s.wrap = None
        s.wpol = ''
        s.ndma = s.pA + s.pW
        s.span = span
        s.acc = {}
        v, a = 32, 128
        order = [(j, i) for i in range(MF) for j in range(s.NF)] if dact else [(j, i) for j in range(s.NF) for i in range(MF)]
        for j, i in order:
            if True:
                if v + 4 <= 256:
                    s.acc[j, i] = ("v", v); v += 4
                else:
                    s.acc[j, i] = ("a", a); a += 4
        if s.xb:
            s.accx = v; v += 4
        s.vtop = v
        s.nfr = (0 if dact else MF) + s.NF + (2 if s.xb else 0)
        s.fper = s.nfr * 4 * SUBS
        assert 2 * s.fper <= 128
        s.vArd = [2, 3]
        s.vWrd = [[4, 5, 6, 7], [8, 9, 10, 11]]
        s.vAdma = 12
        s.vWdma = [vW + k for k in range(2 * nh)]
        s.vX, s.vXW = 17, (22, 23)
        s.wsrd = wsrd
        s.sAoff, s.sMA, s.sCnt = 32, 34, 36
        s.sWoff, s.sMW = sW

    def accr(s, j, i):
        k, r = s.acc[j, i]
        return f"{k}[{r}:{r+3}]"

    def fr(s, st, u, n):
        return st * s.fper + u * s.nfr * 4 + n * 4

    def fw(s, st, u, j):
        return s.fr(st, u, (0 if s.dact else s.MF) + j)

    def fa(s, p, u, i):
        if s.dact:
            return 128 + ((p & 3) * s.SUBS + u) * s.MF * 4 + i * 4
        return s.fr(p & 1, u, i)

    def setup_w(s):
        g = s.g
        g(f"s_mul_i32 s{s.sMW}, s3, {s.nh*2048}\ns_add_u32 s{s.sMW}, s{s.sMW}, {s.actb}\ns_mov_b32 s{s.sWoff}, 0")
        g("v_lshrrev_b32 v19, 4, v1\nv_and_b32 v20, 15, v1")
        g(f"s_mov_b32 s40, {s.wpitch}\ns_mul_i32 s39, s3, {8*s.wpitch}")
        for u in range(2):
            g(f"v_add_u32 v21, {4*u}, v19")
            g("v_mul_lo_u32 v18, v21, s40\nv_add_u32 v18, s39, v18")
            g("v_lshlrev_b32 v21, 1, v21\nv_xor_b32 v21, v21, v20\nv_lshl_add_u32 v18, v21, 4, v18")
            for h in range(s.nh):
                g(f"v_add_u32 v{s.vWdma[2*h+u]}, {4096 - (2*h+u)*1024}, v18")

    def setup_r(s, xsel=None):
        g = s.g
        g("v_lshlrev_b32 v18, 4, v1")
        if s.dact:
            assert s.ringb <= 65536 and s.nh == 1
            g(f"s_mul_i32 s39, s3, {s.nA*1024}\nv_add_u32 v18, s39, v18\ns_mov_b32 s{s.sAoff}, 0")
            for i in range(4):
                g(f"s_add_u32 s39, s58, {i}\ns_and_b32 s39, s39, 3\ns_lshl_b32 s39, s39, 10\nv_add_u32 v{12+i}, s39, v18")
            g("v_bfe_u32 v19, v1, 2, 3\nv_lshrrev_b32 v20, 5, v1\nv_lshlrev_b32 v20, 11, v20\nv_lshl_add_u32 v20, v19, 8, v20")
            g("v_and_b32 v21, 3, v1\nv_lshl_add_u32 v20, v21, 3, v20\nv_lshl_add_u32 v20, v19, 5, v20")
            for j in range(8):
                g(f"v_xor_b32 v{4+j}, {32*j}, v20")
            return
        g(f"s_mul_i32 s39, s37, {s.MF*1024}\nv_add_u32 v{s.vArd[0]}, s39, v18\nv_add_u32 v{s.vArd[1]}, {2*s.slotb}, v{s.vArd[0]}")
        g(f"s_mul_i32 s{s.sMA}, s3, {s.nA*1024}\nv_add_u32 v{s.vAdma}, s{s.sMA}, v18\ns_mov_b32 s{s.sAoff}, 0")
        if s.xb:
            g(f"v_add_u32 v{s.vX}, {s.xbase}, v18")
        g("v_bfe_u32 v19, v1, 2, 3")
        g(f"v_lshrrev_b32 v20, 5, v1\nv_mul_u32_u24 v20, {s.nh*2048}, v20\nv_lshl_add_u32 v20, v19, 8, v20")
        g(f"v_and_b32 v21, 3, v1\nv_lshl_add_u32 v20, v21, 3, v20\nv_add_u32 v20, {s.actb}, v20")
        g("s_lshl_b32 s39, s38, 2")
        for jj in range(4):
            g(f"s_add_u32 s40, s39, {jj}\nv_xor_b32 v21, s40, v19")
            g(f"v_lshl_add_u32 v{s.vWrd[0][jj]}, v21, 5, v20\nv_add_u32 v{s.vWrd[1][jj]}, {2*s.slotb}, v{s.vWrd[0][jj]}")
        if s.xb:
            g(f"s_and_b32 s40, {xsel}, 3\ns_add_u32 s40, s40, s39\nv_xor_b32 v21, s40, v19\nv_lshl_add_u32 v{s.vXW[0]}, v21, 5, v20")
            g(f"s_lshr_b32 s40, {xsel}, 2\ns_lshl_b32 s40, s40, 11\nv_add_u32 v{s.vXW[0]}, s40, v{s.vXW[0]}")
            g(f"v_add_u32 v{s.vXW[1]}, {2*s.slotb}, v{s.vXW[0]}")

    def dma_a(s, slot):
        it = []
        for u in range(s.SUBS):
            if s.dact:
                for i in range(s.MF):
                    r = s.fa(slot, u, i)
                    it.append([f"buffer_load_dwordx4 a[{r}:{r+3}], v{12+i}, s[8:11], s{s.sAoff} offen{ASC}"])
                it[-1].append(f"s_add_u32 s{s.sAoff}, s{s.sAoff}, {s.gact}")
                continue
            first = [f"s_add_u32 m0, s{s.sMA}, {slot * s.slotb + u * s.subb}", "@"]
            for i in range(s.nA):
                it.append(first + [f"buffer_load_dwordx4 v{s.vAdma}, s[8:11], s{s.sAoff} offen offset:{i*1024}{ASC} lds"])
                first = []
            it[-1].append(f"s_add_u32 s{s.sAoff}, s{s.sAoff}, {s.gact}")
        return it

    def dma_w(s, slot):
        it = []
        for u in range(s.SUBS):
            first = [f"s_add_u32 m0, s{s.sMW}, {slot * s.slotb + u * s.subb}", "@"]
            for h in range(s.nh):
                for uu in range(2):
                    r = s.wsrd + 4 * h
                    it.append(first + [f"buffer_load_dwordx4 v{s.vWdma[2*h+uu]}, s[{r}:{r+3}], s{s.sWoff} offen offset:{(2*h+uu)*1024}{s.wpol} lds"])
                    first = []
            it[-1].append(f"s_add_u32 s{s.sWoff}, s{s.sWoff}, {32*s.wpitch}")
        return it

    def touch(s):
        return [["buffer_load_dword v29, v26, s[24:27], 0 offen", "v_add_u32 v26, s62, v26"]] if s.tch else []

    def group(s, p):
        a, w = s.dma_a(p + 3 if s.dact else p), s.dma_w(p)
        if s.wrap:
            if p == 0:
                w = [["s_and_b32 s99, s97, 15", "s_lshr_b32 s97, s97, 4", f"s_lshl_b32 s{s.sWoff}, s99, 18", f"s_add_u32 s{s.sWoff}, s{s.sWoff}, s96"]] + w
            if p == 1:
                a = [[f"s_lshl_b32 s{s.sAoff}, s99, 16"]] + a
            if p == 2:
                w = w + [["buffer_load_dword v30, v26, s[28:31], 0 offen sc1"]]
        return s.touch() + a + w

    def reads(s, slot, st):
        it = []
        hi = slot >> 1
        for u in range(s.SUBS):
            if s.dact:
                for j in range(s.NF):
                    r = s.fw(st, u, j)
                    for half in range(2):
                        it.append([f"ds_read_b64_tr_b16 a[{r+2*half}:{r+2*half+1}], v{4+j} offset:{slot*s.slotb + u*s.subb + half*4096}"])
                continue
            base = (slot & 1) * s.slotb + u * s.subb
            wl, al = [], []
            for j in range(s.NF):
                h, jj = divmod(j, 4)
                r = s.fr(st, u, s.MF + j)
                for half in range(2):
                    wl.append(f"ds_read_b64_tr_b16 a[{r+2*half}:{r+2*half+1}], v{s.vWrd[hi][jj]} offset:{base + h*2048 + half*2*s.nh*2048}")
            for i in range(s.MF):
                r = s.fr(st, u, i)
                al.append(f"ds_read_b128 a[{r}:{r+3}], v{s.vArd[hi]} offset:{base + i*1024}")
            if s.xb:
                r = s.fr(st, u, s.MF + s.NF)
                al.append(f"ds_read_b128 a[{r}:{r+3}], v{s.vX}")
                for half in range(2):
                    wl.append(f"ds_read_b64_tr_b16 a[{r+4+2*half}:{r+5+2*half}], v{s.vXW[hi]} offset:{base + half*2*s.nh*2048}")
            while wl or al:
                if al: it.append([al.pop(0)])
                if wl: it.append([wl.pop(0)])
                if wl: it.append([wl.pop(0)])
            if s.xb:
                it.append([f"v_add_u32 v{s.vX}, 1024, v{s.vX}"])
        return it

    def mfma1(s, p, j, i):
        a, w = s.fa(p, 0, i), s.fw(p & 1, 0, j)
        A, W = f"a[{a}:{a+3}]", f"a[{w}:{w+3}]"
        x, y = (A, W) if s.act_first else (W, A)
        return f"v_mfma_f32_16x16x32_bf16 {s.accr(j,i)}, {x}, {y}, {s.accr(j,i)}"

    def final_phase(s, vm, blocks, lag, pre_items=()):
        g = s.g
        g(f"s_waitcnt vmcnt({vm}) lgkmcnt(0)" if vm is not None else "s_waitcnt lgkmcnt(0)")
        g("s_barrier")
        pre = [ins for grp in pre_items for ins in grp]
        for b, (tiles, _) in enumerate(blocks):
            work = list(blocks[b - lag][1]) if b >= lag else []
            if b < lag and pre:
                k = -(-len(pre) // (lag - b))
                work, pre = ["s_nop 0" if x == "@" else x for x in pre[:k]], pre[k:]
            per = -(-len(work) // len(tiles))
            for (j, i) in tiles:
                g(s.mfma1(3, j, i))
                for ins in work[:per]:
                    g(ins)
                work = work[per:]
        g("s_nop 7")
        for b in range(len(blocks) - lag, len(blocks)):
            for ins in blocks[b][1]:
                g(ins)

    def mfmas(s, p, zero):
        out = []
        st = p & 1
        for u in range(s.SUBS):
            z = zero and u == 0
            for j in range(s.NF):
                ii = range(s.MF) if j % 2 == 0 else range(s.MF - 1, -1, -1)
                for i in ii:
                    a, w = s.fa(p, u, i), s.fw(st, u, j)
                    A, W = f"a[{a}:{a+3}]", f"a[{w}:{w+3}]"
                    x, y = (A, W) if s.act_first else (W, A)
                    out.append(f"v_mfma_f32_16x16x32_bf16 {s.accr(j,i)}, {x}, {y}, {'0' if z else s.accr(j,i)}")
            if s.xb:
                a = s.fr(st, u, s.MF + s.NF)
                c = f"v[{s.accx}:{s.accx+3}]"
                out.append(f"v_mfma_f32_16x16x32_bf16 {c}, a[{a}:{a+3}], a[{a+4}:{a+7}], {'0' if z else c}")
        return out

    def flat(s, items):
        for grp in items:
            for ins in grp:
                s.g("s_nop 0" if ins == "@" else ins)

    def phase(s, p, vm, dma, rd=True, zero=False, tail=None, pre=None):
        g = s.g
        st = p & 1
        g(f"s_waitcnt vmcnt({vm}) lgkmcnt(0)" if vm is not None else "s_waitcnt lgkmcnt(0)")
        g("s_barrier")
        if pre:
            pre()
        rdl = s.reads((p + 1) % s.NS, st ^ 1) if rd else []
        fill = []
        nr, nd = len(rdl), len(dma)
        ri = di = 0
        while ri < nr or di < nd:
            if di < nd and (ri >= nr or di * nr <= ri * nd):
                fill.append(dma[di]); di += 1
            else:
                fill.append(rdl[ri]); ri += 1
        flat = []
        for grp in fill:
            cur = []
            for ins in grp:
                if ins == "@":
                    flat.append(cur); cur = []
                else:
                    cur.append(ins)
            flat.append(cur)
        mf = s.mfmas(p, zero)
        n = len(mf)
        lim = max(1, int(n * s.span))
        pos = {}
        for idx, grp in enumerate(flat):
            pos.setdefault(min(n - 2, idx * lim // len(flat)), []).append(grp)
        for k, m in enumerate(mf):
            g(m)
            grps = pos.get(k, [])
            for gi, grp in enumerate(grps):
                if gi and grps[gi-1] and grps[gi-1][-1].startswith("s_add_u32 m0"):
                    g("s_nop 0")
                for ins in grp:
                    g(ins)
            if tail and k == n - 2:
                g(tail)

    def start(s, nT=0, touch=None, chk=None):
        g = s.g
        if s.dact:
            for slot in range(3):
                s.flat(s.dma_a(slot))
            g(f"s_waitcnt vmcnt({3*s.pA})\ns_barrier")
            s.flat(s.reads(0, 0))
            vms = [2 * s.pA, s.pA + s.ndma, 2 * s.ndma, 2 * s.ndma]
            if touch:
                touch()
                vms[0] += 1
                vms[1] = s.ndma
            for p in range(4):
                s.phase(p, vms[p], s.group(p), zero=(p == 0), pre=(chk if p == 1 else None))
            return
        for slot in range(s.NS):
            s.flat(s.dma_a(slot))
        if touch:
            touch()
        g(f"s_waitcnt vmcnt({3*s.pA + nT}) lgkmcnt(0)\ns_barrier")
        s.flat(s.reads(0, 0))
        vms = [2 * s.pA + nT, s.pA + nT + s.ndma, nT + 2 * s.ndma, 2 * s.ndma]
        for p in range(4):
            s.phase(p, vms[p], s.group(p), zero=(p == 0))

    def loop(s, cnt, name, head=None, chk=None):
        g = s.g
        g(f"s_mov_b32 s{s.sCnt}, {cnt}")
        g.label(name)
        if head:
            head()
        for p in range(4):
            s.phase(p, 2 * s.ndma, s.group(p), pre=(chk if p == 1 else None),
                    tail=(f"s_sub_u32 s{s.sCnt}, s{s.sCnt}, 1\ns_cmp_lg_u32 s{s.sCnt}, 0" if p == 3 else None))
        g(f"s_cbranch_scc1 {name}")

    def last(s, fills=None, pres=None, flfirst=False, final=None):
        fills = fills or [[], [], [], []]
        pres = pres or [None] * 4
        cnt = lambda f: sum(1 for grp in f for ins in grp if ins.startswith("buffer_"))
        if s.dact:
            fills = [fills[0] + s.dma_a(3) if flfirst else s.dma_a(3) + fills[0]] + list(fills[1:])
        n = [cnt(f) for f in fills]
        vms = [2 * s.ndma, s.ndma + n[0], n[0] + n[1], ((0 if flfirst else n[0] - s.pA) + n[1] + n[2]) if s.dact else None]
        for p in range(4):
            if p == 3 and final:
                s.final_phase(vms[3], final[0], final[1], fills[3])
            else:
                s.phase(p, vms[p], fills[p], rd=(p < 3), pre=pres[p])


def accv(g, core, j, i, tmp):
    k, r = core.acc[j, i]
    if k == "v":
        return r
    for x in range(4):
        g(f"v_accvgpr_read_b32 v{tmp+x}, a{r+x}")
    return tmp


def warm_lines(g, ptr, nbytes, first, rl, pitch, n, step):
    g.srd(8, ptr, nbytes)
    g(f"v_add_u32 v26, {first}, v1\nv_lshrrev_b32 v27, {rl}, v26\nv_lshlrev_b32 v28, {rl}, v27\nv_sub_u32 v26, v26, v28")
    g(f"s_mov_b32 s4, {pitch}\nv_mul_lo_u32 v27, v27, s4\nv_lshl_add_u32 v26, v26, 7, v27")
    for k in range(n):
        g("buffer_load_dword v29, v26, s[8:11], 0 offen")
        if k + 1 < n:
            g(f"v_add_u32 v26, {(step >> rl) * pitch}, v26")


def cnt_vm(items):
    return sum(1 for grp in items for ins in grp if ins.startswith("buffer_"))


def k2_sids(g):
    g("s_and_b32 s56, s41, 1\ns_lshl_b32 s56, s56, 2\ns_and_b32 s57, s42, 3\ns_add_u32 s56, s56, s57\ns_lshr_b32 s57, s42, 2\ns_lshr_b32 s58, s41, 1")


def slab_srd(g):
    g(f"s_lshl_b32 s4, s56, 3\ns_add_u32 s4, s4, s57\ns_mul_i32 s4, s4, {4*49152}\ns_lshl_b32 s5, s3, 12\ns_add_u32 s4, s4, s5")
    g.srd(24, PWS, 4 * 49152, PART, "s4")


def n_early(o):
    return (12 if o.get("sent", 0) else 0) + (1 if o.get("codepf", 0) else 0)


def early(g, o):
    if o.get("codepf", 0):
        g("s_getpc_b64 s[4:5]\ns_and_b32 s24, s4, 0xffffff00\ns_mov_b32 s25, s5\ns_mov_b32 s26, 0xd000\ns_mov_b32 s27, 0x20000")
        g("s_lshl_b32 s4, s42, 2\ns_add_u32 s4, s4, s3\ns_lshl_b32 s4, s4, 9\nv_lshlrev_b32 v26, 7, v1\nv_add_u32 v26, s4, v26\ns_mov_b64 exec, 15")
        g("buffer_load_dword v29, v26, s[24:27], 0 offen\ns_mov_b64 exec, -1")
    if o.get("sent", 0):
        k2_sids(g)
        slab_srd(g)
        g("s_mul_i32 s4, s58, 49152\nv_mov_b32 v36, -1\nv_mov_b32 v37, -1\nv_mov_b32 v38, -1\nv_mov_b32 v39, -1")
        for i in range(3):
            for k in range(4):
                g(f"buffer_store_dwordx4 v[36:39], v32, s[24:27], s4 offen offset:{k*1024} sc1")
            g("s_add_u32 s4, s4, 16384")


def k2_ids(g, o):
    k2_sids(g)
    c2 = Core(g, MF=4, nh=1, SUBS=1, act_first=False, wpitch=D * 2, wsrd=20, vW=24, sW=(59, 60), span=o.get("span2", 0.9), dact=True)
    c2.wpol = o.get('w2pol', '')
    c2.setup_w()
    g(f"s_mul_i32 s96, s58, {896 * D * 2}")
    g("s_sub_u32 s98, s42, 4\ns_max_i32 s98, s98, 0\ns_lshr_b32 s98, s98, 2")
    g("s_lshl_b32 s59, s98, 18\ns_add_u32 s59, s59, s96")
    c2.wrap = True
    g(f"s_lshl_b32 s44, s57, 8\ns_sub_u32 s45, {F*D*2 + 4096}, s44")
    g.srd(20, PWD, "s45", -4096, "s44")
    return c2


XS, PS, AX, AP, RB, GO = 160, 164, 168, 176, 184, 188


def spin(g, va, thr, first_loaded, vf=30, lane=None):
    l0, l1, l2 = g.newlabel("sp"), g.newlabel("spd"), g.newlabel("spc")
    if first_loaded:
        g(f"s_branch {l2}")
    g.label(l0)
    g(f"buffer_load_dword v{vf}, v{va}, s[28:31], 0 offen sc1\ns_waitcnt vmcnt(0)")
    g.label(l2)
    flag_bad(g, [(vf, thr)])
    if lane:
        g(f"s_lshl_b32 s4, 1, {lane}\ns_and_b32 vcc_lo, vcc_lo, s4\ns_mov_b32 vcc_hi, 0")
    g(f"s_sub_u32 s101, s101, 1\ns_cbranch_scc1 {l1}\ns_cbranch_vccnz {l0}")
    g.label(l1)


def tile_src(g, dst, pitch, mirror):
    g("v_lshrrev_b32 v18, 4, v1\nv_and_b32 v19, 15, v1")
    for n in range(4):
        g(f"v_add_u32 v20, {4*n}, v18\nv_xor_b32 v21, v20, v19")
        if mirror:
            g(f"v_sub_u32 v{dst+n}, 15, v20\nv_cndmask_b32 v20, v20, v{dst+n}, {mirror}")
        g(f"v_mul_u32_u24 v20, {pitch}, v20\nv_lshl_add_u32 v20, v21, 4, v20\nv_add_u32 v{dst+n}, {4096 - n*1024}, v20")


def tile_dma(g, srd, va, off, sc):
    g(f"s_add_u32 m0, s55, {off}\ns_nop 0")
    for n in range(4):
        g(f"buffer_load_dwordx4 v{va+n}, s[{srd}:{srd+3}], 0 offen offset:{n*1024}{sc} lds")


def k2_setup(g, o, c2):
    g("s_nop 1")
    c2.setup_r()
    g(f"s_lshl_b32 s{c2.sAoff}, s98, 16")
    g(f"s_mul_i32 s44, s56, {112*16384}\ns_mul_i32 s45, s58, {28*16384}\ns_add_u32 s44, s44, s45")
    g.srd(8, PWS, 28 * 16384, H, "s44")
    g("s_mul_i32 s44, s56, 28\ns_mul_i32 s45, s58, 7\ns_add_u32 s44, s44, s45")
    g("v_min_u32 v26, 6, v1\nv_add_u32 v26, s44, v26\nv_lshlrev_b32 v26, 7, v26")
    g("s_mul_i32 s55, s3, 12288\ns_add_u32 s55, s55, 0x8000")
    g("s_lshl_b32 s54, s56, 8\ns_lshl_b32 s44, s3, 6\ns_add_u32 s54, s54, s44\ns_lshl_b32 s44, s58, 4\ns_add_u32 s54, s54, s44")
    tile_src(g, XS, 2048, None)
    g(f"s_lshl_b32 s61, s54, 11\ns_lshl_b32 s45, s57, 8\ns_add_u32 s61, s61, s45\ns_sub_u32 s45, {S*D*2 + 4096}, s61")
    g.srd(12, PX, "s45", -4096, "s61")
    tile_dma(g, 12, XS, 0, "")
    g("s_cmp_ge_u32 s56, 4\ns_cselect_b64 s[62:63], -1, 0")
    tile_src(g, PS, PQ_PITCH, "s[62:63]")
    g("s_sub_u32 s45, 2033, s54\ns_cmp_ge_u32 s56, 4\ns_cselect_b32 s44, s45, s54")
    g(f"s_mul_i32 s44, s44, {PQ_PITCH}\ns_lshl_b32 s45, s57, 8\ns_sub_u32 s48, 1794, s45\ns_cmp_ge_u32 s57, 4\ns_cselect_b32 s45, s48, s45")
    g(f"s_cselect_b32 s48, 248, 0\ns_cselect_b32 s49, -1, 0\ns_add_u32 s44, s44, s45\ns_sub_u32 s45, {1025*PQ_PITCH + 4096}, s44")
    g.srd(12, PWS, "s45", PP - 4096, "s44")
    g.srd(16, PWS, "s45", QQ - 4096, "s44")
    g("s_xor_b32 s62, s62, s49\ns_cmp_lg_u32 s62, 0\ns_cselect_b32 s62, 1.0, -1.0\ns_mov_b32 s63, s62")
    g("v_and_b32 v18, 15, v1\nv_lshrrev_b32 v19, 5, v1\nv_xor_b32 v19, v19, v18")
    g("v_lshlrev_b32 v19, 4, v19\nv_lshl_add_u32 v19, v18, 8, v19\nv_bfe_u32 v20, v1, 4, 1\nv_lshl_add_u32 v19, v20, 3, v19")
    for j in range(8):
        g(f"v_xor_b32 v20, {32*j}, v19\nv_add_u32 v{AX+j}, s55, v20\nv_xor_b32 v20, s48, v20\nv_add_u32 v{AP+j}, s55, v20")
    g("v_lshrrev_b32 v18, 4, v1\nv_and_b32 v19, 15, v1")
    for n in range(4):
        g(f"v_add_u32 v21, {4*n}, v18\nv_xor_b32 v20, v21, v19\nv_lshlrev_b32 v20, 4, v20\nv_lshl_add_u32 v20, v21, 8, v20\nv_add_u32 v{RB+n}, s55, v20")
    g(f"v_lshlrev_b32 v{GO}, 11, v18\nv_lshl_add_u32 v{GO}, v19, 4, v{GO}")
    slab_srd(g)
    for i in range(1, 4):
        g(f"s_add_u32 s{49+i}, s58, {i}\ns_and_b32 s{49+i}, s{49+i}, 3\ns_mul_i32 s{49+i}, s{49+i}, 49152\ns_add_u32 s{49+i}, s{49+i}, {(i-1)*16384}")
    g("s_mul_i32 s53, s58, 49152\nv_lshlrev_b32 v29, 4, v1")
    g("v_and_b32 v22, 31, v1\nv_add_u32 v22, 224, v22\nv_lshlrev_b32 v22, 7, v22")
    g("s_cmp_lt_u32 s42, 4\ns_cselect_b32 s44, 8, 7\nv_min_u32 v23, 2, v1\nv_add_u32 v23, 1, v23\nv_add_u32 v23, s58, v23\nv_and_b32 v23, 3, v23")
    g("s_mul_i32 s45, s58, s44\ns_sub_u32 s45, s43, s45\nv_mul_u32_u24 v23, s44, v23\nv_add_u32 v23, s45, v23\nv_lshlrev_b32 v23, 7, v23")
    g("s_lshl_b32 s44, s3, 2\ns_add_u32 s44, s44, 16\nv_add_u32 v23, s44, v23\ns_lshl_b32 s45, s43, 7\ns_add_u32 s44, s44, s45\nv_mov_b32 v27, s44")
    g("s_mov_b32 s101, 0x80000")
    g("s_mov_b32 s97, 0\ns_mov_b32 s46, 0\ns_mul_i32 s47, s58, 7")
    for slow in (0, 1):
        for k in range(1, 7):
            g(f"s_add_u32 s44, s98, {k}\ns_cmp_ge_u32 s44, 7\ns_cselect_b32 s45, 7, 0\ns_sub_u32 s44, s44, s45")
            g(f"s_add_u32 s45, s44, s47\ns_and_b32 s45, s45, 3\ns_lshl_b32 s44, s44, s46\ns_cmp_{'eq' if slow else 'lg'}_u32 s45, {o.get('slowc', 1)}")
            g("s_cselect_b32 s44, s44, 0\ns_cselect_b32 s45, 4, 0\ns_or_b32 s97, s97, s44\ns_add_u32 s46, s46, s45")


def main_kernel(g, o):
    g.begin(NAME)
    g("s_cmp_ge_u32 s2, 256\ns_cbranch_scc1 L_done")
    g("s_load_dwordx16 s[64:79], s[0:1], 0\ns_load_dwordx8 s[80:87], s[0:1], 64")
    g("v_lshrrev_b32 v2, 6, v0\nv_and_b32 v1, 63, v0\ns_nop 0\nv_readfirstlane_b32 s3, v2")
    if o.get("stamp"):
        g(f"v_mov_b32 v{VST}, 0")
    stamp(g, o, 0)
    g("s_and_b32 s41, s2, 7\ns_lshr_b32 s42, s2, 3\ns_lshr_b32 s37, s3, 1\ns_and_b32 s38, s3, 1")
    g("s_cmp_lt_u32 s42, 4\ns_cbranch_scc1 L_fft")

    g("s_sub_u32 s44, s42, 4")
    g("s_and_b32 s54, s41, 1\ns_lshl_b32 s54, s54, 2\ns_and_b32 s45, s44, 3\ns_add_u32 s54, s54, s45")
    g("s_lshr_b32 s55, s41, 1\ns_mul_i32 s55, s55, 7\ns_lshr_b32 s45, s44, 2\ns_add_u32 s55, s55, s45")
    g("s_mul_i32 s43, s54, 28\ns_add_u32 s43, s43, s55")
    c1 = Core(g, MF=8, nh=2, SUBS=1, act_first=False, wpitch=F * 2, span=o.get("span1", 0.85), tch=o.get("pf", 1))
    c1.wpol = o.get('w1pol', ' nt')
    c1.setup_w()
    if o.get("rot", 0):
        g(f"s_and_b32 s46, s41, 1\ns_mul_i32 s{c1.sWoff}, s46, {512*F*2}")
    g("s_waitcnt lgkmcnt(0)")
    tag_issue(g)
    ln_loads(g)
    early(g, o)
    g(f"s_lshl_b32 s46, s55, 8\ns_sub_u32 s47, {D*F*2 + 4096}, s46")
    g.srd(12, PWG, "s47", -4096, "s46")
    g.srd(16, PWU, "s47", -4096, "s46")
    nW, nC = o.get("nW", 0), o.get("nC", 0)

    def warm_g():
        g(f"s_cmp_ge_u32 s43, 112\ns_cselect_b32 s62, s{PWU}, s{PWG}\ns_cselect_b32 s63, s{PWU+1}, s{PWG+1}\ns_cselect_b32 s61, 112, 0\ns_sub_u32 s61, s43, s61")
        g(f"s_lshl_b32 s61, s61, 6\ns_add_u32 s61, s61, {128*56}")
        warm_lines(g, 62, D * F * 2, "s61", 0, 128, nW, 7168)
        if not nC:
            return
        g(f"s_bitcmp1_b32 s43, 0\ns_cselect_b32 s62, s{PSI}, s{PSR}\ns_cselect_b32 s63, s{PSI+1}, s{PSR+1}\ns_lshr_b32 s61, s43, 1\ns_lshl_b32 s61, s61, 6")
        warm_lines(g, 62, 1024 * 4096, "s61", 4, 4096, nC, 7168)
    def warm1():
        g("v_mul_u32_u24 v26, 37, v1\nv_lshrrev_b32 v26, 9, v26\nv_mul_u32_u24 v27, 14, v26\nv_sub_u32 v27, v1, v27")
        g(f"s_lshl_b32 s4, s43, 2\nv_add_u32 v26, s4, v26\nv_mul_u32_u24 v26, {F*2}, v26\nv_lshrrev_b32 v28, 1, v27\nv_lshl_add_u32 v26, v28, 10, v26")
        g("v_and_b32 v27, 1, v27\nv_lshl_add_u32 v26, v27, 7, v26")
        for ptr in (PWG, PWU):
            g.srd(8, ptr, D * F * 2)
            g("buffer_load_dword v29, v26, s[8:11], 0 offen offset:256")
    pf = o.get("pf", 1)
    wl = sum((c1.dma_w(slot) for slot in range(4)), [])
    n0, n1 = o.get("wpre", 6), o.get("wmid", 0)
    c1.flat(wl[:n0])
    ln_body(g, o, n_early(o) + n0, "g", wl[n0:n0 + n1], warm_g if (nW or nC) else (warm1 if o.get('warm1', 0) else None))
    late = wl[n0 + n1:]
    post = []
    if o.get("wpost", 1):
        late, post = [], late
    c1.flat(late)
    c1.setup_r()
    g("s_sub_u32 s46, 7, s54\ns_cmp_lt_u32 s54, 4\ns_cselect_b32 s46, s54, s46\ns_lshl_b32 s46, s46, 13")
    g("v_lshl_add_u32 v22, v1, 7, s46\ns_add_u32 s46, s46, 0x2000\ns_and_b32 s46, s46, 0x7fff\nv_mov_b32 v23, s46")
    publish(g, 1, True, len(late))
    c1.flat(post)
    stamp(g, o, 3)
    poll(g, [(22, 1), (23, 1)])
    stamp(g, o, 4)
    g("s_lshl_b32 s46, s54, 19")
    g.srd(8, PWS, 0x80000, XN, "s46")
    lg = o.get("lpw", 3)
    lc = 4 << lg
    g("s_add_u32 s46, s55, 2\ns_lshr_b32 s46, s46, 2\ns_sub_u32 s46, s55, s46\ns_mul_i32 s47, s54, 21\ns_add_u32 s46, s46, s47")
    g("s_and_b32 s47, s55, 3\ns_cmp_eq_u32 s47, 1\ns_cselect_b32 s63, 0, -1")
    g(f"s_bitcmp1_b32 s46, 0\ns_cselect_b32 s98, s{PSI}, s{PSR}\ns_cselect_b32 s99, s{PSI+1}, s{PSR+1}\ns_cselect_b32 s96, s{PWU}, s{PWG}\ns_cselect_b32 s97, s{PWU+1}, s{PWG+1}")
    g(f"v_lshrrev_b32 v18, {lg}, v1\nv_min_u32 v18, 1, v18\nv_lshlrev_b32 v18, 31, v18\ns_lshl_b32 s47, s3, {lg}\nv_add_u32 v19, s47, v1")
    g(f"s_lshl_b32 s47, s46, {lg+2}\nv_add_u32 v20, s47, v19\nv_lshl_or_b32 v23, v20, 7, v18")
    g(f"s_lshr_b32 s46, s46, 1\ns_lshl_b32 s46, s46, {lg+2}\nv_add_u32 v19, s46, v19\nv_and_b32 v21, 15, v19\nv_lshrrev_b32 v20, 4, v19")
    g("v_lshlrev_b32 v20, 12, v20\nv_lshl_add_u32 v20, v21, 7, v20\nv_or_b32 v27, v20, v18")
    g("v_mul_u32_u24 v20, 4682, v19\nv_lshrrev_b32 v20, 16, v20\nv_mul_u32_u24 v21, 14, v20\nv_sub_u32 v21, v19, v21")
    g(f"v_mul_u32_u24 v20, {F*2}, v20\nv_lshrrev_b32 v22, 1, v21\nv_lshl_add_u32 v20, v22, 10, v20\nv_and_b32 v21, 1, v21")
    g("v_lshl_add_u32 v20, v21, 7, v20\nv_add_u32 v20, 256, v20\nv_or_b32 v22, v20, v18")
    plan = o.get("plan", "-CC-DDD")
    rot = o.get("rot", 0)
    pos = {"S": o.get("r0", 128) * F * 2, "C": 0, "D": 0}
    stp = {"S": 84 * lc // 14 * F * 2, "C": 84 * lc // 16 * 4096, "D": 168 * lc * 128}
    starts = []
    for ch in plan:
        starts.append(pos.get(ch))
        if ch in pos:
            pos[ch] += 4 * stp[ch]

    def region(it):
        ch = plan[it]
        if ch == "-":
            g("s_mov_b32 s26, 0")
            return
        ptr, nb, va = {"S": (96, D*F*2, 22), "C": (98, 1024*4096, 27), "D": (PWD, F*D*2, 23)}[ch]
        g.srd(24, ptr, nb)
        g("s_and_b32 s26, s26, s63")
        g(f"s_mov_b32 s62, {stp[ch]}\nv_add_u32 v26, {starts[it]}, v{va}")
    g.srd(24, PWD, 0)
    g("s_mov_b32 s62, 0\nv_mov_b32 v26, v23")
    region(0)
    if rot:
        g(f"s_and_b32 s46, s41, 1\ns_lshl_b32 s{c1.sAoff}, s46, 18")
    c1.start()

    def switch():
        done = g.newlabel("sw")
        if rot:
            g(f"s_cmp_eq_u32 s{c1.sCnt}, 4\ns_cselect_b32 s46, 0x7ffff, -1\ns_and_b32 s{c1.sAoff}, s{c1.sAoff}, s46")
            g(f"s_cmp_eq_u32 s{c1.sWoff}, {D*F*2}\ns_cselect_b32 s{c1.sWoff}, 0, s{c1.sWoff}")
        for it in range(1, 7):
            if pf and (plan[it] != plan[it - 1]):
                lab = g.newlabel("sw")
                g(f"s_cmp_lg_u32 s{c1.sCnt}, {7 - it}\ns_cbranch_scc1 {lab}")
                region(it)
                g(f"s_branch {done}")
                g.label(lab)
        g.label(done)
    c1.loop(6, "L_g1", switch)
    c2 = k2_ids(g, o)
    g.srd(24, PWS, S * F * 2, H)
    g(f"s_mul_i32 s50, s54, {112*16384}\ns_lshl_b32 s51, s37, 13\ns_add_u32 s50, s50, s51")
    g("s_lshl_b32 s51, s55, 2\ns_lshl_b32 s52, s38, 1\ns_add_u32 s51, s51, s52\ns_lshl_b32 s51, s51, 14")
    g("s_add_u32 s50, s50, s51\ns_add_u32 s51, s50, 0x4000")
    g("v_lshlrev_b32 v26, 4, v1\nv_add_u32 v27, 0x1000, v26")
    blocks = []
    for kbl in range(2):
        for i in range(8):
            o4 = (12, 16)[len(blocks) & 1]
            work = []
            for jj in range(2):
                j = 2 * kbl + jj
                gr = c1.acc[j, i][1]
                kind, ur = c1.acc[4 + j, i]
                if kind == "a":
                    work += [f"v_accvgpr_read_b32 v{20+x}, a{ur+x}" for x in range(4)]
                    ur = 20
                work += [f"v_mul_f32 v{gr+x}, v{gr+x}, v{ur+x}" for x in range(4)] if o.get("epmul", 0) else \
                        [f"v_pk_mul_f32 v[{gr}:{gr+1}], v[{gr}:{gr+1}], v[{ur}:{ur+1}]", f"v_pk_mul_f32 v[{gr+2}:{gr+3}], v[{gr+2}:{gr+3}], v[{ur+2}:{ur+3}]"]
                work += [f"v_cvt_pk_bf16_f32 v{o4+2*jj}, v{gr}, v{gr+1}", f"v_cvt_pk_bf16_f32 v{o4+2*jj+1}, v{gr+2}, v{gr+3}"]
            work.append(f"buffer_store_dwordx4 v[{o4}:{o4+3}], v{26 + (i >> 2)}, s[24:27], s{50+kbl} offen offset:{(i&3)*1024} sc1")
            blocks.append(([(2 * kbl, i), (2 * kbl + 1, i), (4 + 2 * kbl, i), (5 + 2 * kbl, i)], work))
    if o.get("g1fin", 1):
        c1.last([c2.dma_w(p) for p in range(4)], final=(blocks, 3))
    else:
        c1.last([c2.dma_w(p) for p in range(4)])
        g("s_nop 7")
        for _, work in blocks:
            for ins in work:
                g(ins)
    stamp(g, o, 5)
    k2_setup(g, o, c2)
    publish(g, 2)
    stamp(g, o, 6)
    g("s_branch L_k2")

    g.label("L_fft")
    g("s_and_b32 s54, s41, 1\ns_lshr_b32 s55, s41, 1")
    g("s_lshl_b32 s43, s41, 2\ns_add_u32 s43, s43, s42\ns_add_u32 s43, s43, 224")
    f1 = Core(g, MF=8, nh=1, SUBS=1, act_first=True, wpitch=D * 2, xblocks=16)
    f1.setup_w()
    g("s_waitcnt lgkmcnt(0)")
    tag_issue(g)
    ln_loads(g)
    early(g, o)
    g("s_cmp_eq_u32 s54, 0")
    g(f"s_cselect_b32 s96, s{PHR}, s{PHI}\ns_cselect_b32 s97, s{PHR+1}, s{PHI+1}\ns_cselect_b32 s98, s{PSR}, s{PSI}\ns_cselect_b32 s99, s{PSR+1}, s{PSI+1}")
    g(f"s_lshl_b32 s46, s55, 8\ns_sub_u32 s47, {512*2048 + 4096}, s46")
    g.srd(12, 96, "s47", -4096, "s46")

    def warm_f():
        g(f"s_lshl_b32 s61, s55, 2\ns_add_u32 s61, s61, s42\ns_lshl_b32 s61, s61, 6\ns_add_u32 s62, s61, {128*8}\ns_add_u32 s61, s61, 14336")
        if o.get('warm1', 0):
            warm1()
        warm_lines(g, 96, 512 * 2048, "s62", 3, 2048, 3, 1024)
        if o.get("nCf", 0):
            warm_lines(g, 98, 1024 * 4096, "s61", 4, 4096, o.get("nCf", 0), 1024)
    wl = sum((f1.dma_w(slot) for slot in range(4)), [])
    f1.flat(wl[:n0])
    ln_body(g, o, n_early(o) + min(n0, 8), "f", wl[n0:], warm_f if o.get("warmf", 1) else None)
    late = []
    g("s_lshl_b32 s63, s42, 1\ns_add_u32 s63, s63, s37\ns_and_b32 s63, s63, 3")
    f1.setup_r("s63")
    g("s_lshl_b32 s46, s42, 13\nv_lshl_add_u32 v24, v1, 7, s46\nv_mov_b32 v25, 0")
    publish(g, 1, True, len(late))
    stamp(g, o, 3)
    poll(g, [(24, 1), (25, 1)])
    stamp(g, o, 4)
    g(f"s_mul_i32 s46, s54, {XOO - XEE}\ns_lshl_b32 s47, s42, 18\ns_add_u32 s46, s46, s47")
    g.srd(8, PWS, 0x40000, XEE, "s46")
    g.srd(16, PWS, 1024, XEEX)
    g("v_lshlrev_b32 v24, 4, v1\nbuffer_load_dwordx4 v[40:43], v24, s[16:19], 0 offen sc1")

    def t2():
        g(f"v_lshlrev_b32 v24, 8, v1\nv_add_u32 v24, {f1.xbase}, v24\ns_waitcnt vmcnt({4 * f1.pA})\nds_write_b128 v24, v[40:43]")
    f1.start(0, t2)
    f1.loop(2, "L_f1")
    g("s_lshl_b32 s62, s42, 1\ns_add_u32 s62, s62, s37")
    f2 = Core(g, MF=4, nh=2, SUBS=1, act_first=True, wpitch=S * 2, xblocks=32, wsrd=16, vW=24, sW=(59, 60))
    f2.wpol = o.get('f2pol', '')
    f2.setup_w()
    g(f"s_lshl_b32 s46, s42, 9\ns_sub_u32 s47, {1024*4096 + 4096}, s46")
    g.srd(16, 98, "s47", -4096, "s46")
    g("s_sub_u32 s47, s47, 256")
    g.srd(20, 98, "s47", -4096 + 256, "s46")
    g("s_cmp_eq_u32 s54, 0\ns_cselect_b32 s47, 0x10000, 0")
    g.srd(24, PWS, "s47", REC)
    T = f1.vtop
    g("v_lshrrev_b32 v28, 4, v1\nv_lshlrev_b32 v28, 7, v28")
    g("s_lshl_b32 s50, s42, 13\ns_lshl_b32 s51, s37, 12\ns_add_u32 s50, s50, s51\ns_mov_b32 s51, 0x8000")
    lc1 = [[f"buffer_load_dwordx4 v[{T+4*i}:{T+4*i+3}], v28, s[24:27], s50 offen offset:{i*512} sc1"] for i in range(8)]
    lc1.append([f"buffer_load_dword v{T+32}, v28, s[24:27], s51 offen sc1"])
    f1.last([f2.dma_w(0) + lc1, f2.dma_w(1), f2.dma_w(2), f2.dma_w(3)])
    stamp(g, o, 5)
    g(f"s_waitcnt vmcnt({3 * f2.pW})")
    g("v_and_b32 v3, 1, v1\nv_lshlrev_b32 v3, 31, v3\nv_or_b32 v3, 1.0, v3")
    g(f"s_mul_i32 s46, s54, {BOT - AET}\ns_lshl_b32 s47, s55, 18\ns_add_u32 s46, s46, s47")
    g.srd(8, PWS, 0x40000, AET, "s46")
    g("s_lshl_b32 s50, s42, 16\ns_lshl_b32 s51, s37, 15\ns_add_u32 s50, s50, s51\ns_lshl_b32 s51, s38, 12\ns_add_u32 s50, s50, s51")
    g("v_lshlrev_b32 v2, 4, v1\ns_nop 4")
    k = 0
    for ip in range(4):
        for j in range(4):
            o4 = 4 + 4 * (k & 1); k += 1
            for ii in range(2):
                i = 2 * ip + ii
                r = f1.acc[j, i][1]
                for x in range(4):
                    g(f"v_fmac_f32 v{r+x}, v{T+4*i+x}, v3")
                g(f"v_cvt_pk_bf16_f32 v{o4+2*ii}, v{r}, v{r+1}\nv_cvt_pk_bf16_f32 v{o4+2*ii+1}, v{r+2}, v{r+3}")
            g(f"buffer_store_dwordx4 v[{o4}:{o4+3}], v2, s[8:11], s50 offen offset:{j*1024} sc1")
        g("s_add_u32 s50, s50, 0x2000")
    g("v_and_b32 v2, 15, v1\nv_lshlrev_b32 v2, 2, v2")
    g("s_lshl_b32 s50, s62, 11\ns_lshl_b32 s51, s55, 9\ns_add_u32 s50, s50, s51")
    g(f"s_lshl_b32 s52, s38, 8\ns_add_u32 s50, s50, s52\ns_add_u32 s50, s50, {RP - REC}")
    U = T + 36
    for j in range(4):
        r0 = f1.acc[j, 0][1]
        g(f"v_pk_add_f32 v[{U}:{U+1}], v[{r0}:{r0+1}], v[{r0+2}:{r0+3}]")
        for i in range(1, 8):
            r = f1.acc[j, i][1]
            g(f"v_pk_add_f32 v[{U}:{U+1}], v[{U}:{U+1}], v[{r}:{r+1}]\nv_pk_add_f32 v[{U}:{U+1}], v[{U}:{U+1}], v[{r+2}:{r+3}]")
        g(f"v_sub_f32 v{U+4+j}, v{U}, v{U+1}")
        g(f"v_mov_b32 v{U+2}, v{U+4+j}\ns_nop 1\nv_permlane32_swap_b32 v{U+4+j}, v{U+2}\ns_nop 1\nv_add_f32 v{U+4+j}, v{U+4+j}, v{U+2}")
        g(f"v_mov_b32 v{U+2}, v{U+4+j}\ns_nop 1\nv_permlane16_swap_b32 v{U+4+j}, v{U+2}\ns_nop 1\nv_add_f32 v{U+4+j}, v{U+4+j}, v{U+2}")
        g(f"buffer_store_dword v{U+4+j}, v2, s[24:27], s50 offen offset:{j*64} sc1")
    g("s_cmp_ge_u32 s62, 4\ns_cbranch_scc1 L_f1_noc2")
    g(f"v_fmac_f32 v{f1.accx}, v{T+32}, v3")
    g(f"s_add_u32 s50, s51, s52\ns_lshl_b32 s52, s62, 6\ns_add_u32 s50, s50, s52\ns_add_u32 s50, s50, {C2 - REC}")
    g(f"s_mov_b64 exec, 0xffff\nbuffer_store_dword v{f1.accx}, v2, s[24:27], s50 offen sc1\ns_mov_b64 exec, -1")
    g.label("L_f1_noc2")
    g("s_lshl_b32 s62, s55, 1\ns_add_u32 s62, s62, s37")
    f2.setup_r("s62")
    g("s_and_b32 s46, s43, 0xfc\nv_and_b32 v28, 3, v1\nv_add_u32 v28, s46, v28\nv_lshlrev_b32 v28, 7, v28")
    publish(g, 2)
    stamp(g, o, 6)
    poll(g, [(28, 2)])
    stamp(g, o, 7)
    g("s_lshl_b32 s46, s3, 13\nv_lshl_add_u32 v28, v1, 7, s46\nbuffer_load_dwordx4 v[40:43], v28, s[24:27], 0 offen offset:16 sc1")

    def x2():
        g("v_lshrrev_b32 v28, 3, v1\nv_lshlrev_b32 v28, 10, v28\nv_and_b32 v29, 3, v1\nv_lshl_add_u32 v28, v29, 8, v28")
        g(f"v_bfe_u32 v29, v1, 2, 1\nv_lshl_add_u32 v28, v29, 3, v28\ns_add_u32 s46, s46, {f2.xbase}\nv_add_u32 v28, s46, v28")
        g(f"s_waitcnt vmcnt({4 * f2.pA})\nv_cvt_pk_bf16_f32 v40, v40, v41\nv_cvt_pk_bf16_f32 v41, v42, v43\nds_write_b64 v28, v[40:41]")
    f2.start(0, x2)
    f2.loop(6, "L_f2")
    T = f2.vtop
    g("v_lshrrev_b32 v28, 4, v1\nv_lshlrev_b32 v28, 4, v28")
    g(f"s_lshl_b32 s50, s55, 9\ns_lshl_b32 s51, s37, 8\ns_add_u32 s50, s50, s51\ns_add_u32 s50, s50, {C2 - REC}\ns_mov_b32 s51, {0x8000 + 16}")
    lc2 = [[f"buffer_load_dwordx4 v[{T+4*i}:{T+4*i+3}], v28, s[24:27], s50 offen offset:{i*64} sc1"] for i in range(4)]
    lc2.append([f"buffer_load_dword v{T+16}, v28, s[24:27], s51 offen sc1"])
    f2.last([lc2, [], [], []])
    stamp(g, o, 8)
    c2 = k2_ids(g, o)
    g("s_barrier")
    for slot in range(4):
        c2.flat(c2.dma_w(slot))
    g(f"s_waitcnt vmcnt({4 * c2.pW})")
    g("v_and_b32 v3, 1, v1\nv_lshlrev_b32 v3, 31, v3\nv_or_b32 v3, 1.0, v3")
    g(f"s_mul_i32 s46, s54, {QQ - PP}")
    g.srd(8, PWS, 1025 * PQ_PITCH, PP, "s46")
    g(f"s_lshl_b32 s46, s3, 13\ns_add_u32 s46, s46, {LDS_AUX}")
    g("v_and_b32 v4, 15, v1\nv_and_b32 v5, 7, v1\nv_lshrrev_b32 v6, 5, v1\nv_bfe_u32 v7, v1, 4, 1")
    g("v_lshlrev_b32 v8, 7, v4\nv_lshl_add_u32 v8, v7, 3, v8\nv_add_u32 v8, s46, v8")
    for i in range(4):
        g(f"v_add_u32 v9, {2*i}, v6\nv_xor_b32 v9, v9, v5\nv_lshl_add_u32 v{10+i}, v9, 4, v8")
    g("v_lshrrev_b32 v6, 3, v1\nv_xor_b32 v9, v6, v5\nv_lshlrev_b32 v14, 7, v6\nv_lshl_add_u32 v14, v9, 4, v14\nv_add_u32 v14, s46, v14")
    g(f"v_mul_u32_u24 v15, {PQ_PITCH}, v6\nv_lshl_add_u32 v15, v5, 4, v15")
    g(f"s_lshl_b32 s50, s42, 8\ns_lshl_b32 s51, s38, 6\ns_add_u32 s50, s50, s51\ns_mul_i32 s52, s50, {PQ_PITCH}")
    g("s_lshl_b32 s50, s55, 8\ns_lshl_b32 s51, s37, 7\ns_add_u32 s50, s50, s51\ns_add_u32 s50, s50, s52")
    B = T + 20
    for h in range(2):
        for jj in range(4):
            for i in range(4):
                r = f2.acc[4 * h + jj, i][1]
                for x in range(4):
                    g(f"v_fmac_f32 v{r+x}, v{T+4*i+x}, v3")
                g(f"v_cvt_pk_bf16_f32 v{r}, v{r}, v{r+1}\nv_cvt_pk_bf16_f32 v{r+1}, v{r+2}, v{r+3}")
                g(f"ds_write_b64 v{10+i}, v[{r}:{r+1}] offset:{jj*2048}")
        g("s_waitcnt lgkmcnt(0)")
        for n in range(8):
            g(f"ds_read_b128 v[{B+4*n}:{B+4*n+3}], v14 offset:{n*1024}")
        for n in range(8):
            g(f"s_add_u32 s51, s50, {(h*128 + n*8) * PQ_PITCH}\ns_waitcnt lgkmcnt({7-n})")
            g(f"buffer_store_dwordx4 v[{B+4*n}:{B+4*n+3}], v15, s[8:11], s51 offen sc1")
    g(f"v_fmac_f32 v{f2.accx}, v{T+16}, v3\ns_cmp_eq_u32 s54, 0\ns_cselect_b32 s46, -1, 0")
    g(f"v_cvt_pk_bf16_f32 v16, v{f2.accx}, v{f2.accx}\nv_and_b32 v16, s46, v16\nv_mul_u32_u24 v17, {PQ_PITCH}, v4")
    g(f"s_lshr_b32 s46, s62, 2\ns_lshl_b32 s46, s46, 7\ns_and_b32 s47, s62, 3\ns_lshl_b32 s47, s47, 4\ns_add_u32 s46, s46, s47")
    g(f"s_mul_i32 s46, s46, {PQ_PITCH}\ns_add_u32 s46, s46, s52")
    g("s_mov_b64 exec, 0xffff\nbuffer_store_short v16, v17, s[8:11], s46 offen offset:1024 sc1\ns_mov_b64 exec, -1")
    g("s_cmp_lg_u32 s42, 0\ns_cbranch_scc1 L_f2_done\ns_cmp_ge_u32 s3, 2\ns_cbranch_scc1 L_f2_corner")
    g("v_lshlrev_b32 v2, 2, v0\ns_lshl_b32 s50, s55, 9\nv_add_u32 v2, s50, v2")
    for k in range(4):
        g(f"s_mov_b32 s51, {RP - REC + 4096 * k}")
        g(f"buffer_load_dword v{4+2*k}, v2, s[24:27], s51 offen sc1\nbuffer_load_dword v{5+2*k}, v2, s[24:27], s51 offen offset:2048 sc1")
    g(f"s_mov_b32 s51, {C2 - REC}\nbuffer_load_dword v12, v2, s[24:27], s51 offen sc1\ns_waitcnt vmcnt(0)")
    for k in range(8):
        g(f"v_add_f32 v12, v12, v{4+k}")
    g(f"v_cvt_pk_bf16_f32 v12, v12, v12\nv_lshrrev_b32 v2, 1, v2\ns_mov_b32 s51, {1024 * PQ_PITCH}")
    g("buffer_store_short v12, v2, s[8:11], s51 offen sc1\ns_branch L_f2_done")
    g.label("L_f2_corner")
    g("s_cmp_lg_u32 s3, 2\ns_cbranch_scc1 L_f2_done\ns_cmp_lg_u32 s55, 0\ns_cbranch_scc1 L_f2_done")
    g("v_lshlrev_b32 v2, 7, v1")
    for k in range(4):
        g(f"s_mov_b32 s51, {k * 0x2000}\nbuffer_load_dwordx4 v[{4+4*k}:{7+4*k}], v2, s[24:27], s51 offen offset:16 sc1")
    g("s_waitcnt vmcnt(0)")
    g("v_pk_add_f32 v[4:5], v[4:5], v[6:7]")
    for k in range(8, 20, 2):
        g(f"v_pk_add_f32 v[4:5], v[4:5], v[{k}:{k+1}]")
    g("v_sub_f32 v4, v4, v5")
    wave_sum(g, [4])
    g(f"v_readlane_b32 s50, v4, 63\ns_mov_b32 s51, {1024 * PQ_PITCH + 1024}\ns_nop 0\nv_add_f32 v4, s50, v{T+16}\nv_cvt_pk_bf16_f32 v4, v4, v4\nv_mov_b32 v2, 0")
    g("s_mov_b64 exec, 1\nbuffer_store_short v4, v2, s[8:11], s51 offen sc1\ns_mov_b64 exec, -1")
    g.label("L_f2_done")
    stamp(g, o, 16)
    k2_setup(g, o, c2)
    publish(g, 3)
    stamp(g, o, 9)
    spin(g, 26, 2, False, lane="s98")

    g.label("L_k2")
    stamp(g, o, 10)
    c2.start(touch=lambda: g("buffer_load_dword v30, v26, s[28:31], 0 offen sc1"), chk=lambda: spin(g, 26, 2, True, lane="s99"))
    c2.loop(5, "L_k2_loop", chk=lambda: spin(g, 26, 2, True, lane="s99"))
    stamp(g, o, 13)
    blocks = []
    for i in (1, 2, 3, 0):
        for k in range(4):
            work = []
            if i:
                d = 192 + 4 * (len(blocks) & 3)
                for jj in range(2):
                    r = c2.acc[2 * k + jj, i][1]
                    work += [f"v_cvt_pk_bf16_f32 v{d+2*jj}, v{r}, v{r+1}", f"v_cvt_pk_bf16_f32 v{d+2*jj+1}, v{r+2}, v{r+3}"]
                work.append(f"buffer_store_dwordx4 v[{d}:{d+3}], v29, s[24:27], s{49+i} offen offset:{k*1024} sc1")
            blocks.append(([(2 * k, i), (2 * k + 1, i)], work))
    c2.last([[["buffer_load_dword v30, v22, s[28:31], 0 offen sc1"]], [], [], []], flfirst=True, final=(blocks, 4))
    stamp(g, o, 11)
    g("s_add_u32 s44, s100, 7\nv_mov_b32 v28, s44\ns_waitcnt vmcnt(0)")
    g("s_mov_b64 exec, 1\nbuffer_store_dword v28, v27, s[28:31], 0 offen sc1\ns_mov_b64 exec, -1")
    stamp(g, o, 14)
    sent = 0
    spin(g, 22, 3, True)
    tile_dma(g, 12, PS, 4096, " sc1")
    tile_dma(g, 16, PS, 8192, " sc1")

    def part_loads():
        for k in range(4):
            for i in range(3):
                g(f"s_add_u32 s4, s53, {i*16384}\nbuffer_load_dwordx4 v[{PT+16*i+4*k}:{PT+16*i+4*k+3}], v29, s[24:27], s4 offen offset:{k*1024} sc1")
    Y, XF, PT, RD = 64, 96, 208, 128
    if sent:
        part_loads()
    else:
        g("buffer_load_dword v30, v23, s[28:31], 0 offen sc1")
    g.srd(20, POUT, S * D * 2)
    g("s_mov_b32 s44, 0xbfb8aa3b\ns_mov_b32 s45, 0xbfb8aa3b\ns_mov_b32 s54, 0xffff0000\ns_mov_b32 s46, 1.0\ns_mov_b32 s47, 1.0")
    g("s_mov_b32 s48, 0x3f80\ns_mov_b32 s49, 0x3f800000")
    g(f"s_waitcnt vmcnt({12 if sent else 1})")
    for j in range(8):
        g(f"ds_read_b64 v[{RD+4*j}:{RD+4*j+1}], v{AP+j} offset:4096\nds_read_b64 v[{RD+4*j+2}:{RD+4*j+3}], v{AP+j} offset:8192")
    g("s_cmp_ge_u32 s57, 4\ns_cbranch_scc1 L_k2_rev")
    for rev in (0, 1):
        if rev:
            g("s_branch L_k2_y")
            g.label("L_k2_rev")
        for j in range(8):
            g(f"s_waitcnt lgkmcnt({14 - 2*j})")
            for src, dst in ((RD + 4 * j, Y + 4 * j), (RD + 4 * j + 2, 4)):
                for x in range(4):
                    d = dst + (3 - x if rev else x)
                    w = src + (x >> 1)
                    g(f"v_and_b32 v{d}, s54, v{w}" if x & 1 else f"v_lshlrev_b32 v{d}, 16, v{w}")
            y = Y + 4 * j
            g(f"v_pk_fma_f32 v[{y}:{y+1}], v[4:5], s[62:63], v[{y}:{y+1}]\nv_pk_fma_f32 v[{y+2}:{y+3}], v[6:7], s[62:63], v[{y+2}:{y+3}]")
    g.label("L_k2_y")
    for j in range(8):
        g(f"ds_read_b64 v[{RD+2*j}:{RD+2*j+1}], v{AX+j}")
    def x_unpack():
        for j in range(8):
            g(f"s_waitcnt lgkmcnt({7 - j})")
            g(f"v_lshlrev_b32 v{XF+4*j}, 16, v{RD+2*j}\nv_and_b32 v{XF+4*j+1}, s54, v{RD+2*j}\nv_lshlrev_b32 v{XF+4*j+2}, 16, v{RD+2*j+1}\nv_and_b32 v{XF+4*j+3}, s54, v{RD+2*j+1}")
    if sent:
        x_unpack()
        l0, l1 = g.newlabel("sn"), g.newlabel("snd")
        g.label(l0)
        g(f"s_waitcnt vmcnt(0)\nv_max3_u32 v4, v{PT}, v{PT+1}, v{PT+2}\nv_max3_u32 v5, v{PT+3}, v{PT+4}, v{PT+5}")
        for k in range(6, 48, 4):
            g(f"v_max3_u32 v4, v4, v{PT+k}, v{PT+k+1}" + (f"\nv_max3_u32 v5, v5, v{PT+k+2}, v{PT+k+3}" if k + 3 < 48 else ""))
        g(f"v_max_u32 v4, v4, v5\nv_cmp_eq_u32 vcc, -1, v4\ns_sub_u32 s5, s5, 1\ns_cbranch_scc1 {l1}\ns_cbranch_vccz {l1}")
        part_loads()
        g(f"s_branch {l0}")
        g.label(l1)
        stamp(g, o, 8)
    else:
        g("s_waitcnt vmcnt(0)")
        spin(g, 23, 7, True)
        stamp(g, o, 15)
        part_loads()
        x_unpack()
    for j in range(8):
        r = c2.acc[j, 0][1]
        if j % 2 == 0 and not sent:
            g(f"s_waitcnt vmcnt({9 - 3 * (j >> 1)})")
        for i in range(3):
            w = PT + 16 * i + 2 * j
            for x in range(4):
                g(f"v_dot2c_f32_bf16 v{r+x}, s{48 + (x & 1)}, v{w + (x >> 1)}")
        g(f"s_nop 1\nv_pk_mul_f32 v[4:5], v[{r}:{r+1}], s[44:45]\nv_pk_mul_f32 v[6:7], v[{r+2}:{r+3}], s[44:45]")
        for x in range(4):
            g(f"v_exp_f32 v{4+x}, v{4+x}")
        g("s_nop 0\nv_pk_add_f32 v[4:5], v[4:5], s[46:47]\nv_pk_add_f32 v[6:7], v[6:7], s[46:47]")
        for x in range(4):
            g(f"v_rcp_f32 v{4+x}, v{4+x}")
        y, xf = Y + 4 * j, XF + 4 * j
        g(f"v_pk_mul_f32 v[{y}:{y+1}], v[{y}:{y+1}], v[{r}:{r+1}]\nv_pk_mul_f32 v[{y+2}:{y+3}], v[{y+2}:{y+3}], v[{r+2}:{r+3}]")
        g(f"v_pk_fma_f32 v[{xf}:{xf+1}], v[4:5], v[{y}:{y+1}], v[{xf}:{xf+1}]\nv_pk_fma_f32 v[{xf+2}:{xf+3}], v[6:7], v[{y+2}:{y+3}], v[{xf+2}:{xf+3}]")
        g(f"v_cvt_pk_bf16_f32 v{xf}, v{xf}, v{xf+1}\nv_cvt_pk_bf16_f32 v{xf+1}, v{xf+2}, v{xf+3}")
        g(f"ds_write_b64 v{AX+j}, v[{xf}:{xf+1}]")
    for n in range(4):
        g(f"ds_read_b128 v[{RD+4*n}:{RD+4*n+3}], v{RB+n}")
    for n in range(4):
        g(f"s_add_u32 s4, s61, {n*4*2048}\ns_waitcnt lgkmcnt({3-n})\nbuffer_store_dwordx4 v[{RD+4*n}:{RD+4*n+3}], v{GO}, s[20:23], s4 offen{o.get('opol', '')}")
    stamp_flush(g, o, 12)
    g.label("L_done")
    g("s_endpgm")
    g.kd(NAME, 256 + 192, 102, 256)


HEADER = open("recurrent_scan__spectral_fnet__glu_gated_bilinear__prompt.s.ref").read().split("\n")


def build(o=None):
    o = dict(o or {})
    global ASC
    ASC = ' sc1' if o.get('asc1', 0) else ''
    g = G()
    main_kernel(g, o)
    if o.get("aslist"):
        launch = f"; @launch kernel={NAME} grid=(256,1,1) block=(256,1,1) lds={LDS_TOTAL}"
    else:
        launch = f"; @launch grid=(256,1,1) block=(256,1,1) lds={LDS_TOTAL}"
    txt = "\n".join(HEADER[:13] + [launch]) + '\n.amdgcn_target "amdgcn-amd-amdhsa--gfx950"\n.text\n'
    txt += "\n".join(g.L) + '\n.section .rodata,"a"\n' + "\n".join(g.kds) + "\n"
    return txt


if __name__ == "__main__":
    out = sys.argv[1] if len(sys.argv) > 1 else "recurrent_scan__spectral_fnet__glu_gated_bilinear__prompt.s"
    o = eval(sys.argv[2]) if len(sys.argv) > 2 else {}
    open(out, "w").write(build(o))
```

```python
import sys

S, D, F = 2048, 1024, 3584
XN   = 0x0000000
H    = 0x0400000
XEE  = 0x1200000
XEEX = 0x1300000
XOO  = 0x1400000
AET  = 0x1500000
BOT  = 0x1600000
PP   = 0x1700000
QQ   = 0x1900000
REC  = 0x1D00000
C2   = 0x1D09000
RP   = 0x1D0A000
FLG  = 0x1E00000
PART = 0x2000000
STAMP = 0x3000000
PQ_PITCH = 1152
NAME = "recurrent_scan__spectral_fnet__glu_gated_bilinear__prompt_kernel"
PX, PSR, PSI, PHR, PHI, PWG, PWU, PWD, POUT, PDBG, PWS = 64, 66, 68, 70, 72, 76, 78, 80, 82, 84, 86
LDS_AUX = 0x20000
LDS_TOTAL = 0x28000
HSTG = 0x14000
VST = 31
ASC = ' sc1'


class G:
    def __init__(s):
        s.L = []
        s.kds = []
        s.uid = 0

    def __call__(s, txt):
        for ln in txt.split("\n"):
            ln = ln.strip()
            if ln:
                s.L.append("  " + ln)

    def label(s, n):
        s.L.append(n + ":")

    def newlabel(s, p="L"):
        s.uid += 1
        return f"{p}_{s.uid}"

    def begin(s, name):
        s.L.append(f".globl {name}\n.p2align 8\n.type {name},@function\n{name}:")

    def kd(s, name, vgpr, sgpr, accum):
        s.kds.append(f""".p2align 6
.amdhsa_kernel {name}
  .amdhsa_next_free_vgpr {vgpr}
  .amdhsa_next_free_sgpr {sgpr}
  .amdhsa_accum_offset {accum}
  .amdhsa_group_segment_fixed_size 0
  .amdhsa_kernarg_size 96
  .amdhsa_user_sgpr_count 2
  .amdhsa_user_sgpr_kernarg_segment_ptr 1
  .amdhsa_system_sgpr_workgroup_id_x 1
.end_amdhsa_kernel""")

    def srd(s, d, ptr, nbytes, const=0, soff=None):
        lo, hi = ptr, ptr + 1
        if soff is not None:
            s(f"s_add_u32 s{d}, s{lo}, {soff}\ns_addc_u32 s{d+1}, s{hi}, 0")
            lo, hi = d, d + 1
        if const > 0:
            s(f"s_add_u32 s{d}, s{lo}, {const:#x}\ns_addc_u32 s{d+1}, s{hi}, 0")
        elif const < 0:
            s(f"s_sub_u32 s{d}, s{lo}, {-const:#x}\ns_subb_u32 s{d+1}, s{hi}, 0")
        elif soff is None:
            s(f"s_mov_b32 s{d}, s{lo}\ns_mov_b32 s{d+1}, s{hi}")
        nb = nbytes if isinstance(nbytes, str) else f"{nbytes:#x}"
        s(f"s_mov_b32 s{d+2}, {nb}\ns_mov_b32 s{d+3}, 0x20000")


def stamp(g, o, idx):
    if o.get("stamp"):
        g(f"s_memtime s[88:89]\ns_waitcnt lgkmcnt(0)\nv_writelane_b32 v{VST}, s88, {idx}")
        if idx == 0:
            g(f"s_memrealtime s[88:89]\ns_waitcnt lgkmcnt(0)\nv_writelane_b32 v{VST}, s88, 30")


def stamp_flush(g, o, idx):
    if not o.get("stamp"):
        return
    lab = g.newlabel("st")
    g("s_waitcnt vmcnt(0)")
    stamp(g, o, idx)
    g(f"s_memrealtime s[88:89]\ns_waitcnt lgkmcnt(0)\nv_writelane_b32 v{VST}, s88, 31")
    g(f"s_cmp_lg_u32 s3, 0\ns_cbranch_scc1 {lab}")
    g.srd(92, PWS, 0x100000, STAMP)
    g("v_lshlrev_b32 v0, 2, v1\ns_lshl_b32 s90, s2, 7\ns_mov_b64 exec, 0xffffffff")
    g(f"buffer_store_dword v{VST}, v0, s[92:95], s90 offen")
    g.label(lab)


def wave_sum(g, regs):
    steps = ["quad_perm:[1,0,3,2] row_mask:0xf", "quad_perm:[2,3,0,1] row_mask:0xf", "row_half_mirror row_mask:0xf",
             "row_mirror row_mask:0xf", "row_bcast:15 row_mask:0xa", "row_bcast:31 row_mask:0xc"]
    for st in steps:
        g("s_nop 1" if len(regs) == 1 else "s_nop 0")
        for r in regs:
            g(f"v_add_f32_dpp v{r}, v{r}, v{r} {st} bank_mask:0xf")
    g("s_nop 1")


def tag_issue(g):
    lab = g.newlabel("tg")
    g.srd(28, PDBG, 256)
    g(f"v_mov_b32 v18, 0\ns_or_b32 s4, s2, s3\ns_cmp_lg_u32 s4, 0\ns_cbranch_scc1 {lab}")
    g("s_memrealtime s[4:5]\ns_waitcnt lgkmcnt(0)\ns_lshl_b32 s4, s4, 3\ns_or_b32 s4, s4, 0x80000000\nv_mov_b32 v19, s4")
    g("buffer_store_dword v19, v18, s[28:31], 0 offen sc1")
    g.label(lab)


def tag_load(g):
    g("buffer_load_dword v30, v18, s[28:31], 0 offen sc1")


def tag_get(g):
    l0, l1 = g.newlabel("tg"), g.newlabel("tgd")
    g("s_mov_b32 s5, 0x80000\nv_mov_b32 v18, 0")
    g.label(l0)
    g(f"v_readfirstlane_b32 s100, v30\ns_sub_u32 s5, s5, 1\ns_cbranch_scc1 {l1}\ns_cmp_lg_u32 s100, 0\ns_cbranch_scc1 {l1}")
    g(f"s_sleep 1\nbuffer_load_dword v30, v18, s[28:31], 0 offen sc1\ns_waitcnt vmcnt(0)\ns_branch {l0}")
    g.label(l1)
    g.srd(28, PWS, 0x8000, FLG)


def publish(g, val, first=False, younger=0):
    lab = g.newlabel("pub")
    g(f"s_waitcnt vmcnt({younger})")
    if first:
        tag_get(g)
    g("s_barrier")
    g(f"s_cmp_lg_u32 s3, 0\ns_cbranch_scc1 {lab}")
    g(f"s_lshl_b32 s4, s43, 7\ns_add_u32 s5, s100, {val}\nv_mov_b32 v18, s4\nv_mov_b32 v19, s5\ns_mov_b64 exec, 1")
    g("buffer_store_dword v19, v18, s[28:31], 0 offen sc1\ns_mov_b64 exec, -1")
    g.label(lab)


def flag_bad(g, vals):
    for k, (vf, thr) in enumerate(vals):
        g(f"v_subrev_u32 v{vf}, s100, v{vf}\nv_subrev_u32 v{vf}, {thr}, v{vf}")
        if k:
            g(f"v_max_u32 v{vals[0][0]}, v{vals[0][0]}, v{vf}")
    g(f"v_cmp_lt_u32 vcc, 7, v{vals[0][0]}")


def poll(g, addrs, sleep=1):
    l0, l1 = g.newlabel("poll"), g.newlabel("polld")
    g(f"s_cmp_lg_u32 s3, 0\ns_cbranch_scc1 {l1}\ns_mov_b32 s5, 0x80000")
    g.label(l0)
    for k, (va, thr) in enumerate(addrs):
        g(f"buffer_load_dword v{18+k}, v{va}, s[28:31], 0 offen sc1")
    g("s_waitcnt vmcnt(0)")
    flag_bad(g, [(18 + k, thr) for k, (va, thr) in enumerate(addrs)])
    g(f"s_sub_u32 s5, s5, 1\ns_cbranch_scc1 {l1}")
    g(f"s_cbranch_vccz {l1}\ns_sleep {sleep}\ns_branch {l0}")
    g.label(l1)
    g("s_barrier")


XP, EP = 2064, 1040
LN_EB = LDS_AUX + 8 * XP
LN_OB = LN_EB + 5 * EP
LN_RB = LN_OB + 4 * EP


def ln_loads(g):
    g("v_lshlrev_b32 v32, 4, v1\nv_sub_u32 v33, 0x7f0, v32")
    g("s_lshl_b32 s44, s43, 2\ns_add_u32 s44, s44, s3")
    g("s_sub_u32 s45, 2048, s44\ns_cmp_eq_u32 s44, 0\ns_cselect_b32 s45, 1024, s45")
    g("s_lshl_b32 s46, s44, 11\ns_lshl_b32 s47, s45, 11")
    g.srd(20, PX, S * D * 2)
    g("buffer_load_dwordx4 v[40:43], v32, s[20:23], s46 offen\nbuffer_load_dwordx4 v[44:47], v33, s[20:23], s46 offen")
    g("buffer_load_dwordx4 v[48:51], v32, s[20:23], s47 offen\nbuffer_load_dwordx4 v[52:55], v33, s[20:23], s47 offen")


def ln_body(g0, o, younger, pfx, fill, warm):
    fill = list(fill)

    class Spr:
        n = 0
        on = False

        def __call__(s, txt):
            for ln in txt.split("\n"):
                g0(ln)
                if s.on and ln.strip().startswith("v_") and "dpp" not in ln and "readlane" not in ln and "v_cmp" not in ln:
                    s.n += 1
                    if s.n % 10 == 0 and fill:
                        for ins in fill.pop(0):
                            g0("s_nop 0" if ins == "@" else ins)

        def __getattr__(s, k):
            return getattr(g0, k)
    g = Spr()
    XA, XB = 56, 72
    g.srd(24, PWS, 0x2000000)
    g("s_mov_b32 s48, 0xffff0000")
    g(f"s_waitcnt vmcnt({younger + 2})")
    stamp(g, o, 1)
    for i in range(8):
        g(f"v_lshlrev_b32 v{XA+2*i}, 16, v{40+i}\nv_and_b32 v{XA+2*i+1}, s48, v{40+i}")
    g(f"s_waitcnt vmcnt({younger})")
    if warm:
        g(f"s_cmp_lg_u32 s3, 3\ns_cbranch_scc1 {pfx}_nowarm")
        warm()
        g.label(pfx + "_nowarm")
    g.on = True
    for i in range(8):
        g(f"v_lshlrev_b32 v{XB+2*i}, 16, v{48+i}\nv_and_b32 v{XB+2*i+1}, s48, v{48+i}")
    MA, MB, VA, VB = 88, 92, 96, 100
    for X, T in ((XA, MA), (XB, MB)):
        g(f"v_pk_add_f32 v[{T}:{T+1}], v[{X}:{X+1}], v[{X+2}:{X+3}]")
        g(f"v_pk_add_f32 v[{T+2}:{T+3}], v[{X+4}:{X+5}], v[{X+6}:{X+7}]")
        for i in (8, 12):
            g(f"v_pk_add_f32 v[{T}:{T+1}], v[{T}:{T+1}], v[{X+i}:{X+i+1}]")
            g(f"v_pk_add_f32 v[{T+2}:{T+3}], v[{T+2}:{T+3}], v[{X+i+2}:{X+i+3}]")
        g(f"v_pk_add_f32 v[{T}:{T+1}], v[{T}:{T+1}], v[{T+2}:{T+3}]")
        g(f"v_add_f32 v{T}, v{T}, v{T+1}")
    wave_sum(g, [MA, MB])
    g(f"v_readlane_b32 s50, v{MA}, 63\nv_readlane_b32 s51, v{MB}, 63\nv_mov_b32 v34, 0x3a800000\ns_nop 0")
    g(f"v_mul_f32 v{MA}, s50, v34\nv_mul_f32 v{MB}, s51, v34\nv_mov_b32 v{MA+1}, v{MA}\nv_mov_b32 v{MB+1}, v{MB}")
    for T in (VA, VB):
        g(f"v_mov_b32 v{T}, 0\nv_mov_b32 v{T+1}, 0")
    for i in range(0, 16, 2):
        for X, M, T in ((XA, MA, VA), (XB, MB, VB)):
            g(f"v_pk_add_f32 v[{T+2}:{T+3}], v[{X+i}:{X+i+1}], v[{M}:{M+1}] neg_lo:[0,1] neg_hi:[0,1]")
        for X, M, T in ((XA, MA, VA), (XB, MB, VB)):
            g(f"v_pk_fma_f32 v[{T}:{T+1}], v[{T+2}:{T+3}], v[{T+2}:{T+3}], v[{T}:{T+1}]")
    g(f"v_add_f32 v{VA}, v{VA}, v{VA+1}\nv_add_f32 v{VB}, v{VB}, v{VB+1}")
    wave_sum(g, [VA, VB])
    g(f"v_readlane_b32 s50, v{VA}, 63\nv_readlane_b32 s51, v{VB}, 63")
    g(f"v_cvt_pk_bf16_f32 v{MA+2}, v{MA}, v{MB}\ns_nop 0")
    g(f"v_mul_f32 v{VA}, s50, v34\nv_mul_f32 v{VB}, s51, v34")
    g(f"v_lshlrev_b32 v{MA}, 16, v{MA+2}\nv_and_b32 v{MB}, s48, v{MA+2}")
    g(f"v_cvt_pk_bf16_f32 v{VA+1}, v{VA}, v{VB}")
    g(f"v_mov_b32 v{MA+1}, v{MA}\nv_mov_b32 v{MB+1}, v{MB}")
    g(f"v_lshlrev_b32 v{VA}, 16, v{VA+1}\nv_and_b32 v{VB}, s48, v{VA+1}")
    g(f"v_add_f32 v{VA}, 0x3727c5ac, v{VA}\nv_add_f32 v{VB}, 0x3727c5ac, v{VB}")
    g(f"v_cvt_pk_bf16_f32 v{VA+1}, v{VA}, v{VB}")
    g(f"v_lshlrev_b32 v{VA}, 16, v{VA+1}\nv_and_b32 v{VB}, s48, v{VA+1}")
    g(f"v_sqrt_f32 v{VA}, v{VA}\nv_sqrt_f32 v{VB}, v{VB}")
    for X, M, PKD in ((XA, MA, 40), (XB, MB, 48)):
        for i in range(8):
            a = X + 2 * i
            g(f"v_pk_add_f32 v[{a}:{a+1}], v[{a}:{a+1}], v[{M}:{M+1}] neg_lo:[0,1] neg_hi:[0,1]")
    g(f"v_cvt_pk_bf16_f32 v{VA+1}, v{VA}, v{VB}")
    g(f"v_lshlrev_b32 v{VA}, 16, v{VA+1}\nv_and_b32 v{VB}, s48, v{VA+1}")
    g(f"v_rcp_f32 v{VA}, v{VA}\nv_rcp_f32 v{VB}, v{VB}")
    for X, PKD in ((XA, 40), (XB, 48)):
        for i in range(8):
            g(f"v_cvt_pk_bf16_f32 v{PKD+i}, v{X+2*i}, v{X+2*i+1}")
    g(f"v_mov_b32 v{VA+1}, v{VA}\nv_mov_b32 v{VB+1}, v{VB}")
    for X, R, PKD in ((XA, VA, 40), (XB, VB, 48)):
        for i in range(8):
            a = X + 2 * i
            g(f"v_lshlrev_b32 v{a}, 16, v{PKD+i}\nv_and_b32 v{a+1}, s48, v{PKD+i}")
        for i in range(8):
            a = X + 2 * i
            g(f"v_pk_mul_f32 v[{a}:{a+1}], v[{a}:{a+1}], v[{R}:{R+1}]")
        for i in range(8):
            g(f"v_cvt_pk_bf16_f32 v{PKD+i}, v{X+2*i}, v{X+2*i+1}")
    g.on = False
    assert not fill
    g(f"s_mul_i32 s49, s3, {XP}\ns_add_u32 s49, s49, {LDS_AUX}")
    g("v_add_u32 v35, s49, v32\nv_add_u32 v36, s49, v33")
    g("ds_write_b128 v35, v[40:43]\nds_write_b128 v36, v[44:47]")
    g(f"ds_write_b128 v35, v[48:51] offset:{4*XP}\nds_write_b128 v36, v[52:55] offset:{4*XP}")
    for X, PKD in ((XA, 40), (XB, 48)):
        for i in range(8):
            a = X + 2 * i
            g(f"v_lshlrev_b32 v{a}, 16, v{PKD+i}\nv_and_b32 v{a+1}, s48, v{PKD+i}")
    g(f"s_mul_i32 s49, s3, {EP}\ns_add_u32 s49, s49, {LN_EB}\nv_add_u32 v37, s49, v32")
    E, O, PK, TM = 104, 120, 136, 140

    def dfold(src, sign):
        op = "v_add_f32" if sign > 0 else "v_sub_f32"
        g(f"s_nop 1\nv_mov_b32_dpp v{TM+8}, v{src+8} wave_shr:1 row_mask:0xf bank_mask:0xf bound_ctrl:0")
        for j in range(1, 8):
            g(f"{op} v{TM+j}, v{src+j}, v{src+16-j}")
        g(f"{op} v{TM}, v{src}, v{TM+8}")
        for j in range(4):
            g(f"v_cvt_pk_bf16_f32 v{PK+j}, v{TM+2*j}, v{TM+2*j+1}")

    def even_row(src, lds_off, own):
        dfold(src, +1)
        g(f"ds_write_b128 v37, v[{PK}:{PK+3}] offset:{lds_off}")
        g(f"v_pk_add_f32 v[{TM}:{TM+1}], v[{src}:{src+1}], v[{src+2}:{src+3}]")
        for i in range(4, 16, 2):
            g(f"v_pk_add_f32 v[{TM}:{TM+1}], v[{TM}:{TM+1}], v[{src+i}:{src+i+1}]")
        g(f"v_sub_f32 v{TM}, v{TM}, v{TM+1}")
        wave_sum(g, [TM])
        g("s_mov_b32 exec_lo, 0\ns_mov_b32 exec_hi, 0x80000000")
        if own:
            g(f"s_lshl_b32 s50, s3, 2\ns_add_u32 s50, s50, {LN_RB}\nv_mov_b32 v{TM+2}, s50")
            g(f"ds_write_b32 v{TM+2}, v{src+8}\nds_write_b32 v{TM+2}, v{TM} offset:16")
        else:
            g(f"v_mov_b32 v{TM+2}, 0\ns_mov_b32 s50, {REC + 256*128:#x}")
            g(f"buffer_store_dword v{src+8}, v{TM+2}, s[24:27], s50 offen sc1\nbuffer_store_dword v{TM}, v{TM+2}, s[24:27], s50 offen offset:16 sc1")
        g("s_mov_b64 exec, -1")

    lz, lj, ld = pfx + "_pair0", pfx + "_join", pfx + "_lnd"
    g(f"s_cmp_eq_u32 s44, 0\ns_cbranch_scc1 {lz}")
    for i in range(0, 16, 2):
        g(f"v_pk_add_f32 v[{O+i}:{O+i+1}], v[{XA+i}:{XA+i+1}], v[{XB+i}:{XB+i+1}] neg_lo:[0,1] neg_hi:[0,1]")
    for i in range(0, 16, 2):
        g(f"v_pk_add_f32 v[{E+i}:{E+i+1}], v[{XA+i}:{XA+i+1}], v[{XB+i}:{XB+i+1}]")
    dfold(O, -1)
    g(f"ds_write_b128 v37, v[{PK}:{PK+3}] offset:{LN_OB - LN_EB}")
    even_row(E, 0, True)
    g(f"s_branch {lj}")
    g.label(lz)
    even_row(XA, 0, True)
    even_row(XB, 4 * EP, False)
    for j in range(4):
        g(f"v_mov_b32 v{PK+j}, 0")
    g(f"ds_write_b128 v37, v[{PK}:{PK+3}] offset:{LN_OB - LN_EB}")
    g.label(lj)
    g("v_and_b32 v40, 3, v1\nv_lshrrev_b32 v49, 4, v1\nv_bfe_u32 v50, v1, 2, 2")
    g(f"s_mov_b32 s49, {LDS_AUX}\ns_cmp_eq_u32 s3, 1\ns_cselect_b32 s49, {LDS_AUX + 4*XP}, s49\ns_cselect_b32 s48, 0x200000, 0")
    g(f"s_lshr_b32 s50, s43, 6\ns_lshl_b32 s51, s50, 19\ns_add_u32 s48, s48, s51\ns_add_u32 s53, s48, 0x40000\ns_lshl_b32 s50, s50, 18")
    g(f"s_add_u32 s46, s50, {XEE:#x}\ns_add_u32 s47, s50, {XOO:#x}\ns_mov_b32 s51, {XP}\ns_mov_b32 s52, 1024\ns_cmp_eq_u32 s3, 2")
    g(f"s_cselect_b32 s49, {LN_EB}, s49\ns_cselect_b32 s51, {EP}, s51\ns_cselect_b32 s52, {LN_OB - LN_EB}, s52\ns_cselect_b32 s48, s46, s48\ns_cselect_b32 s53, s47, s53")
    g("s_and_b32 s50, s43, 63\ns_lshl_b32 s50, s50, 8\nv_and_b32 v46, 15, v1\nv_lshlrev_b32 v46, 4, v46\nv_lshl_add_u32 v46, v49, 14, v46\nv_add_u32 v46, s50, v46")
    g("v_mul_lo_u32 v53, v40, s51\nv_lshl_add_u32 v53, v49, 6, v53\nv_lshl_add_u32 v53, v50, 3, v53\nv_add_u32 v53, s49, v53\nv_add_u32 v54, s52, v53")
    g("v_mov_b32 v18, 0\ns_waitcnt lgkmcnt(0)\ns_barrier")
    stamp(g, o, 2)
    tag_load(g)
    g(f"s_cmp_eq_u32 s3, 3\ns_cbranch_scc1 {ld}")
    for n in range(8):
        g(f"ds_read2_b64 v[{56+4*n}:{59+4*n}], v{53 + (n >> 2)} offset0:{(n&3)*32} offset1:{(n&3)*32+4}")
    for n in range(8):
        sr = 48 if n < 4 else 53
        g(f"s_waitcnt lgkmcnt({7-n})\nbuffer_store_dwordx4 v[{56+4*n}:{59+4*n}], v46, s[24:27], s{sr} offen sc1\ns_add_u32 s{sr}, s{sr}, 0x10000")
    g(f"s_cmp_lg_u32 s3, 2\ns_cbranch_scc1 {ld}")
    g(f"v_lshlrev_b32 v51, 2, v1\nv_add_u32 v52, {LN_RB}, v51\ns_lshl_b32 s52, s43, 7\ns_add_u32 s52, s52, {REC:#x}\ns_mov_b64 exec, 0xff")
    g("ds_read_b32 v90, v52\ns_waitcnt lgkmcnt(0)\nbuffer_store_dword v90, v51, s[24:27], s52 offen sc1\ns_mov_b64 exec, -1")
    g(f"s_cmp_lg_u32 s43, 0\ns_cbranch_scc1 {ld}")
    g("v_lshrrev_b32 v49, 2, v1\nv_and_b32 v50, 3, v1\nv_lshlrev_b32 v51, 4, v1")
    g("v_lshlrev_b32 v52, 6, v49\nv_lshl_add_u32 v52, v50, 3, v52")
    g(f"v_add_u32 v52, {LN_EB + 4*EP}, v52")
    g("ds_read2_b64 v[92:95], v52 offset0:0 offset1:4")
    g(f"s_mov_b32 s52, {XEEX:#x}")
    g("s_waitcnt lgkmcnt(0)\nbuffer_store_dwordx4 v[92:95], v51, s[24:27], s52 offen sc1")
    g.label(ld)


class Core:
    NS = 4

    def __init__(s, g, MF, nh, SUBS, act_first, wpitch, xblocks=0, span=0.85, wsrd=12, vW=13, sW=(33, 35), tch=False, dact=False):
        s.g, s.MF, s.nh, s.SUBS, s.act_first, s.wpitch = g, MF, nh, SUBS, act_first, wpitch
        s.dact = dact
        s.NF = (8 if dact else 4) * nh
        s.nA = MF if dact else MF // 2
        s.gact = (4 if dact else 2) * MF * 1024
        s.actb = 0 if dact else s.gact
        s.subb = s.actb + nh * 8192
        s.slotb = s.subb * SUBS
        s.ringb = s.slotb * s.NS
        s.xb = xblocks
        s.xbase = s.ringb
        assert s.ringb + xblocks * 1024 <= LDS_AUX
        s.pA, s.pW = s.nA * SUBS, 2 * nh * SUBS
        s.tch = tch
        s.wrap = None
        s.rot2 = False
        s.aperm = False
        s.wpol = ''
        s.ndma = s.pA + s.pW
        s.span = span
        s.acc = {}
        v, a = 32, 128
        order = [(j, i) for i in range(MF) for j in range(s.NF)] if dact else [(j, i) for j in range(s.NF) for i in range(MF)]
        for j, i in order:
            if True:
                if v + 4 <= 256:
                    s.acc[j, i] = ("v", v); v += 4
                else:
                    s.acc[j, i] = ("a", a); a += 4
        if s.xb:
            s.accx = v; v += 4
        s.vtop = v
        s.nfr = (0 if dact else MF) + s.NF + (2 if s.xb else 0)
        s.fper = s.nfr * 4 * SUBS
        assert 2 * s.fper <= 128
        s.vArd = [2, 3]
        s.vWrd = [[4, 5, 6, 7], [8, 9, 10, 11]]
        s.vAdma = 12
        s.vWdma = [vW + k for k in range(2 * nh)]
        s.vX, s.vXW = 17, (22, 23)
        s.wsrd = wsrd
        s.sAoff, s.sMA, s.sCnt = 32, 34, 36
        s.sWoff, s.sMW = sW

    def accr(s, j, i):
        k, r = s.acc[j, i]
        return f"{k}[{r}:{r+3}]"

    def fr(s, st, u, n):
        return st * s.fper + u * s.nfr * 4 + n * 4

    def fw(s, st, u, j):
        return s.fr(st, u, (0 if s.dact else s.MF) + j)

    def fa(s, p, u, i):
        if s.dact:
            return 128 + ((p & 3) * s.SUBS + u) * s.MF * 4 + i * 4
        return s.fr(p & 1, u, i)

    def setup_w(s):
        g = s.g
        g(f"s_mul_i32 s{s.sMW}, s3, {s.nh*2048}\ns_add_u32 s{s.sMW}, s{s.sMW}, {s.actb}\ns_mov_b32 s{s.sWoff}, 0")
        g("v_lshrrev_b32 v19, 4, v1\nv_and_b32 v20, 15, v1")
        g(f"s_mov_b32 s40, {s.wpitch}\ns_mul_i32 s39, s3, {8*s.wpitch}")
        for u in range(2):
            g(f"v_add_u32 v21, {4*u}, v19")
            g("v_mul_lo_u32 v18, v21, s40\nv_add_u32 v18, s39, v18")
            g("v_lshlrev_b32 v21, 1, v21\nv_xor_b32 v21, v21, v20\nv_lshl_add_u32 v18, v21, 4, v18")
            for h in range(s.nh):
                g(f"v_add_u32 v{s.vWdma[2*h+u]}, {4096 - (2*h+u)*1024}, v18")

    def setup_r(s, xsel=None):
        g = s.g
        g("v_lshlrev_b32 v18, 4, v1")
        if s.dact:
            assert s.ringb <= 65536 and s.nh == 1
            g(f"s_mul_i32 s39, s3, {s.nA*1024}\nv_add_u32 v18, s39, v18\ns_mov_b32 s{s.sAoff}, 0")
            for i in range(4):
                g(f"s_add_u32 s39, s58, {i}\ns_and_b32 s39, s39, 3\ns_lshl_b32 s39, s39, 10\nv_add_u32 v{12+i}, s39, v18")
            g("v_bfe_u32 v19, v1, 2, 3\nv_lshrrev_b32 v20, 5, v1\nv_lshlrev_b32 v20, 11, v20\nv_lshl_add_u32 v20, v19, 8, v20")
            g("v_and_b32 v21, 3, v1\nv_lshl_add_u32 v20, v21, 3, v20\nv_lshl_add_u32 v20, v19, 5, v20")
            for j in range(8):
                g(f"v_xor_b32 v{4+j}, {32*j}, v20")
            return
        g(f"s_mul_i32 s39, s37, {s.MF*1024}\nv_add_u32 v{s.vArd[0]}, s39, v18\nv_add_u32 v{s.vArd[1]}, {2*s.slotb}, v{s.vArd[0]}")
        g(f"s_mul_i32 s{s.sMA}, s3, {s.nA*1024}\ns_mov_b32 s{s.sAoff}, 0")
        if s.aperm:
            g("v_bfe_u32 v19, v1, 2, 2\nv_lshlrev_b32 v19, 8, v19\nv_lshrrev_b32 v20, 4, v1\nv_lshl_add_u32 v19, v20, 6, v19\nv_and_b32 v20, 3, v1")
            g(f"v_lshl_add_u32 v19, v20, 4, v19\nv_add_u32 v{s.vAdma}, s{s.sMA}, v19")
        else:
            g(f"v_add_u32 v{s.vAdma}, s{s.sMA}, v18")
        if s.xb:
            g(f"v_add_u32 v{s.vX}, {s.xbase}, v18")
        g("v_bfe_u32 v19, v1, 2, 3")
        g(f"v_lshrrev_b32 v20, 5, v1\nv_mul_u32_u24 v20, {s.nh*2048}, v20\nv_lshl_add_u32 v20, v19, 8, v20")
        g(f"v_and_b32 v21, 3, v1\nv_lshl_add_u32 v20, v21, 3, v20\nv_add_u32 v20, {s.actb}, v20")
        g("s_lshl_b32 s39, s38, 2")
        for jj in range(4):
            g(f"s_add_u32 s40, s39, {jj}\nv_xor_b32 v21, s40, v19")
            g(f"v_lshl_add_u32 v{s.vWrd[0][jj]}, v21, 5, v20\nv_add_u32 v{s.vWrd[1][jj]}, {2*s.slotb}, v{s.vWrd[0][jj]}")
        if s.xb:
            g(f"s_and_b32 s40, {xsel}, 3\ns_add_u32 s40, s40, s39\nv_xor_b32 v21, s40, v19\nv_lshl_add_u32 v{s.vXW[0]}, v21, 5, v20")
            g(f"s_lshr_b32 s40, {xsel}, 2\ns_lshl_b32 s40, s40, 11\nv_add_u32 v{s.vXW[0]}, s40, v{s.vXW[0]}")
            g(f"v_add_u32 v{s.vXW[1]}, {2*s.slotb}, v{s.vXW[0]}")

    def dma_a(s, slot):
        it = []
        for u in range(s.SUBS):
            if s.dact:
                for i in range(s.MF):
                    r = s.fa(slot, u, i)
                    it.append([f"buffer_load_dwordx4 a[{r}:{r+3}], v{12+i}, s[8:11], s{s.sAoff} offen{ASC}"])
                it[-1].append(f"s_add_u32 s{s.sAoff}, s{s.sAoff}, {s.gact}")
                continue
            first = [f"s_add_u32 m0, s{s.sMA}, {slot * s.slotb + u * s.subb}", "@"]
            for i in range(s.nA):
                it.append(first + [f"buffer_load_dwordx4 v{s.vAdma}, s[8:11], s{s.sAoff} offen offset:{i*1024}{ASC} lds"])
                first = []
            it[-1].append(f"s_add_u32 s{s.sAoff}, s{s.sAoff}, {s.gact}")
        return it

    def dma_w(s, slot):
        it = []
        for u in range(s.SUBS):
            first = [f"s_add_u32 m0, s{s.sMW}, {slot * s.slotb + u * s.subb}", "@"]
            for h in range(s.nh):
                for uu in range(2):
                    r = s.wsrd + 4 * h
                    it.append(first + [f"buffer_load_dwordx4 v{s.vWdma[2*h+uu]}, s[{r}:{r+3}], s{s.sWoff} offen offset:{(2*h+uu)*1024}{s.wpol} lds"])
                    first = []
            it[-1].append(f"s_add_u32 s{s.sWoff}, s{s.sWoff}, {32*s.wpitch}")
        return it

    def touch(s):
        return [["buffer_load_dword v29, v26, s[24:27], 0 offen", "v_add_u32 v26, s62, v26"]] if s.tch else []

    def group(s, p):
        a, w = s.dma_a(p + 3 if s.dact else p), s.dma_w(p)
        if s.wrap:
            if p == 0:
                w = [[f"s_lshl_b32 s{s.sWoff}, s99, 18", f"s_add_u32 s{s.sWoff}, s{s.sWoff}, s96"]] + w
                w = w + [["buffer_load_dword v30, v26, s[28:31], 0 offen sc1"]]
            if p == 1:
                a = [[f"s_lshl_b32 s{s.sAoff}, s99, 16"]] + a
            if p == 3:
                a = [["ds_read_b32 v17, v16"]] + a
        if s.rot2 and p == 1:
            w = w + [["buffer_load_dword v30, v28, s[28:31], 0 offen sc1"]]
        return s.touch() + a + w

    def reads(s, slot, st):
        it = []
        hi = slot >> 1
        for u in range(s.SUBS):
            if s.dact:
                for j in range(s.NF):
                    r = s.fw(st, u, j)
                    for half in range(2):
                        it.append([f"ds_read_b64_tr_b16 a[{r+2*half}:{r+2*half+1}], v{4+j} offset:{slot*s.slotb + u*s.subb + half*4096}"])
                continue
            base = (slot & 1) * s.slotb + u * s.subb
            wl, al = [], []
            for j in range(s.NF):
                h, jj = divmod(j, 4)
                r = s.fr(st, u, s.MF + j)
                for half in range(2):
                    wl.append(f"ds_read_b64_tr_b16 a[{r+2*half}:{r+2*half+1}], v{s.vWrd[hi][jj]} offset:{base + h*2048 + half*2*s.nh*2048}")
            for i in range(s.MF):
                r = s.fr(st, u, i)
                al.append(f"ds_read_b128 a[{r}:{r+3}], v{s.vArd[hi]} offset:{base + i*1024}")
            if s.xb:
                r = s.fr(st, u, s.MF + s.NF)
                al.append(f"ds_read_b128 a[{r}:{r+3}], v{s.vX}")
                for half in range(2):
                    wl.append(f"ds_read_b64_tr_b16 a[{r+4+2*half}:{r+5+2*half}], v{s.vXW[hi]} offset:{base + half*2*s.nh*2048}")
            while wl or al:
                if al: it.append([al.pop(0)])
                if wl: it.append([wl.pop(0)])
                if wl: it.append([wl.pop(0)])
            if s.xb:
                it.append([f"v_add_u32 v{s.vX}, 1024, v{s.vX}"] + ([f"v_and_or_b32 v{s.vX}, v{s.vX}, s63, v29"] if s.rot2 else []))
        return it

    def mfma1(s, p, j, i):
        a, w = s.fa(p, 0, i), s.fw(p & 1, 0, j)
        A, W = f"a[{a}:{a+3}]", f"a[{w}:{w+3}]"
        x, y = (A, W) if s.act_first else (W, A)
        return f"v_mfma_f32_16x16x32_bf16 {s.accr(j,i)}, {x}, {y}, {s.accr(j,i)}"

    def final_phase(s, vm, blocks, lag, pre_items=()):
        g = s.g
        g(f"s_waitcnt vmcnt({vm}) lgkmcnt(0)" if vm is not None else "s_waitcnt lgkmcnt(0)")
        g("s_barrier")
        pre = [ins for grp in pre_items for ins in grp]
        for b, (tiles, _) in enumerate(blocks):
            work = list(blocks[b - lag][1]) if b >= lag else []
            if b < lag and pre:
                k = -(-len(pre) // (lag - b))
                work, pre = ["s_nop 0" if x == "@" else x for x in pre[:k]], pre[k:]
            per = -(-len(work) // len(tiles))
            for (j, i) in tiles:
                g(s.mfma1(3, j, i))
                for ins in work[:per]:
                    g(ins)
                work = work[per:]
        g("s_nop 7")
        for b in range(len(blocks) - lag, len(blocks)):
            for ins in blocks[b][1]:
                g(ins)

    def mfmas(s, p, zero):
        out = []
        st = p & 1
        for u in range(s.SUBS):
            z = zero and u == 0
            for j in range(s.NF):
                ii = range(s.MF) if j % 2 == 0 else range(s.MF - 1, -1, -1)
                for i in ii:
                    a, w = s.fa(p, u, i), s.fw(st, u, j)
                    A, W = f"a[{a}:{a+3}]", f"a[{w}:{w+3}]"
                    x, y = (A, W) if s.act_first else (W, A)
                    out.append(f"v_mfma_f32_16x16x32_bf16 {s.accr(j,i)}, {x}, {y}, {'0' if z else s.accr(j,i)}")
            if s.xb:
                a = s.fr(st, u, s.MF + s.NF)
                c = f"v[{s.accx}:{s.accx+3}]"
                out.append(f"v_mfma_f32_16x16x32_bf16 {c}, a[{a}:{a+3}], a[{a+4}:{a+7}], {'0' if z else c}")
        return out

    def flat(s, items):
        for grp in items:
            for ins in grp:
                s.g("s_nop 0" if ins == "@" else ins)

    def phase(s, p, vm, dma, rd=True, zero=False, tail=None, pre=None, preb=None):
        g = s.g
        st = p & 1
        g(f"s_waitcnt vmcnt({vm}) lgkmcnt(0)" if vm is not None else "s_waitcnt lgkmcnt(0)")
        if preb:
            preb()
        g("s_barrier")
        if pre:
            pre()
        rdl = s.reads((p + 1) % s.NS, st ^ 1) if rd else []
        fill = []
        nr, nd = len(rdl), len(dma)
        ri = di = 0
        while ri < nr or di < nd:
            if di < nd and (ri >= nr or di * nr <= ri * nd):
                fill.append(dma[di]); di += 1
            else:
                fill.append(rdl[ri]); ri += 1
        flat = []
        for grp in fill:
            cur = []
            for ins in grp:
                if ins == "@":
                    flat.append(cur); cur = []
                else:
                    cur.append(ins)
            flat.append(cur)
        mf = s.mfmas(p, zero)
        n = len(mf)
        lim = max(1, int(n * s.span))
        pos = {}
        for idx, grp in enumerate(flat):
            pos.setdefault(min(n - 2, idx * lim // len(flat)), []).append(grp)
        for k, m in enumerate(mf):
            g(m)
            grps = pos.get(k, [])
            for gi, grp in enumerate(grps):
                if gi and grps[gi-1] and grps[gi-1][-1].startswith("s_add_u32 m0"):
                    g("s_nop 0")
                for ins in grp:
                    g(ins)
            if tail and k == n - 2:
                g(tail)

    def start(s, nT=0, touch=None, chk=None, late=None, extra=()):
        g = s.g
        extra = list(extra)
        if s.dact:
            for p in range(3):
                k = -(-len(extra) // (3 - p))
                grp, extra = extra[:k], extra[k:]
                s.phase(p, 0 if p == 2 else None, grp, zero=(p == 0), pre=(late if p == 2 else None))
            s.phase(3, 0, s.restart(), rd=False, preb=chk[0], pre=chk[1])
            return
        for slot in range(s.NS):
            s.flat(s.dma_a(slot))
        if touch:
            touch()
        g(f"s_waitcnt vmcnt({3*s.pA + nT}) lgkmcnt(0)\ns_barrier")
        s.flat(s.reads(0, 0))
        vms = [2 * s.pA + nT, s.pA + nT + s.ndma, nT + 2 * s.ndma, 2 * s.ndma]
        for p in range(4):
            s.phase(p, vms[p], s.group(p), zero=(p == 0))

    def restart(s):
        it = [[f"s_lshl_b32 s{s.sWoff}, s99, 18", f"s_add_u32 s{s.sWoff}, s{s.sWoff}, s96", f"s_lshl_b32 s{s.sAoff}, s99, 16"]]
        for p in range(3):
            it += s.dma_w(p) + s.dma_a(p)
        return it + s.dma_w(3)

    def loop(s, cnt, name, head=None, chk=None):
        g = s.g
        g(f"s_mov_b32 s{s.sCnt}, {cnt}")
        g.label(name)
        if head:
            head()
        for p in range(4):
            s.phase(p, 2 * s.ndma, s.group(p), preb=(chk.get(p) if isinstance(chk, dict) else chk if p == 0 else None),
                    tail=(f"s_sub_u32 s{s.sCnt}, s{s.sCnt}, 1\ns_cmp_lg_u32 s{s.sCnt}, 0" if p == 3 else None))
        g(f"s_cbranch_scc1 {name}")

    def last(s, fills=None, pres=None, flfirst=False, final=None):
        fills = fills or [[], [], [], []]
        pres = pres or [None] * 4
        cnt = lambda f: sum(1 for grp in f for ins in grp if ins.startswith("buffer_"))
        if s.dact:
            fills = [fills[0] + s.dma_a(3) if flfirst else s.dma_a(3) + fills[0]] + list(fills[1:])
        n = [cnt(f) for f in fills]
        vms = [2 * s.ndma, s.ndma + n[0], n[0] + n[1], ((0 if flfirst else n[0] - s.pA) + n[1] + n[2]) if s.dact else None]
        for p in range(4):
            if p == 3 and final:
                s.final_phase(vms[3], final[0], final[1], fills[3])
            else:
                s.phase(p, vms[p], fills[p], rd=(p < 3), pre=pres[p])


def accv(g, core, j, i, tmp):
    k, r = core.acc[j, i]
    if k == "v":
        return r
    for x in range(4):
        g(f"v_accvgpr_read_b32 v{tmp+x}, a{r+x}")
    return tmp


def warm_lines(g, ptr, nbytes, first, rl, pitch, n, step):
    g.srd(8, ptr, nbytes)
    g(f"v_add_u32 v26, {first}, v1\nv_lshrrev_b32 v27, {rl}, v26\nv_lshlrev_b32 v28, {rl}, v27\nv_sub_u32 v26, v26, v28")
    g(f"s_mov_b32 s4, {pitch}\nv_mul_lo_u32 v27, v27, s4\nv_lshl_add_u32 v26, v26, 7, v27")
    for k in range(n):
        g("buffer_load_dword v29, v26, s[8:11], 0 offen")
        if k + 1 < n:
            g(f"v_add_u32 v26, {(step >> rl) * pitch}, v26")


def cnt_vm(items):
    return sum(1 for grp in items for ins in grp if ins.startswith("buffer_"))


def k2_sids(g):
    g("s_and_b32 s56, s41, 1\ns_lshl_b32 s56, s56, 2\ns_and_b32 s57, s42, 3\ns_add_u32 s56, s56, s57\ns_lshr_b32 s57, s42, 2\ns_lshr_b32 s58, s41, 1")


def slab_srd(g):
    g(f"s_lshl_b32 s4, s56, 3\ns_add_u32 s4, s4, s57\ns_mul_i32 s4, s4, {4*49152}\ns_lshl_b32 s5, s3, 12\ns_add_u32 s4, s4, s5")
    g.srd(24, PWS, 4 * 49152, PART, "s4")


def n_early(o):
    return (12 if o.get("sent", 0) else 0) + (1 if o.get("codepf", 1) else 0)


def early(g, o):
    if o.get("codepf", 1):
        g("s_getpc_b64 s[4:5]\ns_and_b32 s24, s4, 0xffffff00\ns_mov_b32 s25, s5\ns_mov_b32 s26, 0xd000\ns_mov_b32 s27, 0x20000")
        g("s_lshl_b32 s4, s42, 2\ns_add_u32 s4, s4, s3\ns_lshl_b32 s4, s4, 9\nv_lshlrev_b32 v26, 7, v1\nv_add_u32 v26, s4, v26\ns_mov_b64 exec, 15")
        g("buffer_load_dword v29, v26, s[24:27], 0 offen\ns_mov_b64 exec, -1")
    if o.get("sent", 0):
        k2_sids(g)
        slab_srd(g)
        g("s_mul_i32 s4, s58, 49152\nv_mov_b32 v36, -1\nv_mov_b32 v37, -1\nv_mov_b32 v38, -1\nv_mov_b32 v39, -1")
        for i in range(3):
            for k in range(4):
                g(f"buffer_store_dwordx4 v[36:39], v32, s[24:27], s4 offen offset:{k*1024} sc1")
            g("s_add_u32 s4, s4, 16384")


def k2_ids(g, o):
    k2_sids(g)
    c2 = Core(g, MF=4, nh=1, SUBS=1, act_first=False, wpitch=D * 2, wsrd=20, vW=24, sW=(59, 60), span=o.get("span2", 0.9), dact=True)
    c2.wpol = o.get('w2pol', '')
    c2.setup_w()
    g(f"s_mul_i32 s96, s58, {896 * D * 2}")
    g("s_sub_u32 s98, s42, 4\ns_max_i32 s98, s98, 0\ns_lshr_b32 s98, s98, 2")
    g("s_lshl_b32 s59, s98, 18\ns_add_u32 s59, s59, s96")
    c2.wrap = True
    g(f"s_lshl_b32 s44, s57, 8\ns_sub_u32 s45, {F*D*2 + 4096}, s44")
    g.srd(20, PWD, "s45", -4096, "s44")
    return c2


XS, PS, AX, AP, RB, GO = 160, 164, 168, 176, 184, 188


def spin(g, va, thr, first_loaded, vf=30, lane=None):
    l0, l1, l2 = g.newlabel("sp"), g.newlabel("spd"), g.newlabel("spc")
    if first_loaded:
        g(f"s_branch {l2}")
    g.label(l0)
    g(f"buffer_load_dword v{vf}, v{va}, s[28:31], 0 offen sc1\ns_waitcnt vmcnt(0)")
    g.label(l2)
    flag_bad(g, [(vf, thr)])
    if lane:
        g(f"s_lshl_b32 s4, 1, {lane}\ns_and_b32 vcc_lo, vcc_lo, s4\ns_mov_b32 vcc_hi, 0")
    g(f"s_sub_u32 s101, s101, 1\ns_cbranch_scc1 {l1}\ns_cbranch_vccnz {l0}")
    g.label(l1)


def k2_rows(g):
    g("v_lshrrev_b32 v18, 4, v1\nv_and_b32 v19, 15, v1\ns_cmp_ge_u32 s56, 4\ns_cselect_b64 s[62:63], -1, 0\nv_mov_b32 v28, 0x400")
    for n in range(4):
        g(f"v_add_u32 v20, {4*n}, v18\nv_xor_b32 v21, v20, v19\nv_lshlrev_b32 v21, 4, v21\nv_add_u32 v21, {4096 - n*1024}, v21\nv_add_u32 v20, s54, v20")
        g(f"v_cmp_eq_u32 vcc, v20, v28\nv_sub_u32 v{XS+n}, 0xc00, v20\nv_and_b32 v{PS+n}, 0x3ff, v20\nv_cndmask_b32 v{XS+n}, v20, v{XS+n}, s[62:63]")
        g(f"v_cndmask_b32 v{XS+n}, v{XS+n}, v28, vcc\nv_cndmask_b32 v{PS+n}, v{PS+n}, v28, vcc")
        g(f"v_lshlrev_b32 v{XS+n}, 11, v{XS+n}\nv_lshl_add_u32 v{GO+n}, v19, 4, v{XS+n}\nv_add_u32 v{XS+n}, v{XS+n}, v21")
        g(f"v_mul_u32_u24 v{PS+n}, {PQ_PITCH}, v{PS+n}\nv_add_u32 v{PS+n}, v{PS+n}, v21")


def tile_pick(g, off=0):
    l0, l1, l2, l3 = g.newlabel("tp"), g.newlabel("tpd"), g.newlabel("tpc"), g.newlabel("tpx")
    g(f"s_cmp_lg_u32 s3, 0\ns_cbranch_scc1 {l3}")
    g(f"s_cmp_eq_u32 s47, 0x7f\ns_cbranch_scc1 {l1}\ns_branch {l2}")
    g.label(l0)
    g("buffer_load_dword v30, v26, s[28:31], 0 offen sc1\ns_waitcnt vmcnt(0)")
    g.label(l2)
    flag_bad(g, [(30, 2)])
    g("s_sub_u32 s101, s101, 1\ns_cselect_b32 s4, 0, vcc_lo\ns_andn2_b32 s4, 0x7f, s4\ns_or_b32 s47, s47, s4")
    g(f"s_and_b32 s4, s47, s97\ns_cbranch_scc0 {l0}")
    g.label(l1)
    g(f"s_and_b32 s4, s47, s97\ns_ff1_i32_b32 s4, s4\ns_bitset0_b32 s97, s4\nv_mov_b32 v17, s4\nds_write_b32 v16, v17 offset:{off}\ns_waitcnt lgkmcnt(0)")
    g.label(l3)


def tile_get(g):
    g("ds_read_b32 v17, v16 offset:4\ns_waitcnt lgkmcnt(0)\nv_readfirstlane_b32 s99, v17")


def tile_dma(g, srd, va, off, sc, one=False):
    g("\n".join([f"s_add_u32 m0, s55, {off}", "s_nop 0"] +
                [f"buffer_load_dwordx4 v{va+n}, s[{srd}:{srd+3}], 0 offen offset:{n*1024}{sc} lds" for n in range(4)]))


def k2_setup(g, o, c2):
    g("s_nop 1")
    c2.setup_r()
    g(f"s_mul_i32 s44, s56, {112*16384}\ns_mul_i32 s45, s58, {28*16384}\ns_add_u32 s44, s44, s45")
    g.srd(8, PWS, 28 * 16384, H, "s44")
    g("s_mul_i32 s44, s56, 28\ns_mul_i32 s45, s58, 7\ns_add_u32 s44, s44, s45")
    g("v_min_u32 v26, 6, v1\nv_add_u32 v26, s44, v26\nv_lshlrev_b32 v26, 7, v26")
    g("s_mov_b32 s101, 0x80000\ns_mov_b32 s47, 0")
    g("s_mov_b32 s97, 0x7f\nv_mov_b32 v30, 0\nv_mov_b32 v16, 0x27ff0\ns_cmp_eq_u32 s3, 0\ns_cselect_b32 s44, 0, 0x80000000\nv_or_b32 v26, s44, v26")


class Rec(G):
    def __init__(s, g):
        s.g0, s.items = g, []

    def __call__(s, txt):
        s.items.append([ln.strip() for ln in txt.split("\n") if ln.strip()])


def k2_tail_setup(g0, o):
    g = Rec(g0)
    g("s_mul_i32 s55, s3, 12288\ns_add_u32 s55, s55, 0x8000")
    g("s_lshl_b32 s54, s56, 8\ns_lshl_b32 s44, s3, 6\ns_add_u32 s54, s54, s44\ns_lshl_b32 s44, s58, 4\ns_add_u32 s54, s54, s44")
    k2_rows(g)
    g(f"s_lshl_b32 s61, s57, 8\ns_sub_u32 s45, {S*D*2 + 4096}, s61")
    g.srd(12, PX, "s45", -4096, "s61")
    tile_dma(g, 12, XS, 0, "", one=True)
    g("s_sub_u32 s48, 1794, s61\ns_cmp_ge_u32 s57, 4\ns_cselect_b32 s44, s48, s61\ns_cselect_b32 s48, 248, 0\ns_cselect_b32 s49, -1, 0")
    g(f"s_sub_u32 s45, {1025*PQ_PITCH + 4096}, s44")
    g.srd(12, PWS, "s45", PP - 4096, "s44")
    g.srd(16, PWS, "s45", QQ - 4096, "s44")
    g("s_xor_b32 s62, s62, s49\ns_cmp_lg_u32 s62, 0\ns_cselect_b32 s62, 1.0, -1.0\ns_mov_b32 s63, s62")
    g("v_and_b32 v18, 15, v1\nv_lshrrev_b32 v19, 5, v1\nv_xor_b32 v19, v19, v18")
    g("v_lshlrev_b32 v19, 4, v19\nv_lshl_add_u32 v19, v18, 8, v19\nv_bfe_u32 v20, v1, 4, 1\nv_lshl_add_u32 v19, v20, 3, v19")
    for j in range(8):
        g(f"v_xor_b32 v20, {32*j}, v19\nv_add_u32 v{AX+j}, s55, v20")
        g(f"v_xor_b32 v20, s48, v20\nv_add_u32 v{AP+j}, s55, v20")
    g("v_lshrrev_b32 v18, 4, v1\nv_and_b32 v19, 15, v1")
    for n in range(4):
        g(f"v_add_u32 v21, {4*n}, v18\nv_xor_b32 v20, v21, v19\nv_lshlrev_b32 v20, 4, v20")
        g(f"v_lshl_add_u32 v20, v21, 8, v20\nv_add_u32 v{RB+n}, s55, v20")
    g(f"s_lshl_b32 s44, s56, 3\ns_add_u32 s44, s44, s57\ns_mul_i32 s44, s44, {4*49152}\ns_lshl_b32 s45, s3, 12\ns_add_u32 s44, s44, s45")
    g.srd(24, PWS, 4 * 49152, PART, "s44")
    for i in range(1, 4):
        g(f"s_add_u32 s{49+i}, s58, {i}\ns_and_b32 s{49+i}, s{49+i}, 3\ns_mul_i32 s{49+i}, s{49+i}, 49152\ns_add_u32 s{49+i}, s{49+i}, {(i-1)*16384}")
    g("s_mul_i32 s53, s58, 49152\nv_lshlrev_b32 v29, 4, v1")
    g("v_and_b32 v22, 31, v1\nv_add_u32 v22, 224, v22\nv_lshlrev_b32 v22, 7, v22")
    g("s_cmp_lt_u32 s42, 4\ns_cselect_b32 s44, 8, 7\nv_min_u32 v23, 2, v1")
    g("v_add_u32 v23, 1, v23\nv_add_u32 v23, s58, v23\nv_and_b32 v23, 3, v23")
    g("s_mul_i32 s45, s58, s44\ns_sub_u32 s45, s43, s45\nv_mul_u32_u24 v23, s44, v23")
    g("v_add_u32 v23, s45, v23\nv_lshlrev_b32 v23, 7, v23")
    g("s_lshl_b32 s44, s3, 2\ns_add_u32 s44, s44, 16\nv_add_u32 v23, s44, v23\ns_lshl_b32 s45, s43, 7\ns_add_u32 s44, s44, s45\nv_mov_b32 v27, s44")
    return g.items


def main_kernel(g, o):
    g.begin(NAME)
    g("s_cmp_ge_u32 s2, 256\ns_cbranch_scc1 L_done")
    g("s_load_dwordx16 s[64:79], s[0:1], 0\ns_load_dwordx8 s[80:87], s[0:1], 64")
    g("v_lshrrev_b32 v2, 6, v0\nv_and_b32 v1, 63, v0\ns_nop 0\nv_readfirstlane_b32 s3, v2")
    if o.get("stamp"):
        g(f"v_mov_b32 v{VST}, 0")
    stamp(g, o, 0)
    g("s_and_b32 s41, s2, 7\ns_lshr_b32 s42, s2, 3\ns_lshr_b32 s37, s3, 1\ns_and_b32 s38, s3, 1")
    g("s_cmp_lt_u32 s42, 4\ns_cbranch_scc1 L_fft")

    g("s_sub_u32 s44, s42, 4")
    g("s_and_b32 s54, s41, 1\ns_lshl_b32 s54, s54, 2\ns_and_b32 s45, s44, 3\ns_add_u32 s54, s54, s45")
    g("s_lshr_b32 s55, s41, 1\ns_mul_i32 s55, s55, 7\ns_lshr_b32 s45, s44, 2\ns_add_u32 s55, s55, s45")
    g("s_mul_i32 s43, s54, 28\ns_add_u32 s43, s43, s55")
    c1 = Core(g, MF=8, nh=2, SUBS=1, act_first=False, wpitch=F * 2, span=o.get("span1", 0.85), tch=o.get("pf", 1))
    c1.aperm = True
    c1.wpol = o.get('w1pol', ' nt')
    c1.setup_w()
    if o.get("rot", 0):
        g(f"s_and_b32 s46, s41, 1\ns_mul_i32 s{c1.sWoff}, s46, {512*F*2}")
    g("s_waitcnt lgkmcnt(0)")
    tag_issue(g)
    ln_loads(g)
    early(g, o)
    g(f"s_lshl_b32 s46, s55, 8\ns_sub_u32 s47, {D*F*2 + 4096}, s46")
    g.srd(12, PWG, "s47", -4096, "s46")
    g.srd(16, PWU, "s47", -4096, "s46")
    nW, nC = o.get("nW", 0), o.get("nC", 0)

    def warm_g():
        g(f"s_cmp_ge_u32 s43, 112\ns_cselect_b32 s62, s{PWU}, s{PWG}\ns_cselect_b32 s63, s{PWU+1}, s{PWG+1}\ns_cselect_b32 s61, 112, 0\ns_sub_u32 s61, s43, s61")
        g(f"s_lshl_b32 s61, s61, 6\ns_add_u32 s61, s61, {128*56}")
        warm_lines(g, 62, D * F * 2, "s61", 0, 128, nW, 7168)
        if not nC:
            return
        g(f"s_bitcmp1_b32 s43, 0\ns_cselect_b32 s62, s{PSI}, s{PSR}\ns_cselect_b32 s63, s{PSI+1}, s{PSR+1}\ns_lshr_b32 s61, s43, 1\ns_lshl_b32 s61, s61, 6")
        warm_lines(g, 62, 1024 * 4096, "s61", 4, 4096, nC, 7168)
    def warm1():
        g("v_mul_u32_u24 v26, 37, v1\nv_lshrrev_b32 v26, 9, v26\nv_mul_u32_u24 v27, 14, v26\nv_sub_u32 v27, v1, v27")
        g(f"s_lshl_b32 s4, s43, 2\nv_add_u32 v26, s4, v26\nv_mul_u32_u24 v26, {F*2}, v26\nv_lshrrev_b32 v28, 1, v27\nv_lshl_add_u32 v26, v28, 10, v26")
        g("v_and_b32 v27, 1, v27\nv_lshl_add_u32 v26, v27, 7, v26")
        for ptr in (PWG, PWU):
            g.srd(8, ptr, D * F * 2)
            g("buffer_load_dword v29, v26, s[8:11], 0 offen offset:256")
    pf = o.get("pf", 1)
    wl = sum((c1.dma_w(slot) for slot in range(4)), [])
    n0, n1 = o.get("wpre", 6), o.get("wmid", 0)
    c1.flat(wl[:n0])
    ln_body(g, o, n_early(o) + n0, "g", wl[n0:n0 + n1], warm_g if (nW or nC) else (warm1 if o.get('warm1', 0) else None))
    late = wl[n0 + n1:]
    post = []
    if o.get("wpost", 1):
        late, post = [], late
    c1.flat(late)
    c1.setup_r()
    g("s_and_b32 s46, s54, 3\ns_lshl_b32 s46, s46, 13\nv_lshl_add_u32 v22, v1, 7, s46")
    publish(g, 1, True, len(late))
    c1.flat(post)
    stamp(g, o, 3)
    poll(g, [(22, 1)])
    stamp(g, o, 4)
    g("s_lshl_b32 s46, s54, 19")
    g.srd(8, PWS, 0x80000, XN, "s46")
    lg = o.get("lpw", 3)
    lc = 4 << lg
    g("s_add_u32 s46, s55, 2\ns_lshr_b32 s46, s46, 2\ns_sub_u32 s46, s55, s46\ns_mul_i32 s47, s54, 21\ns_add_u32 s46, s46, s47")
    g("s_and_b32 s47, s55, 3\ns_cmp_eq_u32 s47, 1\ns_cselect_b32 s63, 0, -1")
    g(f"s_bitcmp1_b32 s46, 0\ns_cselect_b32 s98, s{PSI}, s{PSR}\ns_cselect_b32 s99, s{PSI+1}, s{PSR+1}\ns_cselect_b32 s96, s{PWU}, s{PWG}\ns_cselect_b32 s97, s{PWU+1}, s{PWG+1}")
    g(f"v_lshrrev_b32 v18, {lg}, v1\nv_min_u32 v18, 1, v18\nv_lshlrev_b32 v18, 31, v18\ns_lshl_b32 s47, s3, {lg}\nv_add_u32 v19, s47, v1")
    g(f"s_lshl_b32 s47, s46, {lg+2}\nv_add_u32 v20, s47, v19\nv_lshl_or_b32 v23, v20, 7, v18")
    g(f"s_lshr_b32 s46, s46, 1\ns_lshl_b32 s46, s46, {lg+2}\nv_add_u32 v19, s46, v19\nv_and_b32 v21, 15, v19\nv_lshrrev_b32 v20, 4, v19")
    g("v_lshlrev_b32 v20, 12, v20\nv_lshl_add_u32 v20, v21, 7, v20\nv_or_b32 v27, v20, v18")
    g("v_mul_u32_u24 v20, 4682, v19\nv_lshrrev_b32 v20, 16, v20\nv_mul_u32_u24 v21, 14, v20\nv_sub_u32 v21, v19, v21")
    g(f"v_mul_u32_u24 v20, {F*2}, v20\nv_lshrrev_b32 v22, 1, v21\nv_lshl_add_u32 v20, v22, 10, v20\nv_and_b32 v21, 1, v21")
    g("v_lshl_add_u32 v20, v21, 7, v20\nv_add_u32 v20, 256, v20\nv_or_b32 v22, v20, v18")
    plan = o.get("plan", "-CC-DDD")
    rot = o.get("rot", 0)
    pos = {"S": o.get("r0", 128) * F * 2, "C": 0, "D": 0}
    stp = {"S": 84 * lc // 14 * F * 2, "C": 84 * lc // 16 * 4096, "D": 168 * lc * 128}
    starts = []
    for ch in plan:
        starts.append(pos.get(ch))
        if ch in pos:
            pos[ch] += 4 * stp[ch]

    def region(it):
        ch = plan[it]
        if ch == "-":
            g("s_mov_b32 s26, 0")
            return
        ptr, nb, va = {"S": (96, D*F*2, 22), "C": (98, 1024*4096, 27), "D": (PWD, F*D*2, 23)}[ch]
        g.srd(24, ptr, nb)
        g("s_and_b32 s26, s26, s63")
        g(f"s_mov_b32 s62, {stp[ch]}\nv_add_u32 v26, {starts[it]}, v{va}")
    g.srd(24, PWD, 0)
    g("s_mov_b32 s62, 0\nv_mov_b32 v26, v23")
    region(0)
    if rot:
        g(f"s_and_b32 s46, s41, 1\ns_lshl_b32 s{c1.sAoff}, s46, 18")
    c1.start()

    def switch():
        done = g.newlabel("sw")
        if rot:
            g(f"s_cmp_eq_u32 s{c1.sCnt}, 4\ns_cselect_b32 s46, 0x7ffff, -1\ns_and_b32 s{c1.sAoff}, s{c1.sAoff}, s46")
            g(f"s_cmp_eq_u32 s{c1.sWoff}, {D*F*2}\ns_cselect_b32 s{c1.sWoff}, 0, s{c1.sWoff}")
        for it in range(1, 7):
            if pf and (plan[it] != plan[it - 1]):
                lab = g.newlabel("sw")
                g(f"s_cmp_lg_u32 s{c1.sCnt}, {7 - it}\ns_cbranch_scc1 {lab}")
                region(it)
                g(f"s_branch {done}")
                g.label(lab)
        g.label(done)
    c1.loop(6, "L_g1", switch)
    c2 = k2_ids(g, o)
    g.srd(24, PWS, S * F * 2, H)
    g(f"s_mul_i32 s50, s54, {112*16384}\ns_lshl_b32 s51, s37, 13\ns_add_u32 s50, s50, s51")
    g("s_lshl_b32 s51, s55, 2\ns_lshl_b32 s52, s38, 1\ns_add_u32 s51, s51, s52\ns_lshl_b32 s51, s51, 14")
    g("s_add_u32 s50, s50, s51\ns_add_u32 s51, s50, 0x4000")
    g("v_lshlrev_b32 v26, 4, v1\nv_add_u32 v27, 0x1000, v26")
    g(f"s_lshl_b32 s4, s38, 15\ns_lshl_b32 s5, s37, 13\ns_add_u32 s4, s4, s5\ns_add_u32 s4, s4, {HSTG}\nv_add_u32 v28, s4, v26")
    blocks = []
    for kbl in range(2):
        for i in range(8):
            o4 = (12, 16)[len(blocks) & 1]
            work = []
            for jj in range(2):
                j = 2 * kbl + jj
                gr = c1.acc[j, i][1]
                kind, ur = c1.acc[4 + j, i]
                if kind == "a":
                    work += [f"v_accvgpr_read_b32 v{20+x}, a{ur+x}" for x in range(4)]
                    ur = 20
                work += [f"v_mul_f32 v{gr+x}, v{gr+x}, v{ur+x}" for x in range(4)] if o.get("epmul", 0) else \
                        [f"v_pk_mul_f32 v[{gr}:{gr+1}], v[{gr}:{gr+1}], v[{ur}:{ur+1}]", f"v_pk_mul_f32 v[{gr+2}:{gr+3}], v[{gr+2}:{gr+3}], v[{ur+2}:{ur+3}]"]
                work += [f"v_cvt_pk_bf16_f32 v{o4+2*jj}, v{gr}, v{gr+1}", f"v_cvt_pk_bf16_f32 v{o4+2*jj+1}, v{gr+2}, v{gr+3}"]
            work.append(f"buffer_store_dwordx4 v[{o4}:{o4+3}], v{26 + (i >> 2)}, s[24:27], s{50+kbl} offen offset:{(i&3)*1024} sc1")
            work.append(f"ds_write_b128 v28, v[{o4}:{o4+3}] offset:{kbl*16384 + i*1024}")
            blocks.append(([(2 * kbl, i), (2 * kbl + 1, i), (4 + 2 * kbl, i), (5 + 2 * kbl, i)], work))
    if o.get("g1fin", 1):
        c1.last([c2.dma_w(p) for p in range(4)], final=(blocks, 3))
    else:
        c1.last([c2.dma_w(p) for p in range(4)])
        g("s_nop 7")
        for _, work in blocks:
            for ins in work:
                g(ins)
    stamp(g, o, 5)
    k2_setup(g, o, c2)
    for i in range(4):
        g(f"v_add_u32 v{18+i}, {HSTG}, v{12+i}")
    g("s_bitset0_b32 s97, s98\ns_waitcnt vmcnt(16) lgkmcnt(0)\ns_barrier")
    stamp(g, o, 6)
    for u in range(4):
        for i in range(4):
            r = c2.fa(u, 0, i)
            g(f"ds_read_b128 a[{r}:{r+3}], v{18+i} offset:{u*16384}")
    stamp(g, o, 10)

    def late2():
        lab = g.newlabel("p2")
        stamp(g, o, 17)
        g(f"s_cmp_lg_u32 s3, 0\ns_cbranch_scc1 {lab}")
        g("s_lshl_b32 s4, s43, 7\ns_add_u32 s5, s100, 2\nv_mov_b32 v2, s4\nv_mov_b32 v3, s5\ns_mov_b64 exec, 1")
        g("buffer_store_dword v3, v2, s[28:31], 0 offen sc1\ns_mov_b64 exec, -1")
        g.label(lab)
        g("buffer_load_dword v30, v26, s[28:31], 0 offen sc1")
    c2.flat(c2.reads(0, 0))
    c2.start(late=late2, chk=(lambda: tile_pick(g, 4), lambda: tile_get(g)), extra=k2_tail_setup(g, o))
    stamp(g, o, 18)
    g("s_mov_b32 s46, 5\ns_branch L_k2")

    g.label("L_fft")
    g("s_and_b32 s54, s41, 1\ns_lshr_b32 s55, s41, 1")
    g("s_lshl_b32 s43, s41, 2\ns_add_u32 s43, s43, s42\ns_add_u32 s43, s43, 224")
    f1 = Core(g, MF=8, nh=1, SUBS=1, act_first=True, wpitch=D * 2, xblocks=16)
    f1.aperm = True
    f1.setup_w()
    g("s_waitcnt lgkmcnt(0)")
    tag_issue(g)
    ln_loads(g)
    early(g, o)
    g("s_cmp_eq_u32 s54, 0")
    g(f"s_cselect_b32 s96, s{PHR}, s{PHI}\ns_cselect_b32 s97, s{PHR+1}, s{PHI+1}\ns_cselect_b32 s98, s{PSR}, s{PSI}\ns_cselect_b32 s99, s{PSR+1}, s{PSI+1}")
    g(f"s_lshl_b32 s46, s55, 8\ns_sub_u32 s47, {512*2048 + 4096}, s46")
    g.srd(12, 96, "s47", -4096, "s46")

    def warm_f():
        g(f"s_lshl_b32 s61, s55, 2\ns_add_u32 s61, s61, s42\ns_lshl_b32 s61, s61, 6\ns_add_u32 s62, s61, {128*8}\ns_add_u32 s61, s61, 14336")
        if o.get('warm1', 0):
            warm1()
        warm_lines(g, 96, 512 * 2048, "s62", 3, 2048, 3, 1024)
        if o.get("nCf", 0):
            warm_lines(g, 98, 1024 * 4096, "s61", 4, 4096, o.get("nCf", 0), 1024)
    wl = sum((f1.dma_w(slot) for slot in range(4)), [])
    f1.flat(wl[:n0])
    ln_body(g, o, n_early(o) + min(n0, 8), "f", wl[n0:], warm_f if o.get("warmf", 1) else None)
    late = []
    g("s_lshl_b32 s63, s42, 1\ns_add_u32 s63, s63, s37\ns_and_b32 s63, s63, 3")
    f1.setup_r("s63")
    g("v_lshlrev_b32 v24, 7, v1\nv_add_u32 v25, 0x2000, v24\nv_add_u32 v26, 0x4000, v24\nv_add_u32 v27, 0x6000, v24")
    publish(g, 1, True, len(late))
    stamp(g, o, 3)
    poll(g, [(24, 1), (25, 1), (26, 1), (27, 1)])
    stamp(g, o, 4)
    g(f"s_mul_i32 s46, s54, {XOO - XEE}\ns_lshl_b32 s47, s42, 18\ns_add_u32 s46, s46, s47")
    g.srd(8, PWS, 0x40000, XEE, "s46")
    g.srd(16, PWS, 1024, XEEX)
    g("v_lshlrev_b32 v24, 4, v1\nbuffer_load_dwordx4 v[40:43], v24, s[16:19], 0 offen sc1")

    def t2():
        g(f"v_lshlrev_b32 v24, 8, v1\nv_add_u32 v24, {f1.xbase}, v24\ns_waitcnt vmcnt({4 * f1.pA})\nds_write_b128 v24, v[40:43]")
    f1.start(0, t2)
    f1.loop(2, "L_f1")
    g("s_lshl_b32 s62, s42, 1\ns_add_u32 s62, s62, s37")
    f2 = Core(g, MF=4, nh=2, SUBS=1, act_first=True, wpitch=S * 2, xblocks=32, wsrd=16, vW=24, sW=(59, 60))
    f2.wpol = o.get('f2pol', '')
    f2.setup_w()
    f2.rot2 = True
    g("s_lshl_b32 s59, s42, 20")
    g(f"s_lshl_b32 s46, s42, 9\ns_sub_u32 s47, {1024*4096 + 4096}, s46")
    g.srd(16, 98, "s47", -4096, "s46")
    g("s_sub_u32 s47, s47, 256")
    g.srd(20, 98, "s47", -4096 + 256, "s46")
    g("s_cmp_eq_u32 s54, 0\ns_cselect_b32 s47, 0x10000, 0")
    g.srd(24, PWS, "s47", REC)
    T = f1.vtop
    g("v_lshrrev_b32 v28, 4, v1\nv_lshlrev_b32 v28, 7, v28")
    g("s_lshl_b32 s50, s42, 13\ns_lshl_b32 s51, s37, 12\ns_add_u32 s50, s50, s51\ns_mov_b32 s51, 0x8000")
    lc1 = [[f"buffer_load_dwordx4 v[{T+4*i}:{T+4*i+3}], v28, s[24:27], s50 offen offset:{i*512} sc1"] for i in range(8)]
    lc1.append([f"buffer_load_dword v{T+32}, v28, s[24:27], s51 offen sc1"])
    f1.last([f2.dma_w(0) + lc1, f2.dma_w(1), f2.dma_w(2), f2.dma_w(3)])
    stamp(g, o, 5)
    g(f"s_waitcnt vmcnt({3 * f2.pW})")
    g("v_and_b32 v3, 1, v1\nv_lshlrev_b32 v3, 31, v3\nv_or_b32 v3, 1.0, v3")
    g(f"s_mul_i32 s46, s54, {BOT - AET}\ns_lshl_b32 s47, s55, 18\ns_add_u32 s46, s46, s47")
    g.srd(8, PWS, 0x40000, AET, "s46")
    g("s_lshl_b32 s50, s42, 16\ns_lshl_b32 s51, s37, 15\ns_add_u32 s50, s50, s51\ns_lshl_b32 s51, s38, 12\ns_add_u32 s50, s50, s51")
    g("v_lshlrev_b32 v2, 4, v1\ns_nop 4")
    k = 0
    for ip in range(4):
        for j in range(4):
            o4 = 4 + 4 * (k & 1); k += 1
            for ii in range(2):
                i = 2 * ip + ii
                r = f1.acc[j, i][1]
                for x in range(4):
                    g(f"v_fmac_f32 v{r+x}, v{T+4*i+x}, v3")
                g(f"v_cvt_pk_bf16_f32 v{o4+2*ii}, v{r}, v{r+1}\nv_cvt_pk_bf16_f32 v{o4+2*ii+1}, v{r+2}, v{r+3}")
            g(f"buffer_store_dwordx4 v[{o4}:{o4+3}], v2, s[8:11], s50 offen offset:{j*1024} sc1")
        g("s_add_u32 s50, s50, 0x2000")
    g("v_and_b32 v2, 15, v1\nv_lshlrev_b32 v2, 2, v2")
    g("s_lshl_b32 s50, s62, 11\ns_lshl_b32 s51, s55, 9\ns_add_u32 s50, s50, s51")
    g(f"s_lshl_b32 s52, s38, 8\ns_add_u32 s50, s50, s52\ns_add_u32 s50, s50, {RP - REC}")
    U = T + 36
    for j in range(4):
        r0 = f1.acc[j, 0][1]
        g(f"v_pk_add_f32 v[{U}:{U+1}], v[{r0}:{r0+1}], v[{r0+2}:{r0+3}]")
        for i in range(1, 8):
            r = f1.acc[j, i][1]
            g(f"v_pk_add_f32 v[{U}:{U+1}], v[{U}:{U+1}], v[{r}:{r+1}]\nv_pk_add_f32 v[{U}:{U+1}], v[{U}:{U+1}], v[{r+2}:{r+3}]")
        g(f"v_sub_f32 v{U+4+j}, v{U}, v{U+1}")
        g(f"v_mov_b32 v{U+2}, v{U+4+j}\ns_nop 1\nv_permlane32_swap_b32 v{U+4+j}, v{U+2}\ns_nop 1\nv_add_f32 v{U+4+j}, v{U+4+j}, v{U+2}")
        g(f"v_mov_b32 v{U+2}, v{U+4+j}\ns_nop 1\nv_permlane16_swap_b32 v{U+4+j}, v{U+2}\ns_nop 1\nv_add_f32 v{U+4+j}, v{U+4+j}, v{U+2}")
        g(f"buffer_store_dword v{U+4+j}, v2, s[24:27], s50 offen offset:{j*64} sc1")
    g("s_cmp_ge_u32 s62, 4\ns_cbranch_scc1 L_f1_noc2")
    g(f"v_fmac_f32 v{f1.accx}, v{T+32}, v3")
    g(f"s_add_u32 s50, s51, s52\ns_lshl_b32 s52, s62, 6\ns_add_u32 s50, s50, s52\ns_add_u32 s50, s50, {C2 - REC}")
    g(f"s_mov_b64 exec, 0xffff\nbuffer_store_dword v{f1.accx}, v2, s[24:27], s50 offen sc1\ns_mov_b64 exec, -1")
    g.label("L_f1_noc2")
    g("s_lshl_b32 s62, s55, 1\ns_add_u32 s62, s62, s37")
    f2.setup_r("s62")
    g("s_mov_b32 s101, 0x80000")
    g(f"s_lshl_b32 s46, s3, 13\nv_lshl_add_u32 v28, v1, 7, s46\nbuffer_load_dwordx4 v[{T}:{T+3}], v28, s[24:27], 0 offen offset:16 sc1")
    g(f"s_lshl_b32 s{f2.sAoff}, s42, 16\ns_lshl_b32 s47, s42, 13\nv_add_u32 v{f2.vX}, s47, v{f2.vX}")
    publish(g, 2)
    stamp(g, o, 6)
    stamp(g, o, 7)

    def x2():
        g("v_lshrrev_b32 v28, 3, v1\nv_lshlrev_b32 v28, 10, v28\nv_and_b32 v29, 3, v1\nv_lshl_add_u32 v28, v29, 8, v28")
        g(f"v_bfe_u32 v29, v1, 2, 1\nv_lshl_add_u32 v28, v29, 3, v28\ns_add_u32 s46, s46, {f2.xbase}\nv_add_u32 v28, s46, v28")
        g(f"v_cvt_pk_bf16_f32 v{T}, v{T}, v{T+1}\nv_cvt_pk_bf16_f32 v{T+1}, v{T+2}, v{T+3}\nds_write_b64 v28, v[{T}:{T+1}]")
        g("s_and_b32 s46, s43, 0xfc\nv_and_b32 v28, 3, v1\nv_add_u32 v28, s46, v28\nv_lshlrev_b32 v28, 7, v28")
        g(f"s_mov_b32 s63, 0x7fff\nv_mov_b32 v29, {f2.xbase}")
    f2.start(0, x2)

    def chk2():
        g(f"s_and_b32 s{f2.sAoff}, s{f2.sAoff}, 0x3ffff\ns_and_b32 s{f2.sWoff}, s{f2.sWoff}, 0x3fffff\ns_lshr_b32 s46, s{f2.sAoff}, 16")
        spin(g, 28, 2, True, lane="s46")
    f2.loop(6, "L_f2", chk=chk2)
    T = f2.vtop
    RV, AV, B, EA = T + 20, T + 32, T + 48, T + 80
    c2 = k2_ids(g, o)
    g("v_lshrrev_b32 v28, 4, v1\nv_lshlrev_b32 v28, 4, v28")
    g(f"s_lshl_b32 s50, s55, 9\ns_lshl_b32 s51, s37, 8\ns_add_u32 s51, s50, s51\ns_add_u32 s51, s51, {C2 - REC}\ns_mov_b32 s52, {0x8000 + 16}")
    lc2 = [[f"buffer_load_dwordx4 v[{T+4*i}:{T+4*i+3}], v28, s[24:27], s51 offen offset:{i*64} sc1"] for i in range(4)]
    lc2.append([f"buffer_load_dword v{T+16}, v28, s[24:27], s52 offen sc1"])
    g(f"v_and_b32 v{EA+9}, 127, v0\nv_lshlrev_b32 v{EA+9}, 2, v{EA+9}\nv_add_u32 v{EA+9}, s50, v{EA+9}\nv_lshlrev_b32 v{EA+10}, 7, v1")
    g(f"s_lshr_b32 s4, s3, 1\ns_or_b32 s4, s4, s42\ns_cmp_eq_u32 s4, 0\ns_cselect_b32 s4, 0, 0x80000000\nv_or_b32 v{EA+8}, s4, v{EA+9}")
    g(f"s_xor_b32 s4, s3, 2\ns_or_b32 s4, s4, s42\ns_or_b32 s4, s4, s55\ns_cmp_eq_u32 s4, 0\ns_cselect_b32 s4, 0, 0x80000000\nv_or_b32 v{EA+10}, s4, v{EA+10}")
    for k in range(4):
        g(f"s_mov_b32 s{44+k}, {RP - REC + 4096 * k}")
    g(f"s_mov_b32 s48, {C2 - REC}\ns_mov_b32 s49, 0x2000\ns_mov_b32 s53, 0x6000")
    lr = [[f"buffer_load_dword v{RV+k}, v{EA+8}, s[24:27], s{44+(k>>1)} offen offset:{(k&1)*2048} sc1"] for k in range(8)]
    lr.append([f"buffer_load_dword v{RV+8}, v{EA+8}, s[24:27], s48 offen sc1"])
    g("s_mov_b32 s61, 0x4000")
    lr += [[f"buffer_load_dwordx4 v[{AV+4*k}:{AV+4*k+3}], v{EA+10}, s[24:27], {('0', 's49', 's61', 's53')[k]} offen offset:16 sc1"] for k in range(4)]
    g(f"v_and_b32 v{EA+6}, 1, v1\nv_lshlrev_b32 v{EA+6}, 31, v{EA+6}\nv_or_b32 v{EA+6}, 1.0, v{EA+6}")
    g(f"s_mul_i32 s4, s54, {QQ - PP}")
    g.srd(8, PWS, 1025 * PQ_PITCH, PP, "s4")
    g(f"s_lshl_b32 s4, s3, 13\ns_add_u32 s4, s4, {LDS_AUX}")
    g("v_and_b32 v18, 15, v1\nv_and_b32 v19, 7, v1\nv_lshrrev_b32 v20, 5, v1\nv_bfe_u32 v21, v1, 4, 1")
    g(f"v_mul_u32_u24 v{EA+7}, {PQ_PITCH}, v18\nv_lshlrev_b32 v18, 7, v18\nv_lshl_add_u32 v18, v21, 3, v18\nv_add_u32 v18, s4, v18")
    for i in range(4):
        g(f"v_add_u32 v21, {2*i}, v20\nv_xor_b32 v21, v21, v19\nv_lshl_add_u32 v{EA+i}, v21, 4, v18")
    g(f"v_lshrrev_b32 v20, 3, v1\nv_xor_b32 v21, v20, v19\nv_lshlrev_b32 v18, 7, v20\nv_lshl_add_u32 v18, v21, 4, v18\nv_add_u32 v{EA+4}, s4, v18")
    g(f"v_mul_u32_u24 v{EA+5}, {PQ_PITCH}, v20\nv_lshl_add_u32 v{EA+5}, v19, 4, v{EA+5}")
    f2.last([lc2 + lr, [], [], []])
    stamp(g, o, 8)
    g(f"s_lshl_b32 s50, s42, 8\ns_lshl_b32 s51, s38, 6\ns_add_u32 s50, s50, s51\ns_mul_i32 s52, s50, {PQ_PITCH}")
    g("s_lshl_b32 s50, s55, 8\ns_lshl_b32 s51, s37, 7\ns_add_u32 s50, s50, s51\ns_add_u32 s50, s50, s52")
    g("s_waitcnt vmcnt(0)")
    for h in range(2):
        for jj in range(4):
            for i in range(4):
                r = f2.acc[4 * h + jj, i][1]
                for x in range(4):
                    g(f"v_fmac_f32 v{r+x}, v{T+4*i+x}, v{EA+6}")
                g(f"v_cvt_pk_bf16_f32 v{r}, v{r}, v{r+1}\nv_cvt_pk_bf16_f32 v{r+1}, v{r+2}, v{r+3}")
                g(f"ds_write_b64 v{EA+i}, v[{r}:{r+1}] offset:{jj*2048}")
        g("s_waitcnt lgkmcnt(0)")
        for n in range(8):
            g(f"ds_read_b128 v[{B+4*n}:{B+4*n+3}], v{EA+4} offset:{n*1024}")
        for n in range(8):
            g(f"s_add_u32 s51, s50, {(h*128 + n*8) * PQ_PITCH}\ns_waitcnt lgkmcnt({7-n})")
            g(f"buffer_store_dwordx4 v[{B+4*n}:{B+4*n+3}], v{EA+5}, s[8:11], s51 offen sc1")
    g(f"v_fmac_f32 v{f2.accx}, v{T+16}, v{EA+6}\ns_cmp_eq_u32 s54, 0\ns_cselect_b32 s46, -1, 0")
    g(f"v_cvt_pk_bf16_f32 v16, v{f2.accx}, v{f2.accx}\nv_and_b32 v16, s46, v16")
    g(f"s_lshr_b32 s46, s62, 2\ns_lshl_b32 s46, s46, 7\ns_and_b32 s47, s62, 3\ns_lshl_b32 s47, s47, 4\ns_add_u32 s46, s46, s47")
    g(f"s_mul_i32 s46, s46, {PQ_PITCH}\ns_add_u32 s46, s46, s52")
    g(f"s_mov_b64 exec, 0xffff\nbuffer_store_short v16, v{EA+7}, s[8:11], s46 offen offset:1024 sc1\ns_mov_b64 exec, -1")
    g("s_cmp_lg_u32 s42, 0\ns_cbranch_scc1 L_f2_done\ns_cmp_ge_u32 s3, 2\ns_cbranch_scc1 L_f2_corner")
    for k in range(8):
        g(f"v_add_f32 v{RV+8}, v{RV+8}, v{RV+k}")
    g(f"v_cvt_pk_bf16_f32 v12, v{RV+8}, v{RV+8}\nv_lshrrev_b32 v2, 1, v{EA+9}\ns_mov_b32 s51, {1024 * PQ_PITCH}")
    g("buffer_store_short v12, v2, s[8:11], s51 offen sc1\ns_branch L_f2_done")
    g.label("L_f2_corner")
    g("s_cmp_lg_u32 s3, 2\ns_cbranch_scc1 L_f2_done\ns_cmp_lg_u32 s55, 0\ns_cbranch_scc1 L_f2_done")
    for k in range(2, 16, 2):
        g(f"v_pk_add_f32 v[{AV}:{AV+1}], v[{AV}:{AV+1}], v[{AV+k}:{AV+k+1}]")
    g(f"v_sub_f32 v4, v{AV}, v{AV+1}")
    wave_sum(g, [4])
    g(f"v_readlane_b32 s50, v4, 63\ns_mov_b32 s51, {1024 * PQ_PITCH + 1024}\ns_nop 0\nv_add_f32 v4, s50, v{T+16}\nv_cvt_pk_bf16_f32 v4, v4, v4\nv_mov_b32 v2, 0")
    g("s_mov_b64 exec, 1\nbuffer_store_short v4, v2, s[8:11], s51 offen sc1\ns_mov_b64 exec, -1")
    g.label("L_f2_done")
    stamp(g, o, 16)
    k2_setup(g, o, c2)
    c2.flat(k2_tail_setup(g, o))
    for (kind, r) in c2.acc.values():
        for x in range(4):
            g(f"v_mov_b32 v{r+x}, 0")
    publish(g, 3)
    stamp(g, o, 9)
    tile_pick(g, 4)
    g("s_barrier")
    tile_get(g)
    stamp(g, o, 10)
    stamp(g, o, 17)
    c2.flat(c2.restart())
    stamp(g, o, 18)
    g("s_mov_b32 s46, 6")

    g.label("L_k2")
    g("v_mov_b32 v30, 0")
    tile_pick(g)
    g(f"s_waitcnt vmcnt({3 * c2.pW + 2 * c2.pA})\ns_barrier\nds_read_b32 v17, v16")
    c2.flat(c2.reads(0, 0))

    def pick_next():
        lab = g.newlabel("pn")
        g(f"s_cmp_eq_u32 s97, 0\ns_cbranch_scc1 {lab}")
        tile_pick(g)
        g.label(lab)
    c2.loop("s46", "L_k2_loop", chk={0: lambda: g("v_readfirstlane_b32 s99, v17"), 3: pick_next})
    stamp(g, o, 13)
    blocks = []
    for i in (1, 2, 3, 0):
        for k in range(4):
            work = []
            if i:
                d = 192 + 4 * (len(blocks) & 3)
                for jj in range(2):
                    r = c2.acc[2 * k + jj, i][1]
                    work += [f"v_cvt_pk_bf16_f32 v{d+2*jj}, v{r}, v{r+1}", f"v_cvt_pk_bf16_f32 v{d+2*jj+1}, v{r+2}, v{r+3}"]
                work.append(f"buffer_store_dwordx4 v[{d}:{d+3}], v29, s[24:27], s{49+i} offen offset:{k*1024} sc1")
            blocks.append(([(2 * k, i), (2 * k + 1, i)], work))
    c2.last([[["buffer_load_dword v30, v22, s[28:31], 0 offen sc1"]], [], [], []], flfirst=True, final=(blocks, 4))
    stamp(g, o, 11)
    g("s_add_u32 s44, s100, 7\nv_mov_b32 v28, s44\ns_waitcnt vmcnt(0)")
    g("s_mov_b64 exec, 1\nbuffer_store_dword v28, v27, s[28:31], 0 offen sc1\ns_mov_b64 exec, -1")
    stamp(g, o, 14)
    sent = 0
    spin(g, 22, 3, True)
    tile_dma(g, 12, PS, 4096, " sc1")
    tile_dma(g, 16, PS, 8192, " sc1")

    def part_loads():
        for k in range(4):
            for i in range(3):
                g(f"s_add_u32 s4, s53, {i*16384}\nbuffer_load_dwordx4 v[{PT+16*i+4*k}:{PT+16*i+4*k+3}], v29, s[24:27], s4 offen offset:{k*1024} sc1")
    Y, XF, PT, RD = 64, 96, 208, 128
    if sent:
        part_loads()
    else:
        g("buffer_load_dword v30, v23, s[28:31], 0 offen sc1")
    g.srd(20, POUT, S * D * 2)
    g("s_mov_b32 s44, 0xbfb8aa3b\ns_mov_b32 s45, 0xbfb8aa3b\ns_mov_b32 s54, 0xffff0000\ns_mov_b32 s46, 1.0\ns_mov_b32 s47, 1.0")
    g("s_mov_b32 s48, 0x3f80\ns_mov_b32 s49, 0x3f800000")
    g(f"s_waitcnt vmcnt({12 if sent else 1})")
    for j in range(8):
        g(f"ds_read_b64 v[{RD+4*j}:{RD+4*j+1}], v{AP+j} offset:4096\nds_read_b64 v[{RD+4*j+2}:{RD+4*j+3}], v{AP+j} offset:8192")
    g("s_cmp_ge_u32 s57, 4\ns_cbranch_scc1 L_k2_rev")
    for rev in (0, 1):
        if rev:
            g("s_branch L_k2_y")
            g.label("L_k2_rev")
        for j in range(8):
            g(f"s_waitcnt lgkmcnt({14 - 2*j})")
            for src, dst in ((RD + 4 * j, Y + 4 * j), (RD + 4 * j + 2, 4)):
                for x in range(4):
                    d = dst + (3 - x if rev else x)
                    w = src + (x >> 1)
                    g(f"v_and_b32 v{d}, s54, v{w}" if x & 1 else f"v_lshlrev_b32 v{d}, 16, v{w}")
            y = Y + 4 * j
            g(f"v_pk_fma_f32 v[{y}:{y+1}], v[4:5], s[62:63], v[{y}:{y+1}]\nv_pk_fma_f32 v[{y+2}:{y+3}], v[6:7], s[62:63], v[{y+2}:{y+3}]")
    g.label("L_k2_y")
    for j in range(8):
        g(f"ds_read_b64 v[{RD+2*j}:{RD+2*j+1}], v{AX+j}")
    def x_unpack():
        for j in range(8):
            g(f"s_waitcnt lgkmcnt({7 - j})")
            g(f"v_lshlrev_b32 v{XF+4*j}, 16, v{RD+2*j}\nv_and_b32 v{XF+4*j+1}, s54, v{RD+2*j}\nv_lshlrev_b32 v{XF+4*j+2}, 16, v{RD+2*j+1}\nv_and_b32 v{XF+4*j+3}, s54, v{RD+2*j+1}")
    if sent:
        x_unpack()
        l0, l1 = g.newlabel("sn"), g.newlabel("snd")
        g.label(l0)
        g(f"s_waitcnt vmcnt(0)\nv_max3_u32 v4, v{PT}, v{PT+1}, v{PT+2}\nv_max3_u32 v5, v{PT+3}, v{PT+4}, v{PT+5}")
        for k in range(6, 48, 4):
            g(f"v_max3_u32 v4, v4, v{PT+k}, v{PT+k+1}" + (f"\nv_max3_u32 v5, v5, v{PT+k+2}, v{PT+k+3}" if k + 3 < 48 else ""))
        g(f"v_max_u32 v4, v4, v5\nv_cmp_eq_u32 vcc, -1, v4\ns_sub_u32 s5, s5, 1\ns_cbranch_scc1 {l1}\ns_cbranch_vccz {l1}")
        part_loads()
        g(f"s_branch {l0}")
        g.label(l1)
        stamp(g, o, 8)
    else:
        g("s_waitcnt vmcnt(0)")
        spin(g, 23, 7, True)
        stamp(g, o, 15)
        part_loads()
        x_unpack()
    for j in range(8):
        r = c2.acc[j, 0][1]
        if j % 2 == 0 and not sent:
            g(f"s_waitcnt vmcnt({9 - 3 * (j >> 1)})")
        for i in range(3):
            w = PT + 16 * i + 2 * j
            for x in range(4):
                g(f"v_dot2c_f32_bf16 v{r+x}, s{48 + (x & 1)}, v{w + (x >> 1)}")
        g(f"s_nop 1\nv_pk_mul_f32 v[4:5], v[{r}:{r+1}], s[44:45]\nv_pk_mul_f32 v[6:7], v[{r+2}:{r+3}], s[44:45]")
        for x in range(4):
            g(f"v_exp_f32 v{4+x}, v{4+x}")
        g("s_nop 0\nv_pk_add_f32 v[4:5], v[4:5], s[46:47]\nv_pk_add_f32 v[6:7], v[6:7], s[46:47]")
        for x in range(4):
            g(f"v_rcp_f32 v{4+x}, v{4+x}")
        y, xf = Y + 4 * j, XF + 4 * j
        g(f"v_pk_mul_f32 v[{y}:{y+1}], v[{y}:{y+1}], v[{r}:{r+1}]\nv_pk_mul_f32 v[{y+2}:{y+3}], v[{y+2}:{y+3}], v[{r+2}:{r+3}]")
        g(f"v_pk_fma_f32 v[{xf}:{xf+1}], v[4:5], v[{y}:{y+1}], v[{xf}:{xf+1}]\nv_pk_fma_f32 v[{xf+2}:{xf+3}], v[6:7], v[{y+2}:{y+3}], v[{xf+2}:{xf+3}]")
        g(f"v_cvt_pk_bf16_f32 v{xf}, v{xf}, v{xf+1}\nv_cvt_pk_bf16_f32 v{xf+1}, v{xf+2}, v{xf+3}")
        g(f"ds_write_b64 v{AX+j}, v[{xf}:{xf+1}]")
    for n in range(4):
        g(f"ds_read_b128 v[{RD+4*n}:{RD+4*n+3}], v{RB+n}")
    for n in range(4):
        g(f"s_waitcnt lgkmcnt({3-n})\nbuffer_store_dwordx4 v[{RD+4*n}:{RD+4*n+3}], v{GO+n}, s[20:23], s61 offen{o.get('opol', '')}")
    stamp_flush(g, o, 12)
    g.label("L_done")
    g("s_endpgm")
    g.kd(NAME, 256 + 192, 102, 256)


HEADER = open("recurrent_scan__spectral_fnet__glu_gated_bilinear__prompt.s.ref").read().split("\n")


def build(o=None):
    o = dict(o or {})
    global ASC
    ASC = ' sc1' if o.get('asc1', 0) else ''
    g = G()
    main_kernel(g, o)
    if o.get("aslist"):
        launch = f"; @launch kernel={NAME} grid=(256,1,1) block=(256,1,1) lds={LDS_TOTAL}"
    else:
        launch = f"; @launch grid=(256,1,1) block=(256,1,1) lds={LDS_TOTAL}"
    txt = "\n".join(HEADER[:13] + [launch]) + '\n.amdgcn_target "amdgcn-amd-amdhsa--gfx950"\n.text\n'
    txt += "\n".join(g.L) + '\n.section .rodata,"a"\n' + "\n".join(g.kds) + "\n"
    return txt


if __name__ == "__main__":
    out = sys.argv[1] if len(sys.argv) > 1 else "recurrent_scan__spectral_fnet__glu_gated_bilinear__prompt.s"
    o = eval(sys.argv[2]) if len(sys.argv) > 2 else {}
    open(out, "w").write(build(o))
```

```python
import sys

S, D, F = 2048, 1024, 3584
XN   = 0x0000000
H    = 0x0400000
XEE  = 0x1200000
XEEX = 0x1300000
XOO  = 0x1400000
AET  = 0x1500000
BOT  = 0x1600000
PP   = 0x1700000
QQ   = 0x1900000
REC  = 0x1D00000
C2   = 0x1D09000
RP   = 0x1D0A000
FLG  = 0x1E00000
PART = 0x2000000
STAMP = 0x3000000
PQ_PITCH = 1152
NAME = "recurrent_scan__spectral_fnet__glu_gated_bilinear__prompt_kernel"
PX, PSR, PSI, PHR, PHI, PWG, PWU, PWD, POUT, PDBG, PWS = 64, 66, 68, 70, 72, 76, 78, 80, 82, 84, 86
LDS_AUX = 0x20000
LDS_TOTAL = 0x28000
HSTG = 0x14000
VST = 31
ASC = ' sc1'


class G:
    def __init__(s):
        s.L = []
        s.kds = []
        s.uid = 0

    def __call__(s, txt):
        for ln in txt.split("\n"):
            ln = ln.strip()
            if ln:
                s.L.append("  " + ln)

    def label(s, n):
        s.L.append(n + ":")

    def newlabel(s, p="L"):
        s.uid += 1
        return f"{p}_{s.uid}"

    def begin(s, name):
        s.L.append(f".globl {name}\n.p2align 8\n.type {name},@function\n{name}:")

    def kd(s, name, vgpr, sgpr, accum):
        s.kds.append(f""".p2align 6
.amdhsa_kernel {name}
  .amdhsa_next_free_vgpr {vgpr}
  .amdhsa_next_free_sgpr {sgpr}
  .amdhsa_accum_offset {accum}
  .amdhsa_group_segment_fixed_size 0
  .amdhsa_kernarg_size 96
  .amdhsa_user_sgpr_count 2
  .amdhsa_user_sgpr_kernarg_segment_ptr 1
  .amdhsa_system_sgpr_workgroup_id_x 1
.end_amdhsa_kernel""")

    def srd(s, d, ptr, nbytes, const=0, soff=None):
        lo, hi = ptr, ptr + 1
        if soff is not None:
            s(f"s_add_u32 s{d}, s{lo}, {soff}\ns_addc_u32 s{d+1}, s{hi}, 0")
            lo, hi = d, d + 1
        if const > 0:
            s(f"s_add_u32 s{d}, s{lo}, {const:#x}\ns_addc_u32 s{d+1}, s{hi}, 0")
        elif const < 0:
            s(f"s_sub_u32 s{d}, s{lo}, {-const:#x}\ns_subb_u32 s{d+1}, s{hi}, 0")
        elif soff is None:
            s(f"s_mov_b32 s{d}, s{lo}\ns_mov_b32 s{d+1}, s{hi}")
        nb = nbytes if isinstance(nbytes, str) else f"{nbytes:#x}"
        s(f"s_mov_b32 s{d+2}, {nb}\ns_mov_b32 s{d+3}, 0x20000")


def stamp(g, o, idx):
    if o.get("stamp"):
        g(f"s_memtime s[88:89]\ns_waitcnt lgkmcnt(0)\nv_writelane_b32 v{VST}, s88, {idx}")
        if idx in (4, 5, 18, 13):
            g(f"s_memrealtime s[88:89]\ns_waitcnt lgkmcnt(0)\nv_writelane_b32 v{VST}, s88, {20 + (4, 5, 18, 13).index(idx)}")
        if idx == 0:
            g(f"s_memrealtime s[88:89]\ns_waitcnt lgkmcnt(0)\nv_writelane_b32 v{VST}, s88, 30")


def stamp_flush(g, o, idx):
    if not o.get("stamp"):
        return
    lab = g.newlabel("st")
    g("s_waitcnt vmcnt(0)")
    stamp(g, o, idx)
    g(f"s_memrealtime s[88:89]\ns_waitcnt lgkmcnt(0)\nv_writelane_b32 v{VST}, s88, 31")
    g(f"s_cmp_lg_u32 s3, 0\ns_cbranch_scc1 {lab}")
    g.srd(92, PWS, 0x100000, STAMP)
    g("v_lshlrev_b32 v0, 2, v1\ns_lshl_b32 s90, s2, 7\ns_mov_b64 exec, 0xffffffff")
    g(f"buffer_store_dword v{VST}, v0, s[92:95], s90 offen")
    g.label(lab)


def wave_sum(g, regs):
    steps = ["quad_perm:[1,0,3,2] row_mask:0xf", "quad_perm:[2,3,0,1] row_mask:0xf", "row_half_mirror row_mask:0xf",
             "row_mirror row_mask:0xf", "row_bcast:15 row_mask:0xa", "row_bcast:31 row_mask:0xc"]
    for st in steps:
        g("s_nop 1" if len(regs) == 1 else "s_nop 0")
        for r in regs:
            g(f"v_add_f32_dpp v{r}, v{r}, v{r} {st} bank_mask:0xf")
    g("s_nop 1")


def tag_issue(g):
    lab = g.newlabel("tg")
    g.srd(28, PDBG, 256)
    g(f"v_mov_b32 v18, 0\ns_or_b32 s4, s2, s3\ns_cmp_lg_u32 s4, 0\ns_cbranch_scc1 {lab}")
    g("s_memrealtime s[4:5]\ns_waitcnt lgkmcnt(0)\ns_lshl_b32 s4, s4, 3\ns_or_b32 s4, s4, 0x80000000\nv_mov_b32 v19, s4")
    g("buffer_store_dword v19, v18, s[28:31], 0 offen sc1")
    g.label(lab)


def tag_load(g):
    g("buffer_load_dword v30, v18, s[28:31], 0 offen sc1")


def tag_get(g):
    l0, l1 = g.newlabel("tg"), g.newlabel("tgd")
    g("s_mov_b32 s5, 0x80000\nv_mov_b32 v18, 0")
    g.label(l0)
    g(f"v_readfirstlane_b32 s100, v30\ns_sub_u32 s5, s5, 1\ns_cbranch_scc1 {l1}\ns_cmp_lg_u32 s100, 0\ns_cbranch_scc1 {l1}")
    g(f"s_sleep 1\nbuffer_load_dword v30, v18, s[28:31], 0 offen sc1\ns_waitcnt vmcnt(0)\ns_branch {l0}")
    g.label(l1)
    g.srd(28, PWS, 0x8000, FLG)


def publish(g, val, first=False, younger=0, wave=0):
    lab = g.newlabel("pub")
    g(f"s_waitcnt vmcnt({younger})")
    if first:
        tag_get(g)
    g("s_barrier")
    g(f"s_cmp_lg_u32 s3, {wave}\ns_cbranch_scc1 {lab}")
    g(f"s_lshl_b32 s4, s43, 7\ns_add_u32 s5, s100, {val}\nv_lshl_add_u32 v18, v1, 2, s4\nv_mov_b32 v19, s5\ns_mov_b64 exec, 0xffffffff")
    g("buffer_store_dword v19, v18, s[28:31], 0 offen sc1\ns_mov_b64 exec, -1")
    g.label(lab)


def flag_bad(g, vals):
    for k, (vf, thr) in enumerate(vals):
        g(f"v_subrev_u32 v{vf}, s100, v{vf}\nv_subrev_u32 v{vf}, {thr}, v{vf}")
        if k:
            g(f"v_max_u32 v{vals[0][0]}, v{vals[0][0]}, v{vf}")
    g(f"v_cmp_lt_u32 vcc, 7, v{vals[0][0]}")


def poll(g, addrs, sleep=1, wave=0):
    l0, l1 = g.newlabel("poll"), g.newlabel("polld")
    g(f"s_cmp_lg_u32 s3, {wave}\ns_cbranch_scc1 {l1}\ns_mov_b32 s5, 0x80000")
    g.label(l0)
    for k, (va, thr) in enumerate(addrs):
        g(f"buffer_load_dword v{18+k}, v{va}, s[28:31], 0 offen sc1")
    g("s_waitcnt vmcnt(0)")
    flag_bad(g, [(18 + k, thr) for k, (va, thr) in enumerate(addrs)])
    g(f"s_sub_u32 s5, s5, 1\ns_cbranch_scc1 {l1}")
    g(f"s_cbranch_vccz {l1}\ns_sleep {sleep}\ns_branch {l0}")
    g.label(l1)
    g("s_barrier")


XP, EP = 2064, 1040
LN_EB = LDS_AUX + 8 * XP
LN_OB = LN_EB + 5 * EP
LN_RB = LN_OB + 4 * EP


def ln_loads(g):
    g("v_lshlrev_b32 v32, 4, v1\nv_sub_u32 v33, 0x7f0, v32")
    g("s_lshl_b32 s44, s43, 2\ns_add_u32 s44, s44, s3")
    g("s_sub_u32 s45, 2048, s44\ns_cmp_eq_u32 s44, 0\ns_cselect_b32 s45, 1024, s45")
    g("s_lshl_b32 s46, s44, 11\ns_lshl_b32 s47, s45, 11")
    g.srd(20, PX, S * D * 2)
    g("buffer_load_dwordx4 v[40:43], v32, s[20:23], s46 offen\nbuffer_load_dwordx4 v[44:47], v33, s[20:23], s46 offen")
    g("buffer_load_dwordx4 v[48:51], v32, s[20:23], s47 offen\nbuffer_load_dwordx4 v[52:55], v33, s[20:23], s47 offen")


def ln_body(g0, o, younger, pfx, fill, warm):
    fill = list(fill)

    class Spr:
        n = 0
        on = False

        def __call__(s, txt):
            for ln in txt.split("\n"):
                g0(ln)
                if s.on and ln.strip().startswith("v_") and "dpp" not in ln and "readlane" not in ln and "v_cmp" not in ln:
                    s.n += 1
                    if s.n % 10 == 0 and fill:
                        for ins in fill.pop(0):
                            g0("s_nop 0" if ins == "@" else ins)

        def __getattr__(s, k):
            return getattr(g0, k)
    g = Spr()
    XA, XB = 56, 72
    g.srd(24, PWS, 0x2000000)
    g("s_mov_b32 s48, 0xffff0000")
    g(f"s_waitcnt vmcnt({younger + 2})")
    stamp(g, o, 1)
    for i in range(8):
        g(f"v_lshlrev_b32 v{XA+2*i}, 16, v{40+i}\nv_and_b32 v{XA+2*i+1}, s48, v{40+i}")
    g(f"s_waitcnt vmcnt({younger})")
    if warm:
        g(f"s_cmp_lg_u32 s3, 3\ns_cbranch_scc1 {pfx}_nowarm")
        warm()
        g.label(pfx + "_nowarm")
    g.on = True
    for i in range(8):
        g(f"v_lshlrev_b32 v{XB+2*i}, 16, v{48+i}\nv_and_b32 v{XB+2*i+1}, s48, v{48+i}")
    MA, MB, VA, VB = 88, 92, 96, 100
    for X, T in ((XA, MA), (XB, MB)):
        g(f"v_pk_add_f32 v[{T}:{T+1}], v[{X}:{X+1}], v[{X+2}:{X+3}]")
        g(f"v_pk_add_f32 v[{T+2}:{T+3}], v[{X+4}:{X+5}], v[{X+6}:{X+7}]")
        for i in (8, 12):
            g(f"v_pk_add_f32 v[{T}:{T+1}], v[{T}:{T+1}], v[{X+i}:{X+i+1}]")
            g(f"v_pk_add_f32 v[{T+2}:{T+3}], v[{T+2}:{T+3}], v[{X+i+2}:{X+i+3}]")
        g(f"v_pk_add_f32 v[{T}:{T+1}], v[{T}:{T+1}], v[{T+2}:{T+3}]")
        g(f"v_add_f32 v{T}, v{T}, v{T+1}")
    wave_sum(g, [MA, MB])
    g(f"v_readlane_b32 s50, v{MA}, 63\nv_readlane_b32 s51, v{MB}, 63\nv_mov_b32 v34, 0x3a800000\ns_nop 0")
    g(f"v_mul_f32 v{MA}, s50, v34\nv_mul_f32 v{MB}, s51, v34\nv_mov_b32 v{MA+1}, v{MA}\nv_mov_b32 v{MB+1}, v{MB}")
    for T in (VA, VB):
        g(f"v_mov_b32 v{T}, 0\nv_mov_b32 v{T+1}, 0")
    for i in range(0, 16, 2):
        for X, M, T in ((XA, MA, VA), (XB, MB, VB)):
            g(f"v_pk_add_f32 v[{T+2}:{T+3}], v[{X+i}:{X+i+1}], v[{M}:{M+1}] neg_lo:[0,1] neg_hi:[0,1]")
        for X, M, T in ((XA, MA, VA), (XB, MB, VB)):
            g(f"v_pk_fma_f32 v[{T}:{T+1}], v[{T+2}:{T+3}], v[{T+2}:{T+3}], v[{T}:{T+1}]")
    g(f"v_add_f32 v{VA}, v{VA}, v{VA+1}\nv_add_f32 v{VB}, v{VB}, v{VB+1}")
    wave_sum(g, [VA, VB])
    g(f"v_readlane_b32 s50, v{VA}, 63\nv_readlane_b32 s51, v{VB}, 63")
    g(f"v_cvt_pk_bf16_f32 v{MA+2}, v{MA}, v{MB}\ns_nop 0")
    g(f"v_mul_f32 v{VA}, s50, v34\nv_mul_f32 v{VB}, s51, v34")
    g(f"v_lshlrev_b32 v{MA}, 16, v{MA+2}\nv_and_b32 v{MB}, s48, v{MA+2}")
    g(f"v_cvt_pk_bf16_f32 v{VA+1}, v{VA}, v{VB}")
    g(f"v_mov_b32 v{MA+1}, v{MA}\nv_mov_b32 v{MB+1}, v{MB}")
    g(f"v_lshlrev_b32 v{VA}, 16, v{VA+1}\nv_and_b32 v{VB}, s48, v{VA+1}")
    g(f"v_add_f32 v{VA}, 0x3727c5ac, v{VA}\nv_add_f32 v{VB}, 0x3727c5ac, v{VB}")
    g(f"v_cvt_pk_bf16_f32 v{VA+1}, v{VA}, v{VB}")
    g(f"v_lshlrev_b32 v{VA}, 16, v{VA+1}\nv_and_b32 v{VB}, s48, v{VA+1}")
    g(f"v_sqrt_f32 v{VA}, v{VA}\nv_sqrt_f32 v{VB}, v{VB}")
    for X, M, PKD in ((XA, MA, 40), (XB, MB, 48)):
        for i in range(8):
            a = X + 2 * i
            g(f"v_pk_add_f32 v[{a}:{a+1}], v[{a}:{a+1}], v[{M}:{M+1}] neg_lo:[0,1] neg_hi:[0,1]")
    g(f"v_cvt_pk_bf16_f32 v{VA+1}, v{VA}, v{VB}")
    g(f"v_lshlrev_b32 v{VA}, 16, v{VA+1}\nv_and_b32 v{VB}, s48, v{VA+1}")
    g(f"v_rcp_f32 v{VA}, v{VA}\nv_rcp_f32 v{VB}, v{VB}")
    for X, PKD in ((XA, 40), (XB, 48)):
        for i in range(8):
            g(f"v_cvt_pk_bf16_f32 v{PKD+i}, v{X+2*i}, v{X+2*i+1}")
    g(f"v_mov_b32 v{VA+1}, v{VA}\nv_mov_b32 v{VB+1}, v{VB}")
    for X, R, PKD in ((XA, VA, 40), (XB, VB, 48)):
        for i in range(8):
            a = X + 2 * i
            g(f"v_lshlrev_b32 v{a}, 16, v{PKD+i}\nv_and_b32 v{a+1}, s48, v{PKD+i}")
        for i in range(8):
            a = X + 2 * i
            g(f"v_pk_mul_f32 v[{a}:{a+1}], v[{a}:{a+1}], v[{R}:{R+1}]")
        for i in range(8):
            g(f"v_cvt_pk_bf16_f32 v{PKD+i}, v{X+2*i}, v{X+2*i+1}")
    g.on = False
    assert not fill
    g(f"s_mul_i32 s49, s3, {XP}\ns_add_u32 s49, s49, {LDS_AUX}")
    g("v_add_u32 v35, s49, v32\nv_add_u32 v36, s49, v33")
    g("ds_write_b128 v35, v[40:43]\nds_write_b128 v36, v[44:47]")
    g(f"ds_write_b128 v35, v[48:51] offset:{4*XP}\nds_write_b128 v36, v[52:55] offset:{4*XP}")
    for X, PKD in ((XA, 40), (XB, 48)):
        for i in range(8):
            a = X + 2 * i
            g(f"v_lshlrev_b32 v{a}, 16, v{PKD+i}\nv_and_b32 v{a+1}, s48, v{PKD+i}")
    g(f"s_mul_i32 s49, s3, {EP}\ns_add_u32 s49, s49, {LN_EB}\nv_add_u32 v37, s49, v32")
    E, O, PK, TM = 104, 120, 136, 140

    def dfold(src, sign):
        op = "v_add_f32" if sign > 0 else "v_sub_f32"
        g(f"s_nop 1\nv_mov_b32_dpp v{TM+8}, v{src+8} wave_shr:1 row_mask:0xf bank_mask:0xf bound_ctrl:0")
        for j in range(1, 8):
            g(f"{op} v{TM+j}, v{src+j}, v{src+16-j}")
        g(f"{op} v{TM}, v{src}, v{TM+8}")
        for j in range(4):
            g(f"v_cvt_pk_bf16_f32 v{PK+j}, v{TM+2*j}, v{TM+2*j+1}")

    def even_row(src, lds_off, own):
        dfold(src, +1)
        g(f"ds_write_b128 v37, v[{PK}:{PK+3}] offset:{lds_off}")
        g(f"v_pk_add_f32 v[{TM}:{TM+1}], v[{src}:{src+1}], v[{src+2}:{src+3}]")
        for i in range(4, 16, 2):
            g(f"v_pk_add_f32 v[{TM}:{TM+1}], v[{TM}:{TM+1}], v[{src+i}:{src+i+1}]")
        g(f"v_sub_f32 v{TM}, v{TM}, v{TM+1}")
        wave_sum(g, [TM])
        g("s_mov_b32 exec_lo, 0\ns_mov_b32 exec_hi, 0x80000000")
        if own:
            g(f"s_lshl_b32 s50, s3, 2\ns_add_u32 s50, s50, {LN_RB}\nv_mov_b32 v{TM+2}, s50")
            g(f"ds_write_b32 v{TM+2}, v{src+8}\nds_write_b32 v{TM+2}, v{TM} offset:16")
        else:
            g(f"v_readlane_b32 s51, v{src+8}, 63\nv_readlane_b32 s52, v{TM}, 63\ns_mov_b64 exec, 0xffffffff\ns_mov_b32 s50, {REC + 256*128:#x}")
            g(f"v_mov_b32 v{TM+3}, s52\nv_lshlrev_b32 v{TM+2}, 2, v1\nv_writelane_b32 v{TM+3}, s51, 0")
            g(f"buffer_store_dword v{TM+3}, v{TM+2}, s[24:27], s50 offen sc1")
        g("s_mov_b64 exec, -1")

    lz, lj, ld = pfx + "_pair0", pfx + "_join", pfx + "_lnd"
    g(f"s_cmp_eq_u32 s44, 0\ns_cbranch_scc1 {lz}")
    for i in range(0, 16, 2):
        g(f"v_pk_add_f32 v[{O+i}:{O+i+1}], v[{XA+i}:{XA+i+1}], v[{XB+i}:{XB+i+1}] neg_lo:[0,1] neg_hi:[0,1]")
    for i in range(0, 16, 2):
        g(f"v_pk_add_f32 v[{E+i}:{E+i+1}], v[{XA+i}:{XA+i+1}], v[{XB+i}:{XB+i+1}]")
    dfold(O, -1)
    g(f"ds_write_b128 v37, v[{PK}:{PK+3}] offset:{LN_OB - LN_EB}")
    even_row(E, 0, True)
    g(f"s_branch {lj}")
    g.label(lz)
    even_row(XA, 0, True)
    even_row(XB, 4 * EP, False)
    for j in range(4):
        g(f"v_mov_b32 v{PK+j}, 0")
    g(f"ds_write_b128 v37, v[{PK}:{PK+3}] offset:{LN_OB - LN_EB}")
    g.label(lj)
    g("v_and_b32 v40, 3, v1\nv_lshrrev_b32 v49, 4, v1\nv_bfe_u32 v50, v1, 2, 2")
    g(f"s_mov_b32 s49, {LDS_AUX}\ns_cmp_eq_u32 s3, 1\ns_cselect_b32 s49, {LDS_AUX + 4*XP}, s49\ns_cselect_b32 s48, 0x200000, 0")
    g(f"s_lshr_b32 s50, s43, 6\ns_lshl_b32 s51, s50, 19\ns_add_u32 s48, s48, s51\ns_add_u32 s53, s48, 0x40000\ns_lshl_b32 s50, s50, 18")
    g(f"s_add_u32 s46, s50, {XEE:#x}\ns_add_u32 s47, s50, {XOO:#x}\ns_mov_b32 s51, {XP}\ns_mov_b32 s52, 1024\ns_cmp_eq_u32 s3, 2")
    g(f"s_cselect_b32 s49, {LN_EB}, s49\ns_cselect_b32 s51, {EP}, s51\ns_cselect_b32 s52, {LN_OB - LN_EB}, s52\ns_cselect_b32 s48, s46, s48\ns_cselect_b32 s53, s47, s53")
    g("s_and_b32 s50, s43, 63\ns_lshl_b32 s50, s50, 8\nv_and_b32 v46, 15, v1\nv_lshlrev_b32 v46, 4, v46\nv_lshl_add_u32 v46, v49, 14, v46\nv_add_u32 v46, s50, v46")
    g("v_mul_lo_u32 v53, v40, s51\nv_lshl_add_u32 v53, v49, 6, v53\nv_lshl_add_u32 v53, v50, 3, v53\nv_add_u32 v53, s49, v53\nv_add_u32 v54, s52, v53")
    g("v_mov_b32 v18, 0\ns_waitcnt lgkmcnt(0)\ns_barrier")
    stamp(g, o, 2)
    tag_load(g)
    g(f"s_cmp_eq_u32 s3, 3\ns_cbranch_scc1 {ld}")
    for n in range(8):
        g(f"ds_read2_b64 v[{56+4*n}:{59+4*n}], v{53 + (n >> 2)} offset0:{(n&3)*32} offset1:{(n&3)*32+4}")
    for n in range(8):
        sr = 48 if n < 4 else 53
        g(f"s_waitcnt lgkmcnt({7-n})\nbuffer_store_dwordx4 v[{56+4*n}:{59+4*n}], v46, s[24:27], s{sr} offen sc1\ns_add_u32 s{sr}, s{sr}, 0x10000")
    g(f"s_cmp_lg_u32 s3, 2\ns_cbranch_scc1 {ld}")
    g(f"v_lshlrev_b32 v51, 2, v1\nv_add_u32 v52, {LN_RB}, v51\ns_lshl_b32 s52, s43, 7\ns_add_u32 s52, s52, {REC:#x}\ns_mov_b64 exec, 0xffffffff")
    g("ds_read_b32 v90, v52\ns_waitcnt lgkmcnt(0)\nbuffer_store_dword v90, v51, s[24:27], s52 offen sc1\ns_mov_b64 exec, -1")
    g(f"s_cmp_lg_u32 s43, 0\ns_cbranch_scc1 {ld}")
    g("v_lshrrev_b32 v49, 2, v1\nv_and_b32 v50, 3, v1\nv_lshlrev_b32 v51, 4, v1")
    g("v_lshlrev_b32 v52, 6, v49\nv_lshl_add_u32 v52, v50, 3, v52")
    g(f"v_add_u32 v52, {LN_EB + 4*EP}, v52")
    g("ds_read2_b64 v[92:95], v52 offset0:0 offset1:4")
    g(f"s_mov_b32 s52, {XEEX:#x}")
    g("s_waitcnt lgkmcnt(0)\nbuffer_store_dwordx4 v[92:95], v51, s[24:27], s52 offen sc1")
    g.label(ld)


class Core:
    NS = 4

    def __init__(s, g, MF, nh, SUBS, act_first, wpitch, xblocks=0, span=0.85, wsrd=12, vW=13, sW=(33, 35), tch=False, dact=False):
        s.g, s.MF, s.nh, s.SUBS, s.act_first, s.wpitch = g, MF, nh, SUBS, act_first, wpitch
        s.dact = dact
        s.NF = (8 if dact else 4) * nh
        s.nA = MF if dact else MF // 2
        s.gact = (4 if dact else 2) * MF * 1024
        s.actb = 0 if dact else s.gact
        s.subb = s.actb + nh * 8192
        s.slotb = s.subb * SUBS
        s.ringb = s.slotb * s.NS
        s.xb = xblocks
        s.xbase = s.ringb
        assert s.ringb + xblocks * 1024 <= LDS_AUX
        s.pA, s.pW = s.nA * SUBS, 2 * nh * SUBS
        s.tch = tch
        s.wrap = None
        s.sw = []
        s.rot2 = False
        s.aperm = False
        s.wpol = ''
        s.ndma = s.pA + s.pW
        s.span = span
        s.acc = {}
        v, a = 32, 128
        order = [(j, i) for i in range(MF) for j in range(s.NF)] if dact else [(j, i) for j in range(s.NF) for i in range(MF)]
        for j, i in order:
            if True:
                if v + 4 <= 256:
                    s.acc[j, i] = ("v", v); v += 4
                else:
                    s.acc[j, i] = ("a", a); a += 4
        if s.xb:
            s.accx = v; v += 4
        s.vtop = v
        s.nfr = (0 if dact else MF) + s.NF + (2 if s.xb else 0)
        s.fper = s.nfr * 4 * SUBS
        assert 2 * s.fper <= 128
        s.vArd = [2, 3]
        s.vWrd = [[4, 5, 6, 7], [8, 9, 10, 11]]
        s.vAdma = 12
        s.vWdma = [vW + k for k in range(2 * nh)]
        s.vX, s.vXW = 17, (22, 23)
        s.wsrd = wsrd
        s.sAoff, s.sMA, s.sCnt = 32, 34, 36
        s.sWoff, s.sMW = sW

    def accr(s, j, i):
        k, r = s.acc[j, i]
        return f"{k}[{r}:{r+3}]"

    def fr(s, st, u, n):
        return st * s.fper + u * s.nfr * 4 + n * 4

    def fw(s, st, u, j):
        return s.fr(st, u, (0 if s.dact else s.MF) + j)

    def fa(s, p, u, i):
        if s.dact:
            return 128 + ((p & 3) * s.SUBS + u) * s.MF * 4 + i * 4
        return s.fr(p & 1, u, i)

    def setup_w(s):
        g = s.g
        g(f"s_mul_i32 s{s.sMW}, s3, {s.nh*2048}\ns_add_u32 s{s.sMW}, s{s.sMW}, {s.actb}\ns_mov_b32 s{s.sWoff}, 0")
        g("v_lshrrev_b32 v19, 4, v1\nv_and_b32 v20, 15, v1")
        g(f"s_mov_b32 s40, {s.wpitch}\ns_mul_i32 s39, s3, {8*s.wpitch}")
        for u in range(2):
            g(f"v_add_u32 v21, {4*u}, v19")
            g("v_mul_lo_u32 v18, v21, s40\nv_add_u32 v18, s39, v18")
            g("v_lshlrev_b32 v21, 1, v21\nv_xor_b32 v21, v21, v20\nv_lshl_add_u32 v18, v21, 4, v18")
            for h in range(s.nh):
                g(f"v_add_u32 v{s.vWdma[2*h+u]}, {4096 - (2*h+u)*1024}, v18")

    def setup_r(s, xsel=None):
        g = s.g
        g("v_lshlrev_b32 v18, 4, v1")
        if s.dact:
            assert s.ringb <= 65536 and s.nh == 1
            g(f"s_mul_i32 s39, s3, {s.nA*1024}\nv_add_u32 v18, s39, v18\ns_mov_b32 s{s.sAoff}, 0")
            for i in range(4):
                g(f"s_add_u32 s39, s58, {i}\ns_and_b32 s39, s39, 3\ns_lshl_b32 s39, s39, 10\nv_add_u32 v{12+i}, s39, v18")
            g("v_bfe_u32 v19, v1, 2, 3\nv_lshrrev_b32 v20, 5, v1\nv_lshlrev_b32 v20, 11, v20\nv_lshl_add_u32 v20, v19, 8, v20")
            g("v_and_b32 v21, 3, v1\nv_lshl_add_u32 v20, v21, 3, v20\nv_lshl_add_u32 v20, v19, 5, v20")
            for j in range(8):
                g(f"v_xor_b32 v{4+j}, {32*j}, v20")
            return
        g(f"s_mul_i32 s39, s37, {s.MF*1024}\nv_add_u32 v{s.vArd[0]}, s39, v18\nv_add_u32 v{s.vArd[1]}, {2*s.slotb}, v{s.vArd[0]}")
        g(f"s_mul_i32 s{s.sMA}, s3, {s.nA*1024}\ns_mov_b32 s{s.sAoff}, 0")
        if s.aperm:
            g("v_bfe_u32 v19, v1, 2, 2\nv_lshlrev_b32 v19, 8, v19\nv_lshrrev_b32 v20, 4, v1\nv_lshl_add_u32 v19, v20, 6, v19\nv_and_b32 v20, 3, v1")
            g(f"v_lshl_add_u32 v19, v20, 4, v19\nv_add_u32 v{s.vAdma}, s{s.sMA}, v19")
        else:
            g(f"v_add_u32 v{s.vAdma}, s{s.sMA}, v18")
        if s.xb:
            g(f"v_add_u32 v{s.vX}, {s.xbase}, v18")
        g("v_bfe_u32 v19, v1, 2, 3")
        g(f"v_lshrrev_b32 v20, 5, v1\nv_mul_u32_u24 v20, {s.nh*2048}, v20\nv_lshl_add_u32 v20, v19, 8, v20")
        g(f"v_and_b32 v21, 3, v1\nv_lshl_add_u32 v20, v21, 3, v20\nv_add_u32 v20, {s.actb}, v20")
        g("s_lshl_b32 s39, s38, 2")
        for jj in range(4):
            g(f"s_add_u32 s40, s39, {jj}\nv_xor_b32 v21, s40, v19")
            g(f"v_lshl_add_u32 v{s.vWrd[0][jj]}, v21, 5, v20\nv_add_u32 v{s.vWrd[1][jj]}, {2*s.slotb}, v{s.vWrd[0][jj]}")
        if s.xb:
            g(f"s_and_b32 s40, {xsel}, 3\ns_add_u32 s40, s40, s39\nv_xor_b32 v21, s40, v19\nv_lshl_add_u32 v{s.vXW[0]}, v21, 5, v20")
            g(f"s_lshr_b32 s40, {xsel}, 2\ns_lshl_b32 s40, s40, 11\nv_add_u32 v{s.vXW[0]}, s40, v{s.vXW[0]}")
            g(f"v_add_u32 v{s.vXW[1]}, {2*s.slotb}, v{s.vXW[0]}")

    def dma_a(s, slot):
        it = []
        for u in range(s.SUBS):
            if s.dact:
                for i in range(s.MF):
                    r = s.fa(slot, u, i)
                    it.append([f"buffer_load_dwordx4 a[{r}:{r+3}], v{12+i}, s[8:11], s{s.sAoff} offen{ASC}"])
                it[-1].append(f"s_add_u32 s{s.sAoff}, s{s.sAoff}, {s.gact}")
                continue
            first = [f"s_add_u32 m0, s{s.sMA}, {slot * s.slotb + u * s.subb}", "@"]
            for i in range(s.nA):
                it.append(first + [f"buffer_load_dwordx4 v{s.vAdma}, s[8:11], s{s.sAoff} offen offset:{i*1024}{ASC} lds"])
                first = []
            it[-1].append(f"s_add_u32 s{s.sAoff}, s{s.sAoff}, {s.gact}")
        return it

    def dma_w(s, slot):
        it = []
        for u in range(s.SUBS):
            first = [f"s_add_u32 m0, s{s.sMW}, {slot * s.slotb + u * s.subb}", "@"]
            for h in range(s.nh):
                for uu in range(2):
                    r = s.wsrd + 4 * h
                    it.append(first + [f"buffer_load_dwordx4 v{s.vWdma[2*h+uu]}, s[{r}:{r+3}], s{s.sWoff} offen offset:{(2*h+uu)*1024}{s.wpol} lds"])
                    first = []
            it[-1].append(f"s_add_u32 s{s.sWoff}, s{s.sWoff}, {32*s.wpitch}")
        return it

    def touch(s):
        return [["buffer_load_dword v29, v26, s[24:27], 0 offen", "v_add_u32 v26, s62, v26"]] if s.tch else []

    def group(s, p):
        a, w = s.dma_a(p + 3 if s.dact else p), s.dma_w(p)
        if getattr(s, "hack", 0) & 1:
            a = []
        if getattr(s, "hack", 0) & 2:
            w = []
        if s.wrap:
            if p == 0:
                w = [[f"s_lshl_b32 s{s.sWoff}, s99, 18", f"s_add_u32 s{s.sWoff}, s{s.sWoff}, s96"]] + w
                w = w + [["buffer_load_dword v30, v26, s[28:31], 0 offen sc1"]]
            if p == 1:
                a = [[f"s_lshl_b32 s{s.sAoff}, s99, 16"]] + a
            if p == 3:
                a = [["ds_read_b32 v17, v16"]] + a
        if s.rot2 and p == 1:
            w = w + [["buffer_load_dword v30, v28, s[28:31], 0 offen sc1"]]
        return s.touch() + (s.sw if p == 3 else []) + a + w

    def reads(s, slot, st):
        it = []
        hi = slot >> 1
        for u in range(s.SUBS):
            if s.dact:
                for j in range(s.NF):
                    r = s.fw(st, u, j)
                    for half in range(2):
                        it.append([f"ds_read_b64_tr_b16 a[{r+2*half}:{r+2*half+1}], v{4+j} offset:{slot*s.slotb + u*s.subb + half*4096}"])
                continue
            base = (slot & 1) * s.slotb + u * s.subb
            wl, al = [], []
            for j in range(s.NF):
                h, jj = divmod(j, 4)
                r = s.fr(st, u, s.MF + j)
                for half in range(2):
                    wl.append(f"ds_read_b64_tr_b16 a[{r+2*half}:{r+2*half+1}], v{s.vWrd[hi][jj]} offset:{base + h*2048 + half*2*s.nh*2048}")
            for i in range(s.MF):
                r = s.fr(st, u, i)
                al.append(f"ds_read_b128 a[{r}:{r+3}], v{s.vArd[hi]} offset:{base + i*1024}")
            if s.xb:
                r = s.fr(st, u, s.MF + s.NF)
                al.append(f"ds_read_b128 a[{r}:{r+3}], v{s.vX}")
                for half in range(2):
                    wl.append(f"ds_read_b64_tr_b16 a[{r+4+2*half}:{r+5+2*half}], v{s.vXW[hi]} offset:{base + half*2*s.nh*2048}")
            while wl or al:
                if al: it.append([al.pop(0)])
                if wl: it.append([wl.pop(0)])
                if wl: it.append([wl.pop(0)])
            if s.xb:
                it.append([f"v_add_u32 v{s.vX}, 1024, v{s.vX}"] + ([f"v_and_or_b32 v{s.vX}, v{s.vX}, s63, v29"] if s.rot2 else []))
        return it

    def mfma1(s, p, j, i):
        a, w = s.fa(p, 0, i), s.fw(p & 1, 0, j)
        A, W = f"a[{a}:{a+3}]", f"a[{w}:{w+3}]"
        x, y = (A, W) if s.act_first else (W, A)
        return f"v_mfma_f32_16x16x32_bf16 {s.accr(j,i)}, {x}, {y}, {s.accr(j,i)}"

    def final_phase(s, vm, blocks, lag, pre_items=()):
        g = s.g
        g(f"s_waitcnt vmcnt({vm}) lgkmcnt(0)" if vm is not None else "s_waitcnt lgkmcnt(0)")
        g("s_barrier")
        pre = [ins for grp in pre_items for ins in grp]
        for b, (tiles, _) in enumerate(blocks):
            work = list(blocks[b - lag][1]) if b >= lag else []
            if b < lag and pre:
                k = -(-len(pre) // (lag - b))
                work, pre = ["s_nop 0" if x == "@" else x for x in pre[:k]], pre[k:]
            per = -(-len(work) // len(tiles))
            for (j, i) in tiles:
                g(s.mfma1(3, j, i))
                for ins in work[:per]:
                    g(ins)
                work = work[per:]
        g("s_nop 7")
        for b in range(len(blocks) - lag, len(blocks)):
            for ins in blocks[b][1]:
                g(ins)

    def mfmas(s, p, zero):
        out = []
        st = p & 1
        for u in range(s.SUBS):
            z = zero and u == 0
            for j in range(s.NF):
                ii = range(s.MF) if j % 2 == 0 else range(s.MF - 1, -1, -1)
                for i in ii:
                    a, w = s.fa(p, u, i), s.fw(st, u, j)
                    A, W = f"a[{a}:{a+3}]", f"a[{w}:{w+3}]"
                    x, y = (A, W) if s.act_first else (W, A)
                    out.append(f"v_mfma_f32_16x16x32_bf16 {s.accr(j,i)}, {x}, {y}, {'0' if z else s.accr(j,i)}")
            if s.xb:
                a = s.fr(st, u, s.MF + s.NF)
                c = f"v[{s.accx}:{s.accx+3}]"
                out.append(f"v_mfma_f32_16x16x32_bf16 {c}, a[{a}:{a+3}], a[{a+4}:{a+7}], {'0' if z else c}")
        return out

    def flat(s, items):
        for grp in items:
            for ins in grp:
                s.g("s_nop 0" if ins == "@" else ins)

    def phase(s, p, vm, dma, rd=True, zero=False, tail=None, pre=None, preb=None):
        g = s.g
        st = p & 1
        g(f"s_waitcnt vmcnt({vm}) lgkmcnt(0)" if vm is not None else "s_waitcnt lgkmcnt(0)")
        if preb:
            preb()
        g("s_barrier")
        if pre:
            pre()
        rdl = s.reads((p + 1) % s.NS, st ^ 1) if rd else []
        if getattr(s, "hack", 0) & 4:
            rdl = [x for x in rdl if "b128" not in x[0]]
        if getattr(s, "hack", 0) & 8:
            rdl = [x for x in rdl if "tr_b16" not in x[0]]
        fill = []
        nr, nd = len(rdl), len(dma)
        ri = di = 0
        while ri < nr or di < nd:
            if di < nd and (ri >= nr or di * nr <= ri * nd):
                fill.append(dma[di]); di += 1
            else:
                fill.append(rdl[ri]); ri += 1
        flat = []
        for grp in fill:
            cur = []
            for ins in grp:
                if ins == "@":
                    flat.append(cur); cur = []
                else:
                    cur.append(ins)
            flat.append(cur)
        mf = s.mfmas(p, zero)
        n = len(mf)
        lim = max(1, int(n * s.span))
        pos = {}
        for idx, grp in enumerate(flat):
            pos.setdefault(min(n - 2, idx * lim // len(flat)), []).append(grp)
        for k, m in enumerate(mf):
            g(m)
            grps = pos.get(k, [])
            for gi, grp in enumerate(grps):
                if gi and grps[gi-1] and grps[gi-1][-1].startswith("s_add_u32 m0"):
                    g("s_nop 0")
                for ins in grp:
                    g(ins)
            if tail and k == n - 2:
                g(tail)

    def start(s, nT=0, touch=None, chk=None, late=None, extra=()):
        g = s.g
        extra = list(extra)
        if s.dact:
            for p in range(3):
                k = -(-len(extra) // (3 - p))
                grp, extra = extra[:k], extra[k:]
                s.phase(p, 0 if p == 2 else None, grp, zero=(p == 0), pre=(late if p == 2 else None))
            s.phase(3, 0, s.restart(), rd=False, preb=chk[0], pre=chk[1])
            return
        for slot in range(s.NS):
            s.flat(s.dma_a(slot))
        if touch:
            touch()
        g(f"s_waitcnt vmcnt({3*s.pA + nT}) lgkmcnt(0)\ns_barrier")
        s.flat(s.reads(0, 0))
        vms = [2 * s.pA + nT, s.pA + nT + s.ndma, nT + 2 * s.ndma, 2 * s.ndma]
        for p in range(4):
            s.phase(p, vms[p], s.group(p), zero=(p == 0))

    def restart(s):
        it = [[f"s_lshl_b32 s{s.sWoff}, s99, 18", f"s_add_u32 s{s.sWoff}, s{s.sWoff}, s96", f"s_lshl_b32 s{s.sAoff}, s99, 16"]]
        for p in range(3):
            it += s.dma_w(p) + s.dma_a(p)
        return it + s.dma_w(3)

    def loop(s, cnt, name, head=None, chk=None):
        g = s.g
        g(f"s_mov_b32 s{s.sCnt}, {cnt}")
        g.label(name)
        if head:
            head()
        for p in range(4):
            s.phase(p, 2 * s.ndma, s.group(p), preb=(chk.get(p) if isinstance(chk, dict) else chk if p == 0 else None),
                    tail=(f"s_sub_u32 s{s.sCnt}, s{s.sCnt}, 1\ns_cmp_lg_u32 s{s.sCnt}, 0" if p == 3 else None))
        g(f"s_cbranch_scc1 {name}")

    def last(s, fills=None, pres=None, flfirst=False, final=None):
        fills = fills or [[], [], [], []]
        pres = pres or [None] * 4
        cnt = lambda f: sum(1 for grp in f for ins in grp if ins.startswith("buffer_"))
        if s.dact:
            fills = [fills[0] + s.dma_a(3) if flfirst else s.dma_a(3) + fills[0]] + list(fills[1:])
        n = [cnt(f) for f in fills]
        vms = [2 * s.ndma, s.ndma + n[0], n[0] + n[1], ((0 if flfirst else n[0] - s.pA) + n[1] + n[2]) if s.dact else None]
        for p in range(4):
            if p == 3 and final:
                s.final_phase(vms[3], final[0], final[1], fills[3])
            else:
                s.phase(p, vms[p], fills[p], rd=(p < 3), pre=pres[p])


def accv(g, core, j, i, tmp):
    k, r = core.acc[j, i]
    if k == "v":
        return r
    for x in range(4):
        g(f"v_accvgpr_read_b32 v{tmp+x}, a{r+x}")
    return tmp


def warm_lines(g, ptr, nbytes, first, rl, pitch, n, step):
    g.srd(8, ptr, nbytes)
    g(f"v_add_u32 v26, {first}, v1\nv_lshrrev_b32 v27, {rl}, v26\nv_lshlrev_b32 v28, {rl}, v27\nv_sub_u32 v26, v26, v28")
    g(f"s_mov_b32 s4, {pitch}\nv_mul_lo_u32 v27, v27, s4\nv_lshl_add_u32 v26, v26, 7, v27")
    for k in range(n):
        g("buffer_load_dword v29, v26, s[8:11], 0 offen")
        if k + 1 < n:
            g(f"v_add_u32 v26, {(step >> rl) * pitch}, v26")


def cnt_vm(items):
    return sum(1 for grp in items for ins in grp if ins.startswith("buffer_"))


def k2_sids(g):
    g("s_and_b32 s56, s41, 1\ns_lshl_b32 s56, s56, 2\ns_and_b32 s57, s42, 3\ns_add_u32 s56, s56, s57\ns_lshr_b32 s57, s42, 2\ns_lshr_b32 s58, s41, 1")


def slab_srd(g):
    g(f"s_lshl_b32 s4, s56, 3\ns_add_u32 s4, s4, s57\ns_mul_i32 s4, s4, {4*49152}\ns_lshl_b32 s5, s3, 12\ns_add_u32 s4, s4, s5")
    g.srd(24, PWS, 4 * 49152, PART, "s4")


def n_early(o):
    return (12 if o.get("sent", 0) else 0) + (1 if o.get("codepf", 1) else 0)


def early(g, o):
    if o.get("codepf", 1):
        g("s_getpc_b64 s[4:5]\ns_and_b32 s24, s4, 0xffffff00\ns_mov_b32 s25, s5\ns_mov_b32 s26, 0xd000\ns_mov_b32 s27, 0x20000")
        g("s_lshl_b32 s4, s42, 2\ns_add_u32 s4, s4, s3\ns_lshl_b32 s4, s4, 9\nv_lshlrev_b32 v26, 7, v1\nv_add_u32 v26, s4, v26\ns_mov_b64 exec, 15")
        g("buffer_load_dword v29, v26, s[24:27], 0 offen\ns_mov_b64 exec, -1")
    if o.get("sent", 0):
        k2_sids(g)
        slab_srd(g)
        g("s_mul_i32 s4, s58, 49152\nv_mov_b32 v36, -1\nv_mov_b32 v37, -1\nv_mov_b32 v38, -1\nv_mov_b32 v39, -1")
        for i in range(3):
            for k in range(4):
                g(f"buffer_store_dwordx4 v[36:39], v32, s[24:27], s4 offen offset:{k*1024} sc1")
            g("s_add_u32 s4, s4, 16384")


def k2_ids(g, o):
    k2_sids(g)
    c2 = Core(g, MF=4, nh=1, SUBS=1, act_first=False, wpitch=D * 2, wsrd=20, vW=24, sW=(59, 60), span=o.get("span2", 0.9), dact=True)
    c2.wpol = o.get('w2pol', '')
    c2.setup_w()
    g(f"s_mul_i32 s96, s58, {896 * D * 2}")
    g("s_sub_u32 s98, s42, 4\ns_max_i32 s98, s98, 0\ns_lshr_b32 s98, s98, 2")
    g("s_lshl_b32 s59, s98, 18\ns_add_u32 s59, s59, s96")
    c2.wrap = True
    g(f"s_lshl_b32 s44, s57, 8\ns_sub_u32 s45, {F*D*2 + 4096}, s44")
    g.srd(20, PWD, "s45", -4096, "s44")
    return c2


XS, PS, AX, AP, RB, GO = 160, 164, 168, 176, 184, 188


def spin(g, va, thr, first_loaded, vf=30, lane=None):
    l0, l1, l2 = g.newlabel("sp"), g.newlabel("spd"), g.newlabel("spc")
    if first_loaded:
        g(f"s_branch {l2}")
    g.label(l0)
    g(f"buffer_load_dword v{vf}, v{va}, s[28:31], 0 offen sc1\ns_waitcnt vmcnt(0)")
    g.label(l2)
    flag_bad(g, [(vf, thr)])
    if lane:
        g(f"s_lshl_b32 s4, 1, {lane}\ns_and_b32 vcc_lo, vcc_lo, s4\ns_mov_b32 vcc_hi, 0")
    g(f"s_sub_u32 s101, s101, 1\ns_cbranch_scc1 {l1}\ns_cbranch_vccnz {l0}")
    g.label(l1)


def k2_rows(g):
    g("v_lshrrev_b32 v18, 4, v1\nv_and_b32 v19, 15, v1\ns_cmp_ge_u32 s56, 4\ns_cselect_b64 s[62:63], -1, 0\nv_mov_b32 v28, 0x400")
    for n in range(4):
        g(f"v_add_u32 v20, {4*n}, v18\nv_xor_b32 v21, v20, v19\nv_lshlrev_b32 v21, 4, v21\nv_add_u32 v21, {4096 - n*1024}, v21\nv_add_u32 v20, s54, v20")
        g(f"v_cmp_eq_u32 vcc, v20, v28\nv_sub_u32 v{XS+n}, 0xc00, v20\nv_and_b32 v{PS+n}, 0x3ff, v20\nv_cndmask_b32 v{XS+n}, v20, v{XS+n}, s[62:63]")
        g(f"v_cndmask_b32 v{XS+n}, v{XS+n}, v28, vcc\nv_cndmask_b32 v{PS+n}, v{PS+n}, v28, vcc")
        g(f"v_lshlrev_b32 v{XS+n}, 11, v{XS+n}\nv_lshl_add_u32 v{GO+n}, v19, 4, v{XS+n}\nv_add_u32 v{XS+n}, v{XS+n}, v21")
        g(f"v_mul_u32_u24 v{PS+n}, {PQ_PITCH}, v{PS+n}\nv_add_u32 v{PS+n}, v{PS+n}, v21")


def tile_pick(g, off=0):
    l0, l1, l2, l3 = g.newlabel("tp"), g.newlabel("tpd"), g.newlabel("tpc"), g.newlabel("tpx")
    g(f"s_cmp_lg_u32 s3, 0\ns_cbranch_scc1 {l3}")
    g(f"s_cmp_eq_u32 s47, 0x7f\ns_cbranch_scc1 {l1}\ns_branch {l2}")
    g.label(l0)
    g("buffer_load_dword v30, v26, s[28:31], 0 offen sc1\ns_waitcnt vmcnt(0)")
    g.label(l2)
    flag_bad(g, [(30, 2)])
    g("s_sub_u32 s101, s101, 1\ns_cselect_b32 s4, 0, vcc_lo\ns_andn2_b32 s4, 0x7f, s4\ns_or_b32 s47, s47, s4")
    g(f"s_and_b32 s4, s47, s97\ns_cbranch_scc0 {l0}")
    g.label(l1)
    g(f"s_and_b32 s4, s47, s97\ns_ff1_i32_b32 s4, s4\ns_bitset0_b32 s97, s4\nv_mov_b32 v17, s4\nds_write_b32 v16, v17 offset:{off}\ns_waitcnt lgkmcnt(0)")
    g.label(l3)


def tile_get(g):
    g("ds_read_b32 v17, v16 offset:4\ns_waitcnt lgkmcnt(0)\nv_readfirstlane_b32 s99, v17")


def tile_dma(g, srd, va, off, sc, one=False):
    g("\n".join([f"s_add_u32 m0, s55, {off}", "s_nop 0"] +
                [f"buffer_load_dwordx4 v{va+n}, s[{srd}:{srd+3}], 0 offen offset:{n*1024}{sc} lds" for n in range(4)]))


def k2_setup(g, o, c2):
    g("s_nop 1")
    c2.setup_r()
    g(f"s_mul_i32 s44, s56, {112*16384}\ns_mul_i32 s45, s58, {28*16384}\ns_add_u32 s44, s44, s45")
    g.srd(8, PWS, 28 * 16384, H, "s44")
    g("s_mul_i32 s44, s56, 28\ns_mul_i32 s45, s58, 7\ns_add_u32 s44, s44, s45")
    g("v_min_u32 v26, 6, v1\nv_add_u32 v26, s44, v26\nv_lshlrev_b32 v26, 7, v26")
    g("s_mov_b32 s101, 0x80000\ns_mov_b32 s47, 0")
    g("s_mov_b32 s97, 0x7f\nv_mov_b32 v30, 0\nv_mov_b32 v16, 0x27ff0\ns_cmp_eq_u32 s3, 0\ns_cselect_b32 s44, 0, 0x80000000\nv_or_b32 v26, s44, v26")


class Rec(G):
    def __init__(s, g):
        s.g0, s.items = g, []

    def __call__(s, txt):
        s.items.append([ln.strip() for ln in txt.split("\n") if ln.strip()])


def k2_tail_setup(g0, o):
    g = Rec(g0)
    g("s_mul_i32 s55, s3, 12288\ns_add_u32 s55, s55, 0x8000")
    g("s_lshl_b32 s54, s56, 8\ns_lshl_b32 s44, s3, 6\ns_add_u32 s54, s54, s44\ns_lshl_b32 s44, s58, 4\ns_add_u32 s54, s54, s44")
    k2_rows(g)
    g(f"s_lshl_b32 s61, s57, 8\ns_sub_u32 s45, {S*D*2 + 4096}, s61")
    g.srd(12, PX, "s45", -4096, "s61")
    tile_dma(g, 12, XS, 0, "", one=True)
    g("s_sub_u32 s48, 1794, s61\ns_cmp_ge_u32 s57, 4\ns_cselect_b32 s44, s48, s61\ns_cselect_b32 s48, 248, 0\ns_cselect_b32 s49, -1, 0")
    g(f"s_sub_u32 s45, {1025*PQ_PITCH + 4096}, s44")
    g.srd(12, PWS, "s45", PP - 4096, "s44")
    g.srd(16, PWS, "s45", QQ - 4096, "s44")
    g("s_xor_b32 s62, s62, s49\ns_cmp_lg_u32 s62, 0\ns_cselect_b32 s62, 1.0, -1.0\ns_mov_b32 s63, s62")
    g("v_and_b32 v18, 15, v1\nv_lshrrev_b32 v19, 5, v1\nv_xor_b32 v19, v19, v18")
    g("v_lshlrev_b32 v19, 4, v19\nv_lshl_add_u32 v19, v18, 8, v19\nv_bfe_u32 v20, v1, 4, 1\nv_lshl_add_u32 v19, v20, 3, v19")
    for j in range(8):
        g(f"v_xor_b32 v20, {32*j}, v19\nv_add_u32 v{AX+j}, s55, v20")
        g(f"v_xor_b32 v20, s48, v20\nv_add_u32 v{AP+j}, s55, v20")
    g("v_lshrrev_b32 v18, 4, v1\nv_and_b32 v19, 15, v1")
    for n in range(4):
        g(f"v_add_u32 v21, {4*n}, v18\nv_xor_b32 v20, v21, v19\nv_lshlrev_b32 v20, 4, v20")
        g(f"v_lshl_add_u32 v20, v21, 8, v20\nv_add_u32 v{RB+n}, s55, v20")
    g(f"s_lshl_b32 s44, s56, 3\ns_add_u32 s44, s44, s57\ns_mul_i32 s44, s44, {4*49152}\ns_lshl_b32 s45, s3, 12\ns_add_u32 s44, s44, s45")
    g.srd(24, PWS, 4 * 49152, PART, "s44")
    for i in range(1, 4):
        g(f"s_add_u32 s{49+i}, s58, {i}\ns_and_b32 s{49+i}, s{49+i}, 3\ns_mul_i32 s{49+i}, s{49+i}, 49152\ns_add_u32 s{49+i}, s{49+i}, {(i-1)*16384}")
    g("s_mul_i32 s53, s58, 49152\nv_lshlrev_b32 v29, 4, v1")
    g("v_and_b32 v22, 31, v1\nv_add_u32 v22, 224, v22\nv_lshlrev_b32 v22, 7, v22")
    g("s_cmp_lt_u32 s42, 4\ns_cselect_b32 s44, 8, 7\nv_min_u32 v23, 2, v1")
    g("v_add_u32 v23, 1, v23\nv_add_u32 v23, s58, v23\nv_and_b32 v23, 3, v23")
    g("s_mul_i32 s45, s58, s44\ns_sub_u32 s45, s43, s45\nv_mul_u32_u24 v23, s44, v23")
    g("v_add_u32 v23, s45, v23\nv_lshlrev_b32 v23, 7, v23")
    g("s_lshl_b32 s44, s3, 2\ns_add_u32 s44, s44, 16\nv_add_u32 v23, s44, v23\ns_lshl_b32 s45, s43, 7\ns_add_u32 s44, s44, s45\nv_mov_b32 v27, s44")
    return g.items


def main_kernel(g, o):
    g.begin(NAME)
    g("s_cmp_ge_u32 s2, 256\ns_cbranch_scc1 L_done")
    g("s_load_dwordx16 s[64:79], s[0:1], 0\ns_load_dwordx8 s[80:87], s[0:1], 64")
    g("v_lshrrev_b32 v2, 6, v0\nv_and_b32 v1, 63, v0\ns_nop 0\nv_readfirstlane_b32 s3, v2")
    if o.get("stamp"):
        g(f"v_mov_b32 v{VST}, 0")
    stamp(g, o, 0)
    g("s_and_b32 s41, s2, 7\ns_lshr_b32 s42, s2, 3\ns_lshr_b32 s37, s3, 1\ns_and_b32 s38, s3, 1")
    g("s_cmp_lt_u32 s42, 4\ns_cbranch_scc1 L_fft")

    g("s_sub_u32 s44, s42, 4")
    g("s_and_b32 s54, s41, 1\ns_lshl_b32 s54, s54, 2\ns_and_b32 s45, s44, 3\ns_add_u32 s54, s54, s45")
    g("s_lshr_b32 s55, s41, 1\ns_mul_i32 s55, s55, 7\ns_lshr_b32 s45, s44, 2\ns_add_u32 s55, s55, s45")
    g("s_mul_i32 s43, s54, 28\ns_add_u32 s43, s43, s55")
    c1 = Core(g, MF=8, nh=2, SUBS=1, act_first=False, wpitch=F * 2, span=o.get("span1", 0.85), tch=o.get("pf", 1))
    c1.aperm = True
    c1.hack = o.get('hack', 0)
    c1.wpol = o.get('w1pol', ' nt')
    c1.setup_w()
    g("s_waitcnt lgkmcnt(0)")
    tag_issue(g)
    ln_loads(g)
    early(g, o)
    g(f"s_lshl_b32 s46, s55, 8\ns_sub_u32 s47, {D*F*2 + 4096}, s46")
    g.srd(12, PWG, "s47", -4096, "s46")
    g.srd(16, PWU, "s47", -4096, "s46")
    nW, nC = o.get("nW", 0), o.get("nC", 0)

    def warm_g():
        g(f"s_cmp_ge_u32 s43, 112\ns_cselect_b32 s62, s{PWU}, s{PWG}\ns_cselect_b32 s63, s{PWU+1}, s{PWG+1}\ns_cselect_b32 s61, 112, 0\ns_sub_u32 s61, s43, s61")
        g(f"s_lshl_b32 s61, s61, 6\ns_add_u32 s61, s61, {128*56}")
        warm_lines(g, 62, D * F * 2, "s61", 0, 128, nW, 7168)
        if not nC:
            return
        g(f"s_bitcmp1_b32 s43, 0\ns_cselect_b32 s62, s{PSI}, s{PSR}\ns_cselect_b32 s63, s{PSI+1}, s{PSR+1}\ns_lshr_b32 s61, s43, 1\ns_lshl_b32 s61, s61, 6")
        warm_lines(g, 62, 1024 * 4096, "s61", 4, 4096, nC, 7168)
    def warm1():
        g("v_mul_u32_u24 v26, 37, v1\nv_lshrrev_b32 v26, 9, v26\nv_mul_u32_u24 v27, 14, v26\nv_sub_u32 v27, v1, v27")
        g(f"s_lshl_b32 s4, s43, 2\nv_add_u32 v26, s4, v26\nv_mul_u32_u24 v26, {F*2}, v26\nv_lshrrev_b32 v28, 1, v27\nv_lshl_add_u32 v26, v28, 10, v26")
        g("v_and_b32 v27, 1, v27\nv_lshl_add_u32 v26, v27, 7, v26")
        for ptr in (PWG, PWU):
            g.srd(8, ptr, D * F * 2)
            g("buffer_load_dword v29, v26, s[8:11], 0 offen offset:256")
    pf = o.get("pf", 1)
    wl = sum((c1.dma_w(slot) for slot in range(4)), [])
    n0, n1 = o.get("wpre", 6), o.get("wmid", 0)
    c1.flat(wl[:n0])
    ln_body(g, o, n_early(o) + n0, "g", wl[n0:n0 + n1], warm_g if (nW or nC) else (warm1 if o.get('warm1', 0) else None))
    late = wl[n0 + n1:]
    post = []
    if o.get("wpost", 1):
        late, post = [], late
    c1.flat(late)
    c1.setup_r()
    g("s_and_b32 s46, s54, 3\ns_lshl_b32 s46, s46, 13\nv_lshl_add_u32 v22, v1, 7, s46")
    g("s_lshl_b32 s46, s54, 19")
    g.srd(8, PWS, 0x80000, XN, "s46")
    lg = o.get("lpw", 3)
    lc = 4 << lg
    g("s_add_u32 s46, s55, 2\ns_lshr_b32 s46, s46, 2\ns_sub_u32 s46, s55, s46\ns_mul_i32 s47, s54, 21\ns_add_u32 s46, s46, s47")
    g(f"s_and_b32 s47, s55, 3\ns_cmp_eq_u32 s47, 1\ns_cselect_b32 s63, 0, {F*D*2}\ns_cselect_b32 s98, 0, {1024*4096}")
    g(f"s_bitcmp1_b32 s46, 0\ns_cselect_b32 s96, s{PSI}, s{PSR}\ns_cselect_b32 s97, s{PSI+1}, s{PSR+1}")
    g(f"v_lshrrev_b32 v18, {lg}, v1\nv_min_u32 v18, 1, v18\nv_lshlrev_b32 v18, 31, v18\ns_lshl_b32 s47, s3, {lg}\nv_add_u32 v19, s47, v1")
    g(f"s_lshl_b32 s47, s46, {lg+2}\nv_add_u32 v20, s47, v19\nv_lshl_or_b32 v23, v20, 7, v18")
    g(f"s_lshr_b32 s46, s46, 1\ns_lshl_b32 s46, s46, {lg+2}\nv_add_u32 v19, s46, v19\nv_and_b32 v21, 15, v19\nv_lshrrev_b32 v20, 4, v19")
    g("v_lshlrev_b32 v20, 12, v20\nv_lshl_add_u32 v20, v21, 7, v20\nv_or_b32 v26, v20, v18")
    publish(g, 1, True, len(late))
    c1.flat(post)
    g(f"s_mov_b32 s24, s96\ns_mov_b32 s25, s97\ns_mov_b32 s26, s98\ns_mov_b32 s27, 0x20000\ns_mov_b32 s62, {84 * lc // 16 * 4096}")
    stamp(g, o, 3)
    poll(g, [(22, 1)], sleep=o.get("psl", 1))
    stamp(g, o, 4)
    c1.start()
    c1.sw = [[f"s_cmp_eq_u32 s{c1.sCnt}, {o.get('sw', 5)}", f"s_cselect_b32 s24, s{PWD}, s24", f"s_cselect_b32 s25, s{PWD+1}, s25",
              "s_cselect_b32 s26, s63, s26", f"s_cselect_b32 s62, {168 * lc * 128}, s62", "s_cselect_b64 s[46:47], -1, 0",
              "v_cndmask_b32 v26, v26, v23, s[46:47]"]]
    c1.loop(6, "L_g1")
    c1.sw = []
    gm, g = g, Rec(g)
    c2 = k2_ids(g, o)
    g.srd(24, PWS, S * F * 2, H)
    g(f"s_mul_i32 s50, s54, {112*16384}\ns_lshl_b32 s51, s37, 13\ns_add_u32 s50, s50, s51")
    g("s_lshl_b32 s51, s55, 2\ns_lshl_b32 s52, s38, 1\ns_add_u32 s51, s51, s52\ns_lshl_b32 s51, s51, 14")
    g("s_add_u32 s50, s50, s51\ns_add_u32 s51, s50, 0x4000")
    g("v_lshlrev_b32 v26, 4, v1\nv_add_u32 v27, 0x1000, v26")
    g(f"s_lshl_b32 s4, s38, 15\ns_lshl_b32 s5, s37, 13\ns_add_u32 s4, s4, s5\ns_add_u32 s4, s4, {HSTG}\nv_add_u32 v28, s4, v26")
    pre_last, g = g.items, gm
    c2.g = g
    blocks = []
    for kbl in range(2):
        for i in range(8):
            o4 = (12, 16)[len(blocks) & 1]
            work = []
            for jj in range(2):
                j = 2 * kbl + jj
                gr = c1.acc[j, i][1]
                kind, ur = c1.acc[4 + j, i]
                if kind == "a":
                    work += [f"v_accvgpr_read_b32 v{20+x}, a{ur+x}" for x in range(4)]
                    ur = 20
                work += [f"v_mul_f32 v{gr+x}, v{gr+x}, v{ur+x}" for x in range(4)] if o.get("epmul", 0) else \
                        [f"v_pk_mul_f32 v[{gr}:{gr+1}], v[{gr}:{gr+1}], v[{ur}:{ur+1}]", f"v_pk_mul_f32 v[{gr+2}:{gr+3}], v[{gr+2}:{gr+3}], v[{ur+2}:{ur+3}]"]
                work += [f"v_cvt_pk_bf16_f32 v{o4+2*jj}, v{gr}, v{gr+1}", f"v_cvt_pk_bf16_f32 v{o4+2*jj+1}, v{gr+2}, v{gr+3}"]
            work.append(f"buffer_store_dwordx4 v[{o4}:{o4+3}], v{26 + (i >> 2)}, s[24:27], s{50+kbl} offen offset:{(i&3)*1024} sc1")
            work.append(f"ds_write_b128 v28, v[{o4}:{o4+3}] offset:{kbl*16384 + i*1024}")
            blocks.append(([(2 * kbl, i), (2 * kbl + 1, i), (4 + 2 * kbl, i), (5 + 2 * kbl, i)], work))
    if True:
        c1.last([pre_last, c2.dma_w(0) + c2.dma_w(1), c2.dma_w(2) + c2.dma_w(3), []], final=(blocks, 3))
    stamp(g, o, 5)
    k2_setup(g, o, c2)
    for i in range(4):
        g(f"v_add_u32 v{18+i}, {HSTG}, v{12+i}")
    g("s_bitset0_b32 s97, s98\ns_waitcnt vmcnt(16) lgkmcnt(0)\ns_barrier")
    stamp(g, o, 6)
    for u in range(4):
        for i in range(4):
            r = c2.fa(u, 0, i)
            g(f"ds_read_b128 a[{r}:{r+3}], v{18+i} offset:{u*16384}")
    stamp(g, o, 10)

    def late2():
        lab = g.newlabel("p2")
        stamp(g, o, 17)
        g(f"s_cmp_lg_u32 s3, 0\ns_cbranch_scc1 {lab}")
        g("s_lshl_b32 s4, s43, 7\ns_add_u32 s5, s100, 2\nv_lshl_add_u32 v2, v1, 2, s4\nv_mov_b32 v3, s5\ns_mov_b64 exec, 0xffffffff")
        g("buffer_store_dword v3, v2, s[28:31], 0 offen sc1\ns_mov_b64 exec, -1")
        g.label(lab)
        g("buffer_load_dword v30, v26, s[28:31], 0 offen sc1")
    c2.flat(c2.reads(0, 0))
    c2.start(late=late2, chk=(lambda: tile_pick(g, 4), lambda: tile_get(g)), extra=k2_tail_setup(g, o))
    stamp(g, o, 18)
    g("s_mov_b32 s46, 5\ns_branch L_k2")

    g.label("L_fft")
    g("s_and_b32 s54, s41, 1\ns_lshr_b32 s55, s41, 1")
    g("s_lshl_b32 s43, s41, 2\ns_add_u32 s43, s43, s42\ns_add_u32 s43, s43, 224")
    f1 = Core(g, MF=8, nh=1, SUBS=1, act_first=True, wpitch=D * 2, xblocks=16)
    f1.aperm = True
    f1.setup_w()
    g("s_waitcnt lgkmcnt(0)")
    tag_issue(g)
    ln_loads(g)
    early(g, o)
    g("s_cmp_eq_u32 s54, 0")
    g(f"s_cselect_b32 s96, s{PHR}, s{PHI}\ns_cselect_b32 s97, s{PHR+1}, s{PHI+1}\ns_cselect_b32 s98, s{PSR}, s{PSI}\ns_cselect_b32 s99, s{PSR+1}, s{PSI+1}")
    g(f"s_lshl_b32 s46, s55, 8\ns_sub_u32 s47, {512*2048 + 4096}, s46")
    g.srd(12, 96, "s47", -4096, "s46")

    def warm_f():
        g(f"s_lshl_b32 s61, s55, 2\ns_add_u32 s61, s61, s42\ns_lshl_b32 s61, s61, 6\ns_add_u32 s62, s61, {128*8}\ns_add_u32 s61, s61, 14336")
        if o.get('warm1', 0):
            warm1()
        warm_lines(g, 96, 512 * 2048, "s62", 3, 2048, 3, 1024)
        if o.get("nCf", 0):
            warm_lines(g, 98, 1024 * 4096, "s61", 4, 4096, o.get("nCf", 0), 1024)
    wl = sum((f1.dma_w(slot) for slot in range(4)), [])
    f1.flat(wl[:n0])
    ln_body(g, o, n_early(o) + min(n0, 8), "f", wl[n0:], warm_f if o.get("warmf", 1) else None)
    late = []
    g("s_lshl_b32 s63, s42, 1\ns_add_u32 s63, s63, s37\ns_and_b32 s63, s63, 3")
    f1.setup_r("s63")
    g("v_lshlrev_b32 v24, 7, v1\nv_add_u32 v25, 0x2000, v24\nv_add_u32 v26, 0x4000, v24\nv_add_u32 v27, 0x6000, v24")
    publish(g, 1, True, len(late))
    stamp(g, o, 3)
    poll(g, [(24, 1), (25, 1), (26, 1), (27, 1)])
    stamp(g, o, 4)
    g(f"s_mul_i32 s46, s54, {XOO - XEE}\ns_lshl_b32 s47, s42, 18\ns_add_u32 s46, s46, s47")
    g.srd(8, PWS, 0x40000, XEE, "s46")
    g.srd(16, PWS, 1024, XEEX)
    g("v_lshlrev_b32 v24, 4, v1\nbuffer_load_dwordx4 v[40:43], v24, s[16:19], 0 offen sc1")

    def t2():
        g(f"v_lshlrev_b32 v24, 8, v1\nv_add_u32 v24, {f1.xbase}, v24\ns_waitcnt vmcnt({4 * f1.pA})\nds_write_b128 v24, v[40:43]")
    f1.start(0, t2)
    f1.loop(2, "L_f1")
    g("s_lshl_b32 s62, s42, 1\ns_add_u32 s62, s62, s37")
    f2 = Core(g, MF=4, nh=2, SUBS=1, act_first=True, wpitch=S * 2, xblocks=32, wsrd=16, vW=24, sW=(59, 60))
    f2.wpol = o.get('f2pol', '')
    f2.setup_w()
    f2.rot2 = True
    g("s_lshl_b32 s59, s42, 20")
    g(f"s_lshl_b32 s46, s42, 9\ns_sub_u32 s47, {1024*4096 + 4096}, s46")
    g.srd(16, 98, "s47", -4096, "s46")
    g("s_sub_u32 s47, s47, 256")
    g.srd(20, 98, "s47", -4096 + 256, "s46")
    g("s_cmp_eq_u32 s54, 0\ns_cselect_b32 s47, 0x10000, 0")
    g.srd(24, PWS, "s47", REC)
    T = f1.vtop
    g("v_lshrrev_b32 v28, 4, v1\nv_lshlrev_b32 v28, 7, v28")
    g("s_lshl_b32 s50, s42, 13\ns_lshl_b32 s51, s37, 12\ns_add_u32 s50, s50, s51\ns_mov_b32 s51, 0x8000")
    lc1 = [[f"buffer_load_dwordx4 v[{T+4*i}:{T+4*i+3}], v28, s[24:27], s50 offen offset:{i*512} sc1"] for i in range(8)]
    lc1.append([f"buffer_load_dword v{T+32}, v28, s[24:27], s51 offen sc1"])
    f1.last([f2.dma_w(0) + lc1, f2.dma_w(1), f2.dma_w(2), f2.dma_w(3)])
    stamp(g, o, 5)
    g(f"s_waitcnt vmcnt({3 * f2.pW})")
    g("v_and_b32 v3, 1, v1\nv_lshlrev_b32 v3, 31, v3\nv_or_b32 v3, 1.0, v3")
    g(f"s_mul_i32 s46, s54, {BOT - AET}\ns_lshl_b32 s47, s55, 18\ns_add_u32 s46, s46, s47")
    g.srd(8, PWS, 0x40000, AET, "s46")
    g("s_lshl_b32 s50, s42, 16\ns_lshl_b32 s51, s37, 15\ns_add_u32 s50, s50, s51\ns_lshl_b32 s51, s38, 12\ns_add_u32 s50, s50, s51")
    g("v_lshlrev_b32 v2, 4, v1\ns_nop 4")
    k = 0
    for ip in range(4):
        for j in range(4):
            o4 = 4 + 4 * (k & 1); k += 1
            for ii in range(2):
                i = 2 * ip + ii
                r = f1.acc[j, i][1]
                for x in range(4):
                    g(f"v_fmac_f32 v{r+x}, v{T+4*i+x}, v3")
                g(f"v_cvt_pk_bf16_f32 v{o4+2*ii}, v{r}, v{r+1}\nv_cvt_pk_bf16_f32 v{o4+2*ii+1}, v{r+2}, v{r+3}")
            g(f"buffer_store_dwordx4 v[{o4}:{o4+3}], v2, s[8:11], s50 offen offset:{j*1024} sc1")
        g("s_add_u32 s50, s50, 0x2000")
    g("v_and_b32 v2, 15, v1\nv_lshlrev_b32 v2, 2, v2")
    g("s_lshl_b32 s50, s62, 11\ns_lshl_b32 s51, s55, 9\ns_add_u32 s50, s50, s51")
    g(f"s_lshl_b32 s52, s38, 8\ns_add_u32 s50, s50, s52\ns_add_u32 s50, s50, {RP - REC}")
    U = T + 36
    for j in range(4):
        r0 = f1.acc[j, 0][1]
        g(f"v_pk_add_f32 v[{U}:{U+1}], v[{r0}:{r0+1}], v[{r0+2}:{r0+3}]")
        for i in range(1, 8):
            r = f1.acc[j, i][1]
            g(f"v_pk_add_f32 v[{U}:{U+1}], v[{U}:{U+1}], v[{r}:{r+1}]\nv_pk_add_f32 v[{U}:{U+1}], v[{U}:{U+1}], v[{r+2}:{r+3}]")
        g(f"v_sub_f32 v{U+4+j}, v{U}, v{U+1}")
        g(f"v_mov_b32 v{U+2}, v{U+4+j}\ns_nop 1\nv_permlane32_swap_b32 v{U+4+j}, v{U+2}\ns_nop 1\nv_add_f32 v{U+4+j}, v{U+4+j}, v{U+2}")
        g(f"v_mov_b32 v{U+2}, v{U+4+j}\ns_nop 1\nv_permlane16_swap_b32 v{U+4+j}, v{U+2}\ns_nop 1\nv_add_f32 v{U+4+j}, v{U+4+j}, v{U+2}")
        g(f"buffer_store_dword v{U+4+j}, v2, s[24:27], s50 offen offset:{j*64} sc1")
    g("s_cmp_ge_u32 s62, 4\ns_cbranch_scc1 L_f1_noc2")
    g(f"v_fmac_f32 v{f1.accx}, v{T+32}, v3")
    g(f"s_add_u32 s50, s51, s52\ns_lshl_b32 s52, s62, 6\ns_add_u32 s50, s50, s52\ns_add_u32 s50, s50, {C2 - REC}")
    g(f"s_mov_b64 exec, 0xffff\nbuffer_store_dword v{f1.accx}, v2, s[24:27], s50 offen sc1\ns_mov_b64 exec, -1")
    g.label("L_f1_noc2")
    g("s_lshl_b32 s62, s55, 1\ns_add_u32 s62, s62, s37")
    f2.setup_r("s62")
    g("s_mov_b32 s101, 0x80000")
    g(f"s_lshl_b32 s46, s3, 13\nv_lshl_add_u32 v28, v1, 7, s46\nbuffer_load_dwordx4 v[{T}:{T+3}], v28, s[24:27], 0 offen offset:16 sc1")
    g(f"s_lshl_b32 s{f2.sAoff}, s42, 16\ns_lshl_b32 s47, s42, 13\nv_add_u32 v{f2.vX}, s47, v{f2.vX}")
    publish(g, 2)
    stamp(g, o, 6)
    stamp(g, o, 7)

    def x2():
        g("v_lshrrev_b32 v28, 3, v1\nv_lshlrev_b32 v28, 10, v28\nv_and_b32 v29, 3, v1\nv_lshl_add_u32 v28, v29, 8, v28")
        g(f"v_bfe_u32 v29, v1, 2, 1\nv_lshl_add_u32 v28, v29, 3, v28\ns_add_u32 s46, s46, {f2.xbase}\nv_add_u32 v28, s46, v28")
        g(f"v_cvt_pk_bf16_f32 v{T}, v{T}, v{T+1}\nv_cvt_pk_bf16_f32 v{T+1}, v{T+2}, v{T+3}\nds_write_b64 v28, v[{T}:{T+1}]")
        g("s_and_b32 s46, s43, 0xfc\nv_and_b32 v28, 3, v1\nv_add_u32 v28, s46, v28\nv_lshlrev_b32 v28, 7, v28")
        g(f"s_mov_b32 s63, 0x7fff\nv_mov_b32 v29, {f2.xbase}")
    f2.start(0, x2)

    def chk2():
        g(f"s_and_b32 s{f2.sAoff}, s{f2.sAoff}, 0x3ffff\ns_and_b32 s{f2.sWoff}, s{f2.sWoff}, 0x3fffff\ns_lshr_b32 s46, s{f2.sAoff}, 16")
        spin(g, 28, 2, True, lane="s46")
    f2.loop(6, "L_f2", chk=chk2)
    T = f2.vtop
    RV, AV, B, EA = T + 20, T + 32, T + 48, T + 80
    c2 = k2_ids(g, o)
    g("v_lshrrev_b32 v28, 4, v1\nv_lshlrev_b32 v28, 4, v28")
    g(f"s_lshl_b32 s50, s55, 9\ns_lshl_b32 s51, s37, 8\ns_add_u32 s51, s50, s51\ns_add_u32 s51, s51, {C2 - REC}\ns_mov_b32 s52, {0x8000 + 16}")
    lc2 = [[f"buffer_load_dwordx4 v[{T+4*i}:{T+4*i+3}], v28, s[24:27], s51 offen offset:{i*64} sc1"] for i in range(4)]
    lc2.append([f"buffer_load_dword v{T+16}, v28, s[24:27], s52 offen sc1"])
    g(f"v_and_b32 v{EA+9}, 127, v0\nv_lshlrev_b32 v{EA+9}, 2, v{EA+9}\nv_add_u32 v{EA+9}, s50, v{EA+9}\nv_lshlrev_b32 v{EA+10}, 7, v1")
    g(f"s_lshr_b32 s4, s3, 1\ns_or_b32 s4, s4, s42\ns_cmp_eq_u32 s4, 0\ns_cselect_b32 s4, 0, 0x80000000\nv_or_b32 v{EA+8}, s4, v{EA+9}")
    g(f"s_xor_b32 s4, s3, 2\ns_or_b32 s4, s4, s42\ns_or_b32 s4, s4, s55\ns_cmp_eq_u32 s4, 0\ns_cselect_b32 s4, 0, 0x80000000\nv_or_b32 v{EA+10}, s4, v{EA+10}")
    for k in range(4):
        g(f"s_mov_b32 s{44+k}, {RP - REC + 4096 * k}")
    g(f"s_mov_b32 s48, {C2 - REC}\ns_mov_b32 s49, 0x2000\ns_mov_b32 s53, 0x6000")
    lr = [[f"buffer_load_dword v{RV+k}, v{EA+8}, s[24:27], s{44+(k>>1)} offen offset:{(k&1)*2048} sc1"] for k in range(8)]
    lr.append([f"buffer_load_dword v{RV+8}, v{EA+8}, s[24:27], s48 offen sc1"])
    g("s_mov_b32 s61, 0x4000")
    lr += [[f"buffer_load_dwordx4 v[{AV+4*k}:{AV+4*k+3}], v{EA+10}, s[24:27], {('0', 's49', 's61', 's53')[k]} offen offset:16 sc1"] for k in range(4)]
    g(f"v_and_b32 v{EA+6}, 1, v1\nv_lshlrev_b32 v{EA+6}, 31, v{EA+6}\nv_or_b32 v{EA+6}, 1.0, v{EA+6}")
    g(f"s_mul_i32 s4, s54, {QQ - PP}")
    g.srd(8, PWS, 1025 * PQ_PITCH, PP, "s4")
    g(f"s_lshl_b32 s4, s3, 13\ns_add_u32 s4, s4, {LDS_AUX}")
    g("v_and_b32 v18, 15, v1\nv_and_b32 v19, 7, v1\nv_lshrrev_b32 v20, 5, v1\nv_bfe_u32 v21, v1, 4, 1")
    g(f"v_mul_u32_u24 v{EA+7}, {PQ_PITCH}, v18\nv_lshlrev_b32 v18, 7, v18\nv_lshl_add_u32 v18, v21, 3, v18\nv_add_u32 v18, s4, v18")
    for i in range(4):
        g(f"v_add_u32 v21, {2*i}, v20\nv_xor_b32 v21, v21, v19\nv_lshl_add_u32 v{EA+i}, v21, 4, v18")
    g(f"v_lshrrev_b32 v20, 3, v1\nv_xor_b32 v21, v20, v19\nv_lshlrev_b32 v18, 7, v20\nv_lshl_add_u32 v18, v21, 4, v18\nv_add_u32 v{EA+4}, s4, v18")
    g(f"v_mul_u32_u24 v{EA+5}, {PQ_PITCH}, v20\nv_lshl_add_u32 v{EA+5}, v19, 4, v{EA+5}")
    f2.last([lc2 + lr, [], [], []])
    stamp(g, o, 8)
    g(f"s_lshl_b32 s50, s42, 8\ns_lshl_b32 s51, s38, 6\ns_add_u32 s50, s50, s51\ns_mul_i32 s52, s50, {PQ_PITCH}")
    g("s_lshl_b32 s50, s55, 8\ns_lshl_b32 s51, s37, 7\ns_add_u32 s50, s50, s51\ns_add_u32 s50, s50, s52")
    g("s_waitcnt vmcnt(0)")
    for h in range(2):
        for jj in range(4):
            for i in range(4):
                r = f2.acc[4 * h + jj, i][1]
                for x in range(4):
                    g(f"v_fmac_f32 v{r+x}, v{T+4*i+x}, v{EA+6}")
                g(f"v_cvt_pk_bf16_f32 v{r}, v{r}, v{r+1}\nv_cvt_pk_bf16_f32 v{r+1}, v{r+2}, v{r+3}")
                g(f"ds_write_b64 v{EA+i}, v[{r}:{r+1}] offset:{jj*2048}")
        g("s_waitcnt lgkmcnt(0)")
        for n in range(8):
            g(f"ds_read_b128 v[{B+4*n}:{B+4*n+3}], v{EA+4} offset:{n*1024}")
        for n in range(8):
            g(f"s_add_u32 s51, s50, {(h*128 + n*8) * PQ_PITCH}\ns_waitcnt lgkmcnt({7-n})")
            g(f"buffer_store_dwordx4 v[{B+4*n}:{B+4*n+3}], v{EA+5}, s[8:11], s51 offen sc1")
    g(f"v_fmac_f32 v{f2.accx}, v{T+16}, v{EA+6}\ns_cmp_eq_u32 s54, 0\ns_cselect_b32 s46, -1, 0")
    g(f"v_cvt_pk_bf16_f32 v16, v{f2.accx}, v{f2.accx}\nv_and_b32 v16, s46, v16")
    g(f"s_lshr_b32 s46, s62, 2\ns_lshl_b32 s46, s46, 7\ns_and_b32 s47, s62, 3\ns_lshl_b32 s47, s47, 4\ns_add_u32 s46, s46, s47")
    g(f"s_mul_i32 s46, s46, {PQ_PITCH}\ns_add_u32 s46, s46, s52")
    g("v_and_b32 v16, 0xffff, v16\nv_lshrrev_b32 v17, 3, v1\nv_lshlrev_b32 v17, 2, v17\nv_add_u32 v18, 32, v17\nv_and_b32 v19, 7, v1\nv_cmp_eq_u32 vcc, 0, v19")
    g("ds_bpermute_b32 v4, v17, v16\nds_bpermute_b32 v8, v18, v16")
    g("v_mov_b32 v5, 0\nv_mov_b32 v6, 0\nv_mov_b32 v7, 0\nv_mov_b32 v9, 0\nv_mov_b32 v10, 0\nv_mov_b32 v11, 0\ns_waitcnt lgkmcnt(0)")
    g(f"v_cndmask_b32 v4, 0, v4, vcc\nv_cndmask_b32 v8, 0, v8, vcc\ns_add_u32 s47, s46, {8 * PQ_PITCH}")
    g(f"buffer_store_dwordx4 v[4:7], v{EA+5}, s[8:11], s46 offen offset:1024 sc1\nbuffer_store_dwordx4 v[8:11], v{EA+5}, s[8:11], s47 offen offset:1024 sc1")
    g("s_cmp_lg_u32 s42, 0\ns_cbranch_scc1 L_f2_done\ns_cmp_ge_u32 s3, 2\ns_cbranch_scc1 L_f2_corner")
    for k in range(8):
        g(f"v_add_f32 v{RV+8}, v{RV+8}, v{RV+k}")
    g(f"v_cvt_pk_bf16_f32 v12, v{RV+8}, v{RV+8}\nv_lshrrev_b32 v2, 1, v{EA+9}\ns_mov_b32 s51, {1024 * PQ_PITCH}")
    g("buffer_store_short v12, v2, s[8:11], s51 offen sc1\ns_branch L_f2_done")
    g.label("L_f2_corner")
    g("s_cmp_lg_u32 s3, 2\ns_cbranch_scc1 L_f2_done\ns_cmp_lg_u32 s55, 0\ns_cbranch_scc1 L_f2_done")
    for k in range(2, 16, 2):
        g(f"v_pk_add_f32 v[{AV}:{AV+1}], v[{AV}:{AV+1}], v[{AV+k}:{AV+k+1}]")
    g(f"v_sub_f32 v4, v{AV}, v{AV+1}")
    wave_sum(g, [4])
    g(f"v_readlane_b32 s50, v4, 63\ns_mov_b32 s51, {1024 * PQ_PITCH + 1024}\ns_nop 0\nv_add_f32 v4, s50, v{T+16}\nv_cvt_pk_bf16_f32 v12, v4, v4\nv_lshlrev_b32 v2, 2, v1")
    g("s_mov_b64 exec, 0xffffffff\nbuffer_store_dword v12, v2, s[8:11], s51 offen sc1\ns_mov_b64 exec, -1")
    g.label("L_f2_done")
    stamp(g, o, 16)
    k2_setup(g, o, c2)
    c2.flat(k2_tail_setup(g, o))
    for (kind, r) in c2.acc.values():
        for x in range(4):
            g(f"v_mov_b32 v{r+x}, 0")
    publish(g, 3)
    stamp(g, o, 9)
    tile_pick(g, 4)
    g("s_barrier")
    tile_get(g)
    stamp(g, o, 10)
    stamp(g, o, 17)
    c2.flat(c2.restart())
    stamp(g, o, 18)
    g("s_mov_b32 s46, 6")

    g.label("L_k2")
    g("v_mov_b32 v30, 0")
    tile_pick(g)
    g(f"s_waitcnt vmcnt({3 * c2.pW + 2 * c2.pA})\ns_barrier\nds_read_b32 v17, v16")
    c2.flat(c2.reads(0, 0))

    def pick_next():
        lab = g.newlabel("pn")
        g(f"s_cmp_eq_u32 s97, 0\ns_cbranch_scc1 {lab}")
        tile_pick(g)
        g.label(lab)

    def head0():
        lab = g.newlabel("h0")
        g(f"v_readfirstlane_b32 s99, v17\ns_cmp_lg_u32 s{c2.sCnt}, 1\ns_cbranch_scc1 {lab}\nbuffer_load_dword v28, v22, s[28:31], 0 offen sc1")
        g.label(lab)
    c2.loop("s46", "L_k2_loop", chk={0: head0, 3: pick_next})
    stamp(g, o, 13)
    blocks = []
    for i in (1, 2, 3, 0):
        for k in range(4):
            work = []
            if i:
                d = 192 + 4 * (len(blocks) & 3)
                for jj in range(2):
                    r = c2.acc[2 * k + jj, i][1]
                    work += [f"v_cvt_pk_bf16_f32 v{d+2*jj}, v{r}, v{r+1}", f"v_cvt_pk_bf16_f32 v{d+2*jj+1}, v{r+2}, v{r+3}"]
                work.append(f"buffer_store_dwordx4 v[{d}:{d+3}], v29, s[24:27], s{49+i} offen offset:{k*1024} sc1")
            blocks.append(([(2 * k, i), (2 * k + 1, i)], work))
    rec = Rec(g)
    tile_dma(rec, 12, PS, 4096, " sc1")
    tile_dma(rec, 16, PS, 8192, " sc1")
    pq = [[x] for grp in rec.items for x in grp if x != "s_nop 0"]
    c2.last([pq[:4], pq[4:8], pq[8:], []], pres=[lambda: spin(g, 22, 3, True, vf=28), None, None, None], final=(blocks, 4))
    stamp(g, o, 11)
    g("s_waitcnt vmcnt(12)")
    sent = 0
    Y, XF, PT, RD = 64, 96, 208, 128
    for j in range(8):
        g(f"ds_read_b64 v[{RD+4*j}:{RD+4*j+1}], v{AP+j} offset:4096\nds_read_b64 v[{RD+4*j+2}:{RD+4*j+3}], v{AP+j} offset:8192")
    g.srd(20, POUT, S * D * 2)
    g("s_mov_b32 s44, 0xbfb8aa3b\ns_mov_b32 s45, 0xbfb8aa3b\ns_mov_b32 s54, 0xffff0000\ns_mov_b32 s46, 1.0\ns_mov_b32 s47, 1.0")
    g("s_mov_b32 s48, 0x3f80\ns_mov_b32 s49, 0x3f800000\ns_add_u32 s4, s100, 7\nv_mov_b32 v28, s4")
    g("s_cmp_ge_u32 s57, 4\ns_cbranch_scc1 L_k2_rev")
    for rev in (0, 1):
        if rev:
            g("s_branch L_k2_y")
            g.label("L_k2_rev")
        for j in range(8):
            g(f"s_waitcnt lgkmcnt({14 - 2*j})")
            for src, dst in ((RD + 4 * j, Y + 4 * j), (RD + 4 * j + 2, 4)):
                for x in range(4):
                    d = dst + (3 - x if rev else x)
                    w = src + (x >> 1)
                    g(f"v_and_b32 v{d}, s54, v{w}" if x & 1 else f"v_lshlrev_b32 v{d}, 16, v{w}")
            y = Y + 4 * j
            g(f"v_pk_fma_f32 v[{y}:{y+1}], v[4:5], s[62:63], v[{y}:{y+1}]\nv_pk_fma_f32 v[{y+2}:{y+3}], v[6:7], s[62:63], v[{y+2}:{y+3}]")
    g.label("L_k2_y")
    for j in range(8):
        g(f"ds_read_b64 v[{RD+2*j}:{RD+2*j+1}], v{AX+j}")
    g("s_waitcnt vmcnt(0)\ns_mov_b64 exec, 1\nbuffer_store_dword v28, v27, s[28:31], 0 offen sc1\ns_mov_b64 exec, -1")
    g("buffer_load_dword v30, v23, s[28:31], 0 offen sc1")
    stamp(g, o, 14)
    for j in range(8):
        g(f"s_waitcnt lgkmcnt({7 - j})")
        g(f"v_lshlrev_b32 v{XF+4*j}, 16, v{RD+2*j}\nv_and_b32 v{XF+4*j+1}, s54, v{RD+2*j}\nv_lshlrev_b32 v{XF+4*j+2}, 16, v{RD+2*j+1}\nv_and_b32 v{XF+4*j+3}, s54, v{RD+2*j+1}")
    g("s_waitcnt vmcnt(0)")
    spin(g, 23, 7, True)
    stamp(g, o, 15)
    for k in range(4):
        for i in range(3):
            g(f"s_add_u32 s4, s53, {i*16384}\nbuffer_load_dwordx4 v[{PT+16*i+4*k}:{PT+16*i+4*k+3}], v29, s[24:27], s4 offen offset:{k*1024} sc1")
    for j in range(8):
        r = c2.acc[j, 0][1]
        if j % 2 == 0 and not sent:
            g(f"s_waitcnt vmcnt({9 - 3 * (j >> 1)})")
        for i in range(3):
            w = PT + 16 * i + 2 * j
            for x in range(4):
                g(f"v_dot2c_f32_bf16 v{r+x}, s{48 + (x & 1)}, v{w + (x >> 1)}")
        g(f"s_nop 1\nv_pk_mul_f32 v[4:5], v[{r}:{r+1}], s[44:45]\nv_pk_mul_f32 v[6:7], v[{r+2}:{r+3}], s[44:45]")
        for x in range(4):
            g(f"v_exp_f32 v{4+x}, v{4+x}")
        g("s_nop 0\nv_pk_add_f32 v[4:5], v[4:5], s[46:47]\nv_pk_add_f32 v[6:7], v[6:7], s[46:47]")
        for x in range(4):
            g(f"v_rcp_f32 v{4+x}, v{4+x}")
        y, xf = Y + 4 * j, XF + 4 * j
        g(f"v_pk_mul_f32 v[{y}:{y+1}], v[{y}:{y+1}], v[{r}:{r+1}]\nv_pk_mul_f32 v[{y+2}:{y+3}], v[{y+2}:{y+3}], v[{r+2}:{r+3}]")
        g(f"v_pk_fma_f32 v[{xf}:{xf+1}], v[4:5], v[{y}:{y+1}], v[{xf}:{xf+1}]\nv_pk_fma_f32 v[{xf+2}:{xf+3}], v[6:7], v[{y+2}:{y+3}], v[{xf+2}:{xf+3}]")
        g(f"v_cvt_pk_bf16_f32 v{xf}, v{xf}, v{xf+1}\nv_cvt_pk_bf16_f32 v{xf+1}, v{xf+2}, v{xf+3}")
        g(f"ds_write_b64 v{AX+j}, v[{xf}:{xf+1}]")
    for n in range(4):
        g(f"ds_read_b128 v[{RD+4*n}:{RD+4*n+3}], v{RB+n}")
    for n in range(4):
        g(f"s_waitcnt lgkmcnt({3-n})\nbuffer_store_dwordx4 v[{RD+4*n}:{RD+4*n+3}], v{GO+n}, s[20:23], s61 offen{o.get('opol', '')}")
    stamp_flush(g, o, 12)
    g.label("L_done")
    g("s_endpgm")
    g.kd(NAME, 256 + 192, 102, 256)


HEADER = open("recurrent_scan__spectral_fnet__glu_gated_bilinear__prompt.s.ref").read().split("\n")


def build(o=None):
    o = dict(o or {})
    global ASC
    ASC = ' sc1' if o.get('asc1', 0) else ''
    g = G()
    main_kernel(g, o)
    if o.get("aslist"):
        launch = f"; @launch kernel={NAME} grid=(256,1,1) block=(256,1,1) lds={LDS_TOTAL}"
    else:
        launch = f"; @launch grid=(256,1,1) block=(256,1,1) lds={LDS_TOTAL}"
    txt = "\n".join(HEADER[:13] + [launch]) + '\n.amdgcn_target "amdgcn-amd-amdhsa--gfx950"\n.text\n'
    txt += "\n".join(g.L) + '\n.section .rodata,"a"\n' + "\n".join(g.kds) + "\n"
    return txt


if __name__ == "__main__":
    out = sys.argv[1] if len(sys.argv) > 1 else "recurrent_scan__spectral_fnet__glu_gated_bilinear__prompt.s"
    o = eval(sys.argv[2]) if len(sys.argv) > 2 else {}
    open(out, "w").write(build(o))
```

```python
import sys

S, D, F = 2048, 1024, 3584
XN   = 0x0000000
H    = 0x0400000
XEE  = 0x1200000
XEEX = 0x1300000
XOO  = 0x1400000
AET  = 0x1500000
BOT  = 0x1600000
PP   = 0x1700000
QQ   = 0x1900000
REC  = 0x1D00000
C2   = 0x1D09000
RP   = 0x1D0A000
FLG  = 0x1E00000
PART = 0x2000000
STAMP = 0x3000000
PQ_PITCH = 1152
NAME = "recurrent_scan__spectral_fnet__glu_gated_bilinear__prompt_kernel"
PX, PSR, PSI, PHR, PHI, PWG, PWU, PWD, POUT, PDBG, PWS = 64, 66, 68, 70, 72, 76, 78, 80, 82, 84, 86
LDS_AUX = 0x20000
LDS_TOTAL = 0x28000
HSTG = 0x14000
VST = 31
ASC = ' sc1'


class G:
    def __init__(s):
        s.L = []
        s.kds = []
        s.uid = 0

    def __call__(s, txt):
        for ln in txt.split("\n"):
            ln = ln.strip()
            if ln:
                s.L.append("  " + ln)

    def label(s, n):
        s.L.append(n + ":")

    def newlabel(s, p="L"):
        s.uid += 1
        return f"{p}_{s.uid}"

    def begin(s, name):
        s.L.append(f".globl {name}\n.p2align 8\n.type {name},@function\n{name}:")

    def kd(s, name, vgpr, sgpr, accum):
        s.kds.append(f""".p2align 6
.amdhsa_kernel {name}
  .amdhsa_next_free_vgpr {vgpr}
  .amdhsa_next_free_sgpr {sgpr}
  .amdhsa_accum_offset {accum}
  .amdhsa_group_segment_fixed_size 0
  .amdhsa_kernarg_size 96
  .amdhsa_user_sgpr_count 2
  .amdhsa_user_sgpr_kernarg_segment_ptr 1
  .amdhsa_system_sgpr_workgroup_id_x 1
.end_amdhsa_kernel""")

    def srd(s, d, ptr, nbytes, const=0, soff=None):
        lo, hi = ptr, ptr + 1
        if soff is not None:
            s(f"s_add_u32 s{d}, s{lo}, {soff}\ns_addc_u32 s{d+1}, s{hi}, 0")
            lo, hi = d, d + 1
        if const > 0:
            s(f"s_add_u32 s{d}, s{lo}, {const:#x}\ns_addc_u32 s{d+1}, s{hi}, 0")
        elif const < 0:
            s(f"s_sub_u32 s{d}, s{lo}, {-const:#x}\ns_subb_u32 s{d+1}, s{hi}, 0")
        elif soff is None:
            s(f"s_mov_b32 s{d}, s{lo}\ns_mov_b32 s{d+1}, s{hi}")
        nb = nbytes if isinstance(nbytes, str) else f"{nbytes:#x}"
        s(f"s_mov_b32 s{d+2}, {nb}\ns_mov_b32 s{d+3}, 0x20000")


def stamp(g, o, idx):
    if o.get("stamp"):
        g(f"s_memtime s[88:89]\ns_waitcnt lgkmcnt(0)\nv_writelane_b32 v{VST}, s88, {idx}")
        if idx in (4, 5, 18, 13):
            g(f"s_memrealtime s[88:89]\ns_waitcnt lgkmcnt(0)\nv_writelane_b32 v{VST}, s88, {20 + (4, 5, 18, 13).index(idx)}")
        if idx == 0:
            g(f"s_memrealtime s[88:89]\ns_waitcnt lgkmcnt(0)\nv_writelane_b32 v{VST}, s88, 30")


def stamp_flush(g, o, idx):
    if not o.get("stamp"):
        return
    lab = g.newlabel("st")
    g("s_waitcnt vmcnt(0)")
    stamp(g, o, idx)
    g(f"s_memrealtime s[88:89]\ns_waitcnt lgkmcnt(0)\nv_writelane_b32 v{VST}, s88, 31")
    g(f"s_cmp_lg_u32 s3, 0\ns_cbranch_scc1 {lab}")
    g.srd(92, PWS, 0x100000, STAMP)
    g("v_lshlrev_b32 v0, 2, v1\ns_lshl_b32 s90, s2, 7\ns_mov_b64 exec, 0xffffffff")
    g(f"buffer_store_dword v{VST}, v0, s[92:95], s90 offen")
    g.label(lab)


def wave_sum(g, regs):
    steps = ["quad_perm:[1,0,3,2] row_mask:0xf", "quad_perm:[2,3,0,1] row_mask:0xf", "row_half_mirror row_mask:0xf",
             "row_mirror row_mask:0xf", "row_bcast:15 row_mask:0xa", "row_bcast:31 row_mask:0xc"]
    for st in steps:
        g("s_nop 1" if len(regs) == 1 else "s_nop 0")
        for r in regs:
            g(f"v_add_f32_dpp v{r}, v{r}, v{r} {st} bank_mask:0xf")
    g("s_nop 1")


def tag_issue(g):
    lab = g.newlabel("tg")
    g.srd(28, PDBG, 256)
    g(f"v_mov_b32 v18, 0\ns_or_b32 s4, s2, s3\ns_cmp_lg_u32 s4, 0\ns_cbranch_scc1 {lab}")
    g("s_memrealtime s[4:5]\ns_waitcnt lgkmcnt(0)\ns_lshl_b32 s4, s4, 3\ns_or_b32 s4, s4, 0x80000000\nv_mov_b32 v19, s4")
    g("buffer_store_dword v19, v18, s[28:31], 0 offen sc1")
    g.label(lab)


def tag_load(g):
    g("buffer_load_dword v30, v18, s[28:31], 0 offen sc1")


def tag_get(g):
    l0, l1 = g.newlabel("tg"), g.newlabel("tgd")
    g("s_mov_b32 s5, 0x80000\nv_mov_b32 v18, 0")
    g.label(l0)
    g(f"v_readfirstlane_b32 s100, v30\ns_sub_u32 s5, s5, 1\ns_cbranch_scc1 {l1}\ns_cmp_lg_u32 s100, 0\ns_cbranch_scc1 {l1}")
    g(f"s_sleep 1\nbuffer_load_dword v30, v18, s[28:31], 0 offen sc1\ns_waitcnt vmcnt(0)\ns_branch {l0}")
    g.label(l1)
    g.srd(28, PWS, 0x8000, FLG)


def publish(g, val, first=False, younger=0, wave=0):
    lab = g.newlabel("pub")
    g(f"s_waitcnt vmcnt({younger})")
    if first:
        tag_get(g)
    g("s_barrier")
    g(f"s_cmp_lg_u32 s3, {wave}\ns_cbranch_scc1 {lab}")
    g(f"s_lshl_b32 s4, s43, 7\ns_add_u32 s5, s100, {val}\nv_lshl_add_u32 v18, v1, 2, s4\nv_mov_b32 v19, s5\ns_mov_b64 exec, 0xffffffff")
    g("buffer_store_dword v19, v18, s[28:31], 0 offen sc1\ns_mov_b64 exec, -1")
    g.label(lab)


def flag_bad(g, vals):
    for k, (vf, thr) in enumerate(vals):
        g(f"v_subrev_u32 v{vf}, s100, v{vf}\nv_subrev_u32 v{vf}, {thr}, v{vf}")
        if k:
            g(f"v_max_u32 v{vals[0][0]}, v{vals[0][0]}, v{vf}")
    g(f"v_cmp_lt_u32 vcc, 7, v{vals[0][0]}")


def poll(g, addrs, sleep=1, wave=0):
    l0, l1 = g.newlabel("poll"), g.newlabel("polld")
    g(f"s_cmp_lg_u32 s3, {wave}\ns_cbranch_scc1 {l1}\ns_mov_b32 s5, 0x80000")
    g.label(l0)
    for k, (va, thr) in enumerate(addrs):
        g(f"buffer_load_dwordx2 v[{40+2*k}:{41+2*k}], v{va}, s[28:31], 0 offen sc1")
    g("s_waitcnt vmcnt(0)")
    flag_bad(g, [(40 + k, addrs[k >> 1][1]) for k in range(2 * len(addrs))])
    g(f"s_sub_u32 s5, s5, 1\ns_cbranch_scc1 {l1}")
    g(f"s_cbranch_vccz {l1}\ns_sleep {sleep}\ns_branch {l0}")
    g.label(l1)
    g("s_barrier")


XP, EP = 2064, 1040
LN_EB = LDS_AUX + 8 * XP
LN_OB = LN_EB + 5 * EP
LN_RB = LN_OB + 4 * EP


def ln_loads(g):
    g("v_lshlrev_b32 v32, 4, v1\nv_sub_u32 v33, 0x7f0, v32")
    g("s_lshl_b32 s44, s43, 2\ns_add_u32 s44, s44, s3")
    g("s_sub_u32 s45, 2048, s44\ns_cmp_eq_u32 s44, 0\ns_cselect_b32 s45, 1024, s45")
    g("s_lshl_b32 s46, s44, 11\ns_lshl_b32 s47, s45, 11")
    g.srd(20, PX, S * D * 2)
    g("buffer_load_dwordx4 v[40:43], v32, s[20:23], s46 offen\nbuffer_load_dwordx4 v[44:47], v33, s[20:23], s46 offen")
    g("buffer_load_dwordx4 v[48:51], v32, s[20:23], s47 offen\nbuffer_load_dwordx4 v[52:55], v33, s[20:23], s47 offen")


def ln_body(g0, o, younger, pfx, fill, warm):
    fill = list(fill)

    class Spr:
        n = 0
        on = False

        def __call__(s, txt):
            for ln in txt.split("\n"):
                g0(ln)
                if s.on and ln.strip().startswith("v_") and "dpp" not in ln and "readlane" not in ln and "v_cmp" not in ln:
                    s.n += 1
                    if s.n % 10 == 0 and fill:
                        for ins in fill.pop(0):
                            g0("s_nop 0" if ins == "@" else ins)

        def __getattr__(s, k):
            return getattr(g0, k)
    g = Spr()
    XA, XB = 56, 72
    g.srd(24, PWS, 0x2000000)
    g("s_mov_b32 s48, 0xffff0000")
    g(f"s_waitcnt vmcnt({younger + 2})")
    stamp(g, o, 1)
    for i in range(8):
        g(f"v_lshlrev_b32 v{XA+2*i}, 16, v{40+i}\nv_and_b32 v{XA+2*i+1}, s48, v{40+i}")
    g(f"s_waitcnt vmcnt({younger})")
    if warm:
        g(f"s_cmp_lg_u32 s3, 3\ns_cbranch_scc1 {pfx}_nowarm")
        warm()
        g.label(pfx + "_nowarm")
    g.on = True
    for i in range(8):
        g(f"v_lshlrev_b32 v{XB+2*i}, 16, v{48+i}\nv_and_b32 v{XB+2*i+1}, s48, v{48+i}")
    MA, MB, VA, VB = 88, 92, 96, 100
    for X, T in ((XA, MA), (XB, MB)):
        g(f"v_pk_add_f32 v[{T}:{T+1}], v[{X}:{X+1}], v[{X+2}:{X+3}]")
        g(f"v_pk_add_f32 v[{T+2}:{T+3}], v[{X+4}:{X+5}], v[{X+6}:{X+7}]")
        for i in (8, 12):
            g(f"v_pk_add_f32 v[{T}:{T+1}], v[{T}:{T+1}], v[{X+i}:{X+i+1}]")
            g(f"v_pk_add_f32 v[{T+2}:{T+3}], v[{T+2}:{T+3}], v[{X+i+2}:{X+i+3}]")
        g(f"v_pk_add_f32 v[{T}:{T+1}], v[{T}:{T+1}], v[{T+2}:{T+3}]")
        g(f"v_add_f32 v{T}, v{T}, v{T+1}")
    wave_sum(g, [MA, MB])
    g(f"v_readlane_b32 s50, v{MA}, 63\nv_readlane_b32 s51, v{MB}, 63\nv_mov_b32 v34, 0x3a800000\ns_nop 0")
    g(f"v_mul_f32 v{MA}, s50, v34\nv_mul_f32 v{MB}, s51, v34\nv_mov_b32 v{MA+1}, v{MA}\nv_mov_b32 v{MB+1}, v{MB}")
    for T in (VA, VB):
        g(f"v_mov_b32 v{T}, 0\nv_mov_b32 v{T+1}, 0")
    for i in range(0, 16, 2):
        for X, M, T in ((XA, MA, VA), (XB, MB, VB)):
            g(f"v_pk_add_f32 v[{T+2}:{T+3}], v[{X+i}:{X+i+1}], v[{M}:{M+1}] neg_lo:[0,1] neg_hi:[0,1]")
        for X, M, T in ((XA, MA, VA), (XB, MB, VB)):
            g(f"v_pk_fma_f32 v[{T}:{T+1}], v[{T+2}:{T+3}], v[{T+2}:{T+3}], v[{T}:{T+1}]")
    g(f"v_add_f32 v{VA}, v{VA}, v{VA+1}\nv_add_f32 v{VB}, v{VB}, v{VB+1}")
    wave_sum(g, [VA, VB])
    g(f"v_readlane_b32 s50, v{VA}, 63\nv_readlane_b32 s51, v{VB}, 63")
    g(f"v_cvt_pk_bf16_f32 v{MA+2}, v{MA}, v{MB}\ns_nop 0")
    g(f"v_mul_f32 v{VA}, s50, v34\nv_mul_f32 v{VB}, s51, v34")
    g(f"v_lshlrev_b32 v{MA}, 16, v{MA+2}\nv_and_b32 v{MB}, s48, v{MA+2}")
    g(f"v_cvt_pk_bf16_f32 v{VA+1}, v{VA}, v{VB}")
    g(f"v_mov_b32 v{MA+1}, v{MA}\nv_mov_b32 v{MB+1}, v{MB}")
    g(f"v_lshlrev_b32 v{VA}, 16, v{VA+1}\nv_and_b32 v{VB}, s48, v{VA+1}")
    g(f"v_add_f32 v{VA}, 0x3727c5ac, v{VA}\nv_add_f32 v{VB}, 0x3727c5ac, v{VB}")
    g(f"v_cvt_pk_bf16_f32 v{VA+1}, v{VA}, v{VB}")
    g(f"v_lshlrev_b32 v{VA}, 16, v{VA+1}\nv_and_b32 v{VB}, s48, v{VA+1}")
    g(f"v_sqrt_f32 v{VA}, v{VA}\nv_sqrt_f32 v{VB}, v{VB}")
    for X, M, PKD in ((XA, MA, 40), (XB, MB, 48)):
        for i in range(8):
            a = X + 2 * i
            g(f"v_pk_add_f32 v[{a}:{a+1}], v[{a}:{a+1}], v[{M}:{M+1}] neg_lo:[0,1] neg_hi:[0,1]")
    g(f"v_cvt_pk_bf16_f32 v{VA+1}, v{VA}, v{VB}")
    g(f"v_lshlrev_b32 v{VA}, 16, v{VA+1}\nv_and_b32 v{VB}, s48, v{VA+1}")
    g(f"v_rcp_f32 v{VA}, v{VA}\nv_rcp_f32 v{VB}, v{VB}")
    for X, PKD in ((XA, 40), (XB, 48)):
        for i in range(8):
            g(f"v_cvt_pk_bf16_f32 v{PKD+i}, v{X+2*i}, v{X+2*i+1}")
    g(f"v_mov_b32 v{VA+1}, v{VA}\nv_mov_b32 v{VB+1}, v{VB}")
    for X, R, PKD in ((XA, VA, 40), (XB, VB, 48)):
        for i in range(8):
            a = X + 2 * i
            g(f"v_lshlrev_b32 v{a}, 16, v{PKD+i}\nv_and_b32 v{a+1}, s48, v{PKD+i}")
        for i in range(8):
            a = X + 2 * i
            g(f"v_pk_mul_f32 v[{a}:{a+1}], v[{a}:{a+1}], v[{R}:{R+1}]")
        for i in range(8):
            g(f"v_cvt_pk_bf16_f32 v{PKD+i}, v{X+2*i}, v{X+2*i+1}")
    g.on = False
    assert not fill
    g(f"s_mul_i32 s49, s3, {XP}\ns_add_u32 s49, s49, {LDS_AUX}")
    g("v_add_u32 v35, s49, v32\nv_add_u32 v36, s49, v33")
    g("ds_write_b128 v35, v[40:43]\nds_write_b128 v36, v[44:47]")
    g(f"ds_write_b128 v35, v[48:51] offset:{4*XP}\nds_write_b128 v36, v[52:55] offset:{4*XP}")
    for X, PKD in ((XA, 40), (XB, 48)):
        for i in range(8):
            a = X + 2 * i
            g(f"v_lshlrev_b32 v{a}, 16, v{PKD+i}\nv_and_b32 v{a+1}, s48, v{PKD+i}")
    g(f"s_mul_i32 s49, s3, {EP}\ns_add_u32 s49, s49, {LN_EB}\nv_add_u32 v37, s49, v32")
    E, O, PK, TM = 104, 120, 136, 140

    def dfold(src, sign):
        op = "v_add_f32" if sign > 0 else "v_sub_f32"
        g(f"s_nop 1\nv_mov_b32_dpp v{TM+8}, v{src+8} wave_shr:1 row_mask:0xf bank_mask:0xf bound_ctrl:0")
        for j in range(1, 8):
            g(f"{op} v{TM+j}, v{src+j}, v{src+16-j}")
        g(f"{op} v{TM}, v{src}, v{TM+8}")
        for j in range(4):
            g(f"v_cvt_pk_bf16_f32 v{PK+j}, v{TM+2*j}, v{TM+2*j+1}")

    def even_row(src, lds_off, own):
        dfold(src, +1)
        g(f"ds_write_b128 v37, v[{PK}:{PK+3}] offset:{lds_off}")
        g(f"v_pk_add_f32 v[{TM}:{TM+1}], v[{src}:{src+1}], v[{src+2}:{src+3}]")
        for i in range(4, 16, 2):
            g(f"v_pk_add_f32 v[{TM}:{TM+1}], v[{TM}:{TM+1}], v[{src+i}:{src+i+1}]")
        g(f"v_sub_f32 v{TM}, v{TM}, v{TM+1}")
        wave_sum(g, [TM])
        g("s_mov_b32 exec_lo, 0\ns_mov_b32 exec_hi, 0x80000000")
        if own:
            g(f"s_lshl_b32 s50, s3, 2\ns_add_u32 s50, s50, {LN_RB}\nv_mov_b32 v{TM+2}, s50")
            g(f"ds_write_b32 v{TM+2}, v{src+8}\nds_write_b32 v{TM+2}, v{TM} offset:16")
        else:
            g(f"v_readlane_b32 s51, v{src+8}, 63\nv_readlane_b32 s52, v{TM}, 63\ns_mov_b64 exec, 0xffffffff\ns_mov_b32 s50, {REC + 256*128:#x}")
            g(f"v_mov_b32 v{TM+3}, s52\nv_lshlrev_b32 v{TM+2}, 2, v1\nv_writelane_b32 v{TM+3}, s51, 0")
            g(f"buffer_store_dword v{TM+3}, v{TM+2}, s[24:27], s50 offen sc1")
        g("s_mov_b64 exec, -1")

    lz, lj, ld = pfx + "_pair0", pfx + "_join", pfx + "_lnd"
    g(f"s_cmp_eq_u32 s44, 0\ns_cbranch_scc1 {lz}")
    for i in range(0, 16, 2):
        g(f"v_pk_add_f32 v[{O+i}:{O+i+1}], v[{XA+i}:{XA+i+1}], v[{XB+i}:{XB+i+1}] neg_lo:[0,1] neg_hi:[0,1]")
    for i in range(0, 16, 2):
        g(f"v_pk_add_f32 v[{E+i}:{E+i+1}], v[{XA+i}:{XA+i+1}], v[{XB+i}:{XB+i+1}]")
    dfold(O, -1)
    g(f"ds_write_b128 v37, v[{PK}:{PK+3}] offset:{LN_OB - LN_EB}")
    even_row(E, 0, True)
    g(f"s_branch {lj}")
    g.label(lz)
    even_row(XA, 0, True)
    even_row(XB, 4 * EP, False)
    for j in range(4):
        g(f"v_mov_b32 v{PK+j}, 0")
    g(f"ds_write_b128 v37, v[{PK}:{PK+3}] offset:{LN_OB - LN_EB}")
    g.label(lj)
    g("v_and_b32 v40, 3, v1\nv_lshrrev_b32 v49, 4, v1\nv_bfe_u32 v50, v1, 2, 2")
    g(f"s_mov_b32 s49, {LDS_AUX}\ns_cmp_eq_u32 s3, 1\ns_cselect_b32 s49, {LDS_AUX + 4*XP}, s49\ns_cselect_b32 s48, 0x200000, 0")
    g(f"s_lshr_b32 s50, s43, 6\ns_lshl_b32 s51, s50, 19\ns_add_u32 s48, s48, s51\ns_add_u32 s53, s48, 0x40000\ns_lshl_b32 s50, s50, 18")
    g(f"s_add_u32 s46, s50, {XEE:#x}\ns_add_u32 s47, s50, {XOO:#x}\ns_mov_b32 s51, {XP}\ns_mov_b32 s52, 1024\ns_cmp_eq_u32 s3, 2")
    g(f"s_cselect_b32 s49, {LN_EB}, s49\ns_cselect_b32 s51, {EP}, s51\ns_cselect_b32 s52, {LN_OB - LN_EB}, s52\ns_cselect_b32 s48, s46, s48\ns_cselect_b32 s53, s47, s53")
    g("s_and_b32 s50, s43, 63\ns_lshl_b32 s50, s50, 8\nv_and_b32 v46, 15, v1\nv_lshlrev_b32 v46, 4, v46\nv_lshl_add_u32 v46, v49, 14, v46\nv_add_u32 v46, s50, v46")
    g("v_mul_lo_u32 v53, v40, s51\nv_lshl_add_u32 v53, v49, 6, v53\nv_lshl_add_u32 v53, v50, 3, v53\nv_add_u32 v53, s49, v53\nv_add_u32 v54, s52, v53")
    g("v_mov_b32 v18, 0\ns_waitcnt lgkmcnt(0)\ns_barrier")
    stamp(g, o, 2)
    tag_load(g)
    g(f"s_cmp_eq_u32 s3, 3\ns_cbranch_scc1 {ld}")
    for n in range(8):
        g(f"ds_read2_b64 v[{56+4*n}:{59+4*n}], v{53 + (n >> 2)} offset0:{(n&3)*32} offset1:{(n&3)*32+4}")
    for n in range(8):
        sr = 48 if n < 4 else 53
        g(f"s_waitcnt lgkmcnt({7-n})\nbuffer_store_dwordx4 v[{56+4*n}:{59+4*n}], v46, s[24:27], s{sr} offen sc1\ns_add_u32 s{sr}, s{sr}, 0x10000")
    g(f"s_cmp_lg_u32 s3, 2\ns_cbranch_scc1 {ld}")
    g(f"v_lshlrev_b32 v51, 2, v1\nv_add_u32 v52, {LN_RB}, v51\ns_lshl_b32 s52, s43, 7\ns_add_u32 s52, s52, {REC:#x}\ns_mov_b64 exec, 0xffffffff")
    g("ds_read_b32 v90, v52\ns_waitcnt lgkmcnt(0)\nbuffer_store_dword v90, v51, s[24:27], s52 offen sc1\ns_mov_b64 exec, -1")
    g(f"s_cmp_lg_u32 s43, 0\ns_cbranch_scc1 {ld}")
    g("v_lshrrev_b32 v49, 2, v1\nv_and_b32 v50, 3, v1\nv_lshlrev_b32 v51, 4, v1")
    g("v_lshlrev_b32 v52, 6, v49\nv_lshl_add_u32 v52, v50, 3, v52")
    g(f"v_add_u32 v52, {LN_EB + 4*EP}, v52")
    g("ds_read2_b64 v[92:95], v52 offset0:0 offset1:4")
    g(f"s_mov_b32 s52, {XEEX:#x}")
    g("s_waitcnt lgkmcnt(0)\nbuffer_store_dwordx4 v[92:95], v51, s[24:27], s52 offen sc1")
    g.label(ld)


class Core:
    NS = 4

    def __init__(s, g, MF, nh, SUBS, act_first, wpitch, xblocks=0, span=0.85, wsrd=12, vW=13, sW=(33, 35), tch=False, dact=False):
        s.g, s.MF, s.nh, s.SUBS, s.act_first, s.wpitch = g, MF, nh, SUBS, act_first, wpitch
        s.dact = dact
        s.NF = (8 if dact else 4) * nh
        s.nA = MF if dact else MF // 2
        s.gact = (4 if dact else 2) * MF * 1024
        s.actb = 0 if dact else s.gact
        s.subb = s.actb + nh * 8192
        s.slotb = s.subb * SUBS
        s.ringb = s.slotb * s.NS
        s.xb = xblocks
        s.xbase = s.ringb
        assert s.ringb + xblocks * 1024 <= LDS_AUX
        s.pA, s.pW = s.nA * SUBS, 2 * nh * SUBS
        s.tch = tch
        s.wrap = None
        s.sw = []
        s.rot2 = False
        s.aperm = False
        s.wpol = ''
        s.ndma = s.pA + s.pW
        s.span = span
        s.acc = {}
        v, a = 32, 128
        order = [(j, i) for i in range(MF) for j in range(s.NF)] if dact else [(j, i) for j in range(s.NF) for i in range(MF)]
        for j, i in order:
            if True:
                if v + 4 <= 256:
                    s.acc[j, i] = ("v", v); v += 4
                else:
                    s.acc[j, i] = ("a", a); a += 4
        if s.xb:
            s.accx = v; v += 4
        s.vtop = v
        s.nfr = (0 if dact else MF) + s.NF + (2 if s.xb else 0)
        s.fper = s.nfr * 4 * SUBS
        assert 2 * s.fper <= 128
        s.vArd = [2, 3]
        s.vWrd = [[4, 5, 6, 7], [8, 9, 10, 11]]
        s.vAdma = 12
        s.vWdma = [vW + k for k in range(2 * nh)]
        s.vX, s.vXW = 17, (22, 23)
        s.wsrd = wsrd
        s.sAoff, s.sMA, s.sCnt = 32, 34, 36
        s.sWoff, s.sMW = sW

    def accr(s, j, i):
        k, r = s.acc[j, i]
        return f"{k}[{r}:{r+3}]"

    def fr(s, st, u, n):
        if st == 2:
            return (192 if s.dact else 160) + n * 4
        return st * s.fper + u * s.nfr * 4 + n * 4

    def fw(s, st, u, j):
        return s.fr(st, u, (0 if s.dact else s.MF) + j)

    def fa(s, p, u, i):
        if s.dact:
            return 128 + ((p & 3) * s.SUBS + u) * s.MF * 4 + i * 4
        return s.fr(p & 1, u, i)

    def setup_w(s):
        g = s.g
        g(f"s_mul_i32 s{s.sMW}, s3, {s.nh*2048}\ns_add_u32 s{s.sMW}, s{s.sMW}, {s.actb}\ns_mov_b32 s{s.sWoff}, 0")
        g("v_lshrrev_b32 v19, 4, v1\nv_and_b32 v20, 15, v1")
        g(f"s_mov_b32 s40, {s.wpitch}\ns_mul_i32 s39, s3, {8*s.wpitch}")
        for u in range(2):
            g(f"v_add_u32 v21, {4*u}, v19")
            g("v_mul_lo_u32 v18, v21, s40\nv_add_u32 v18, s39, v18")
            g("v_lshlrev_b32 v21, 1, v21\nv_xor_b32 v21, v21, v20\nv_lshl_add_u32 v18, v21, 4, v18")
            for h in range(s.nh):
                g(f"v_add_u32 v{s.vWdma[2*h+u]}, {4096 - (2*h+u)*1024}, v18")

    def setup_r(s, xsel=None):
        g = s.g
        g("v_lshlrev_b32 v18, 4, v1")
        if s.dact:
            assert s.ringb <= 65536 and s.nh == 1
            g(f"s_mul_i32 s39, s3, {s.nA*1024}\nv_add_u32 v18, s39, v18\ns_mov_b32 s{s.sAoff}, 0")
            for i in range(4):
                g(f"s_add_u32 s39, s58, {i}\ns_and_b32 s39, s39, 3\ns_lshl_b32 s39, s39, 10\nv_add_u32 v{12+i}, s39, v18")
            g("v_bfe_u32 v19, v1, 2, 3\nv_lshrrev_b32 v20, 5, v1\nv_lshlrev_b32 v20, 11, v20\nv_lshl_add_u32 v20, v19, 8, v20")
            g("v_and_b32 v21, 3, v1\nv_lshl_add_u32 v20, v21, 3, v20\nv_lshl_add_u32 v20, v19, 5, v20")
            for j in range(8):
                g(f"v_xor_b32 v{4+j}, {32*j}, v20")
            return
        g(f"s_mul_i32 s39, s37, {s.MF*1024}\nv_add_u32 v{s.vArd[0]}, s39, v18\nv_add_u32 v{s.vArd[1]}, {2*s.slotb}, v{s.vArd[0]}")
        g(f"s_mul_i32 s{s.sMA}, s3, {s.nA*1024}\ns_mov_b32 s{s.sAoff}, 0")
        if s.aperm:
            g("v_bfe_u32 v19, v1, 2, 2\nv_lshlrev_b32 v19, 8, v19\nv_lshrrev_b32 v20, 4, v1\nv_lshl_add_u32 v19, v20, 6, v19\nv_and_b32 v20, 3, v1")
            g(f"v_lshl_add_u32 v19, v20, 4, v19\nv_add_u32 v{s.vAdma}, s{s.sMA}, v19")
        else:
            g(f"v_add_u32 v{s.vAdma}, s{s.sMA}, v18")
        if s.xb:
            g(f"v_add_u32 v{s.vX}, {s.xbase}, v18")
        g("v_bfe_u32 v19, v1, 2, 3")
        g(f"v_lshrrev_b32 v20, 5, v1\nv_mul_u32_u24 v20, {s.nh*2048}, v20\nv_lshl_add_u32 v20, v19, 8, v20")
        g(f"v_and_b32 v21, 3, v1\nv_lshl_add_u32 v20, v21, 3, v20\nv_add_u32 v20, {s.actb}, v20")
        g("s_lshl_b32 s39, s38, 2")
        for jj in range(4):
            g(f"s_add_u32 s40, s39, {jj}\nv_xor_b32 v21, s40, v19")
            g(f"v_lshl_add_u32 v{s.vWrd[0][jj]}, v21, 5, v20\nv_add_u32 v{s.vWrd[1][jj]}, {2*s.slotb}, v{s.vWrd[0][jj]}")
        if s.xb:
            g(f"s_and_b32 s40, {xsel}, 3\ns_add_u32 s40, s40, s39\nv_xor_b32 v21, s40, v19\nv_lshl_add_u32 v{s.vXW[0]}, v21, 5, v20")
            g(f"s_lshr_b32 s40, {xsel}, 2\ns_lshl_b32 s40, s40, 11\nv_add_u32 v{s.vXW[0]}, s40, v{s.vXW[0]}")
            g(f"v_add_u32 v{s.vXW[1]}, {2*s.slotb}, v{s.vXW[0]}")

    def dma_a(s, slot):
        it = []
        for u in range(s.SUBS):
            if s.dact:
                for i in range(s.MF):
                    r = s.fa(slot, u, i)
                    it.append([f"buffer_load_dwordx4 a[{r}:{r+3}], v{12+i}, s[8:11], s{s.sAoff} offen{ASC}"])
                it[-1].append(f"s_add_u32 s{s.sAoff}, s{s.sAoff}, {s.gact}")
                continue
            first = [f"s_add_u32 m0, s{s.sMA}, {slot * s.slotb + u * s.subb}", "@"]
            for i in range(s.nA):
                it.append(first + [f"buffer_load_dwordx4 v{s.vAdma}, s[8:11], s{s.sAoff} offen offset:{i*1024}{ASC} lds"])
                first = []
            it[-1].append(f"s_add_u32 s{s.sAoff}, s{s.sAoff}, {s.gact}")
        return it

    def dma_w(s, slot):
        it = []
        for u in range(s.SUBS):
            first = [f"s_add_u32 m0, s{s.sMW}, {slot * s.slotb + u * s.subb}", "@"]
            for h in range(s.nh):
                for uu in range(2):
                    r = s.wsrd + 4 * h
                    it.append(first + [f"buffer_load_dwordx4 v{s.vWdma[2*h+uu]}, s[{r}:{r+3}], s{s.sWoff} offen offset:{(2*h+uu)*1024}{s.wpol} lds"])
                    first = []
            it[-1].append(f"s_add_u32 s{s.sWoff}, s{s.sWoff}, {32*s.wpitch}")
        return it

    def touch(s):
        return [["buffer_load_dword v29, v26, s[24:27], 0 offen", "v_add_u32 v26, s62, v26"]] if s.tch else []

    def group(s, p):
        a, w = s.dma_a(p + 3 if s.dact else p), s.dma_w(p)
        if getattr(s, "hack", 0) & 1:
            a = []
        if getattr(s, "hack", 0) & 2:
            w = []
        if s.wrap:
            if p == 0:
                w = [[f"s_lshl_b32 s{s.sWoff}, s99, 18", f"s_add_u32 s{s.sWoff}, s{s.sWoff}, s96"]] + w
                w = w + [["buffer_load_dword v30, v26, s[28:31], 0 offen sc1"]]
            if p == 1:
                a = [[f"s_lshl_b32 s{s.sAoff}, s99, 16"]] + a
            if p == 3:
                a = [["ds_read_b32 v17, v16"]] + a
        if s.rot2 and p == 1:
            w = w + [["buffer_load_dword v30, v28, s[28:31], 0 offen sc1"]]
        return s.touch() + (s.sw if p == 3 else []) + a + w

    def reads(s, slot, st):
        it = []
        hi = slot >> 1
        for u in range(s.SUBS):
            if s.dact:
                for j in range(s.NF):
                    r = s.fw(st, u, j)
                    for half in range(2):
                        it.append([f"ds_read_b64_tr_b16 a[{r+2*half}:{r+2*half+1}], v{4+j} offset:{slot*s.slotb + u*s.subb + half*4096}"])
                continue
            base = (slot & 1) * s.slotb + u * s.subb
            wl, al = [], []
            for j in range(s.NF):
                h, jj = divmod(j, 4)
                r = s.fr(st, u, s.MF + j)
                for half in range(2):
                    wl.append(f"ds_read_b64_tr_b16 a[{r+2*half}:{r+2*half+1}], v{s.vWrd[hi][jj]} offset:{base + h*2048 + half*2*s.nh*2048}")
            for i in range(s.MF):
                r = s.fr(st, u, i)
                al.append(f"ds_read_b128 a[{r}:{r+3}], v{s.vArd[hi]} offset:{base + i*1024}")
            if s.xb:
                r = s.fr(st, u, s.MF + s.NF)
                al.append(f"ds_read_b128 a[{r}:{r+3}], v{s.vX}")
                for half in range(2):
                    wl.append(f"ds_read_b64_tr_b16 a[{r+4+2*half}:{r+5+2*half}], v{s.vXW[hi]} offset:{base + half*2*s.nh*2048}")
            while wl or al:
                if al: it.append([al.pop(0)])
                if wl: it.append([wl.pop(0)])
                if wl: it.append([wl.pop(0)])
            if s.xb:
                it.append([f"v_add_u32 v{s.vX}, 1024, v{s.vX}"] + ([f"v_and_or_b32 v{s.vX}, v{s.vX}, s63, v29"] if s.rot2 else []))
        return it

    def mfma1(s, p, j, i, st=None):
        st = p & 1 if st is None else st
        a, w = (s.fa(p, 0, i) if s.dact else s.fr(st, 0, i)), s.fw(st, 0, j)
        A, W = f"a[{a}:{a+3}]", f"a[{w}:{w+3}]"
        x, y = (A, W) if s.act_first else (W, A)
        return f"v_mfma_f32_16x16x32_bf16 {s.accr(j,i)}, {x}, {y}, {s.accr(j,i)}"

    def final_phase(s, vm, blocks, lag, pre_items=(), two=False):
        g = s.g
        g(f"s_waitcnt vmcnt({vm}) lgkmcnt(0)" if vm is not None else "s_waitcnt lgkmcnt(0)")
        g("s_barrier")
        pre = [ins for grp in pre_items for ins in grp]
        for b, (tiles, _) in enumerate(blocks):
            work = list(blocks[b - lag][1]) if b >= lag else []
            if b < lag and pre:
                k = -(-len(pre) // (lag - b))
                work, pre = ["s_nop 0" if x == "@" else x for x in pre[:k]], pre[k:]
            mf = [s.mfma1(3, j, i) for (j, i) in tiles]
            if two:
                mf = [s.mfma1(2, j, i) for (j, i) in tiles] + [s.mfma1(3, j, i, 2) for (j, i) in tiles]
            per = -(-len(work) // len(mf))
            for m in mf:
                g(m)
                for ins in work[:per]:
                    g(ins)
                work = work[per:]
        g("s_nop 7")
        for b in range(len(blocks) - lag, len(blocks)):
            for ins in blocks[b][1]:
                g(ins)

    def mfmas(s, p, zero):
        out = []
        st = p & 1
        for u in range(s.SUBS):
            z = zero and u == 0
            for j in range(s.NF):
                ii = range(s.MF) if j % 2 == 0 else range(s.MF - 1, -1, -1)
                for i in ii:
                    a, w = s.fa(p, u, i), s.fw(st, u, j)
                    A, W = f"a[{a}:{a+3}]", f"a[{w}:{w+3}]"
                    x, y = (A, W) if s.act_first else (W, A)
                    out.append(f"v_mfma_f32_16x16x32_bf16 {s.accr(j,i)}, {x}, {y}, {'0' if z else s.accr(j,i)}")
            if s.xb:
                a = s.fr(st, u, s.MF + s.NF)
                c = f"v[{s.accx}:{s.accx+3}]"
                out.append(f"v_mfma_f32_16x16x32_bf16 {c}, a[{a}:{a+3}], a[{a+4}:{a+7}], {'0' if z else c}")
        return out

    def flat(s, items):
        for grp in items:
            for ins in grp:
                s.g("s_nop 0" if ins == "@" else ins)

    def phase(s, p, vm, dma, rd=True, zero=False, tail=None, pre=None, preb=None):
        g = s.g
        st = p & 1
        g(f"s_waitcnt vmcnt({vm}) lgkmcnt(0)" if vm is not None else "s_waitcnt lgkmcnt(0)")
        if preb:
            preb()
        g("s_barrier")
        if pre:
            pre()
        rdl = s.reads((p + 1) % s.NS, st ^ 1) if rd else []
        if getattr(s, "hack", 0) & 4:
            rdl = [x for x in rdl if "b128" not in x[0]]
        if getattr(s, "hack", 0) & 8:
            rdl = [x for x in rdl if "tr_b16" not in x[0]]
        fill = []
        nr, nd = len(rdl), len(dma)
        ri = di = 0
        while ri < nr or di < nd:
            if di < nd and (ri >= nr or di * nr <= ri * nd):
                fill.append(dma[di]); di += 1
            else:
                fill.append(rdl[ri]); ri += 1
        flat = []
        for grp in fill:
            cur = []
            for ins in grp:
                if ins == "@":
                    flat.append(cur); cur = []
                else:
                    cur.append(ins)
            flat.append(cur)
        mf = s.mfmas(p, zero)
        n = len(mf)
        lim = max(1, int(n * s.span))
        pos = {}
        for idx, grp in enumerate(flat):
            pos.setdefault(min(n - 2, idx * lim // len(flat)), []).append(grp)
        for k, m in enumerate(mf):
            g(m)
            grps = pos.get(k, [])
            for gi, grp in enumerate(grps):
                if gi and grps[gi-1] and grps[gi-1][-1].startswith("s_add_u32 m0"):
                    g("s_nop 0")
                for ins in grp:
                    g(ins)
            if tail and k == n - 2:
                g(tail)

    def start(s, nT=0, touch=None, chk=None, late=None, extra=()):
        g = s.g
        extra = list(extra)
        if s.dact:
            for p in range(3):
                k = -(-len(extra) // (3 - p))
                grp, extra = extra[:k], extra[k:]
                s.phase(p, 0 if p == 2 else None, grp, zero=(p == 0), pre=(late if p == 2 else None))
            s.phase(3, 0, s.restart(), rd=False, preb=chk[0], pre=chk[1])
            return
        for slot in range(s.NS):
            s.flat(s.dma_a(slot))
        if touch:
            touch()
        g(f"s_waitcnt vmcnt({3*s.pA + nT}) lgkmcnt(0)\ns_barrier")
        s.flat(s.reads(0, 0))
        vms = [2 * s.pA + nT, s.pA + nT + s.ndma, nT + 2 * s.ndma, 2 * s.ndma]
        for p in range(4):
            s.phase(p, vms[p], s.group(p), zero=(p == 0))

    def restart(s):
        it = [[f"s_lshl_b32 s{s.sWoff}, s99, 18", f"s_add_u32 s{s.sWoff}, s{s.sWoff}, s96", f"s_lshl_b32 s{s.sAoff}, s99, 16"]]
        for p in range(3):
            it += s.dma_w(p) + s.dma_a(p)
        return it + s.dma_w(3)

    def loop(s, cnt, name, head=None, chk=None):
        g = s.g
        g(f"s_mov_b32 s{s.sCnt}, {cnt}")
        g.label(name)
        if head:
            head()
        for p in range(4):
            s.phase(p, 2 * s.ndma, s.group(p), preb=(chk.get(p) if isinstance(chk, dict) else chk if p == 0 else None),
                    tail=(f"s_sub_u32 s{s.sCnt}, s{s.sCnt}, 1\ns_cmp_lg_u32 s{s.sCnt}, 0" if p == 3 else None))
        g(f"s_cbranch_scc1 {name}")

    def last(s, fills=None, pres=None, flfirst=False, final=None):
        fills = fills or [[], [], [], []]
        pres = pres or [None] * 4
        cnt = lambda f: sum(1 for grp in f for ins in grp if ins.startswith("buffer_"))
        if s.dact:
            fills = [fills[0] + s.dma_a(3) if flfirst else s.dma_a(3) + fills[0]] + list(fills[1:])
        n = [cnt(f) for f in fills]
        vms = [2 * s.ndma, s.ndma + n[0], n[0] + n[1], ((0 if flfirst else n[0] - s.pA) + n[1] + n[2]) if s.dact else None]
        if final and len(final) > 2:
            s.phase(0, vms[0], fills[0], pre=pres[0])
            s.phase(1, n[0], fills[1] + s.reads(3, 2), pre=pres[1])
            s.final_phase((n[0] - s.pA + n[1]) if s.dact else None, final[0], final[1], fills[2] + fills[3], two=True)
            return
        for p in range(4):
            if p == 3 and final:
                s.final_phase(vms[3], final[0], final[1], fills[3])
            else:
                s.phase(p, vms[p], fills[p], rd=(p < 3), pre=pres[p])


def accv(g, core, j, i, tmp):
    k, r = core.acc[j, i]
    if k == "v":
        return r
    for x in range(4):
        g(f"v_accvgpr_read_b32 v{tmp+x}, a{r+x}")
    return tmp


def warm_lines(g, ptr, nbytes, first, rl, pitch, n, step):
    g.srd(8, ptr, nbytes)
    g(f"v_add_u32 v26, {first}, v1\nv_lshrrev_b32 v27, {rl}, v26\nv_lshlrev_b32 v28, {rl}, v27\nv_sub_u32 v26, v26, v28")
    g(f"s_mov_b32 s4, {pitch}\nv_mul_lo_u32 v27, v27, s4\nv_lshl_add_u32 v26, v26, 7, v27")
    for k in range(n):
        g("buffer_load_dword v29, v26, s[8:11], 0 offen")
        if k + 1 < n:
            g(f"v_add_u32 v26, {(step >> rl) * pitch}, v26")


def cnt_vm(items):
    return sum(1 for grp in items for ins in grp if ins.startswith("buffer_"))


def k2_sids(g):
    g("s_and_b32 s56, s41, 1\ns_lshl_b32 s56, s56, 2\ns_and_b32 s57, s42, 3\ns_add_u32 s56, s56, s57\ns_lshr_b32 s57, s42, 2\ns_lshr_b32 s58, s41, 1")


def slab_srd(g):
    g(f"s_lshl_b32 s4, s56, 3\ns_add_u32 s4, s4, s57\ns_mul_i32 s4, s4, {4*49152}\ns_lshl_b32 s5, s3, 12\ns_add_u32 s4, s4, s5")
    g.srd(24, PWS, 4 * 49152, PART, "s4")


def n_early(o):
    return (12 if o.get("sent", 0) else 0) + (1 if o.get("codepf", 0) else 0)


def early(g, o):
    if o.get("codepf", 0):
        g("s_getpc_b64 s[4:5]\ns_and_b32 s24, s4, 0xffffff00\ns_mov_b32 s25, s5\ns_mov_b32 s26, 0xd000\ns_mov_b32 s27, 0x20000")
        g("s_lshl_b32 s4, s42, 2\ns_add_u32 s4, s4, s3\ns_lshl_b32 s4, s4, 9\nv_lshlrev_b32 v26, 7, v1\nv_add_u32 v26, s4, v26\ns_mov_b64 exec, 15")
        g("buffer_load_dword v29, v26, s[24:27], 0 offen\ns_mov_b64 exec, -1")
    if o.get("sent", 0):
        k2_sids(g)
        slab_srd(g)
        g("s_mul_i32 s4, s58, 49152\nv_mov_b32 v36, -1\nv_mov_b32 v37, -1\nv_mov_b32 v38, -1\nv_mov_b32 v39, -1")
        for i in range(3):
            for k in range(4):
                g(f"buffer_store_dwordx4 v[36:39], v32, s[24:27], s4 offen offset:{k*1024} sc1")
            g("s_add_u32 s4, s4, 16384")


def k2_ids(g, o):
    k2_sids(g)
    c2 = Core(g, MF=4, nh=1, SUBS=1, act_first=False, wpitch=D * 2, wsrd=20, vW=24, sW=(59, 60), span=o.get("span2", 0.9), dact=True)
    c2.wpol = o.get('w2pol', '')
    c2.setup_w()
    g(f"s_mul_i32 s96, s58, {896 * D * 2}")
    g("s_sub_u32 s98, s42, 4\ns_max_i32 s98, s98, 0\ns_lshr_b32 s98, s98, 2")
    g("s_lshl_b32 s59, s98, 18\ns_add_u32 s59, s59, s96")
    c2.wrap = True
    g(f"s_lshl_b32 s44, s57, 8\ns_sub_u32 s45, {F*D*2 + 4096}, s44")
    g.srd(20, PWD, "s45", -4096, "s44")
    return c2


XS, PS, AX, AP, RB, GO = 160, 164, 168, 176, 184, 188


def spin(g, va, thr, first_loaded, vf=30, lane=None):
    l0, l1, l2 = g.newlabel("sp"), g.newlabel("spd"), g.newlabel("spc")
    if first_loaded:
        g(f"s_branch {l2}")
    g.label(l0)
    g(f"buffer_load_dword v{vf}, v{va}, s[28:31], 0 offen sc1\ns_waitcnt vmcnt(0)")
    g.label(l2)
    flag_bad(g, [(vf, thr)])
    if lane:
        g(f"s_lshl_b32 s4, 0x11, {lane}\ns_and_b32 vcc_lo, vcc_lo, s4\ns_mov_b32 vcc_hi, 0")
    g(f"s_sub_u32 s101, s101, 1\ns_cbranch_scc1 {l1}\ns_cbranch_vccnz {l0}")
    g.label(l1)


def k2_rows(g):
    g("v_lshrrev_b32 v18, 4, v1\nv_and_b32 v19, 15, v1\ns_cmp_ge_u32 s56, 4\ns_cselect_b64 s[62:63], -1, 0\nv_mov_b32 v28, 0x400")
    for n in range(4):
        g(f"v_add_u32 v20, {4*n}, v18\nv_xor_b32 v21, v20, v19\nv_lshlrev_b32 v21, 4, v21\nv_add_u32 v21, {4096 - n*1024}, v21\nv_add_u32 v20, s54, v20")
        g(f"v_cmp_eq_u32 vcc, v20, v28\nv_sub_u32 v{XS+n}, 0xc00, v20\nv_and_b32 v{PS+n}, 0x3ff, v20\nv_cndmask_b32 v{XS+n}, v20, v{XS+n}, s[62:63]")
        g(f"v_cndmask_b32 v{XS+n}, v{XS+n}, v28, vcc\nv_cndmask_b32 v{PS+n}, v{PS+n}, v28, vcc")
        g(f"v_lshlrev_b32 v{XS+n}, 11, v{XS+n}\nv_lshl_add_u32 v{GO+n}, v19, 4, v{XS+n}\nv_add_u32 v{XS+n}, v{XS+n}, v21")
        g(f"v_mul_u32_u24 v{PS+n}, {PQ_PITCH}, v{PS+n}\nv_add_u32 v{PS+n}, v{PS+n}, v21")


def tile_pick(g, off=0):
    l0, l1, l2, l3 = g.newlabel("tp"), g.newlabel("tpd"), g.newlabel("tpc"), g.newlabel("tpx")
    g(f"s_cmp_lg_u32 s3, 0\ns_cbranch_scc1 {l3}")
    g(f"s_cmp_eq_u32 s47, 0x7f\ns_cbranch_scc1 {l1}\ns_branch {l2}")
    g.label(l0)
    g("buffer_load_dword v30, v26, s[28:31], 0 offen sc1\ns_waitcnt vmcnt(0)")
    g.label(l2)
    flag_bad(g, [(30, 2)])
    g("s_lshr_b32 s4, vcc_lo, 8\ns_or_b32 s4, s4, vcc_lo\ns_sub_u32 s101, s101, 1\ns_cselect_b32 s4, 0, s4\ns_andn2_b32 s4, 0x7f, s4\ns_or_b32 s47, s47, s4")
    g(f"s_and_b32 s4, s47, s97\ns_cbranch_scc0 {l0}")
    g.label(l1)
    g(f"s_and_b32 s4, s47, s97\ns_ff1_i32_b32 s4, s4\ns_bitset0_b32 s97, s4\nv_mov_b32 v17, s4\nds_write_b32 v16, v17 offset:{off}\ns_waitcnt lgkmcnt(0)")
    g.label(l3)


def tile_get(g):
    g("ds_read_b32 v17, v16 offset:4\ns_waitcnt lgkmcnt(0)\nv_readfirstlane_b32 s99, v17")


def tile_dma(g, srd, va, off, sc, one=False):
    g("\n".join([f"s_add_u32 m0, s55, {off}", "s_nop 0"] +
                [f"buffer_load_dwordx4 v{va+n}, s[{srd}:{srd+3}], 0 offen offset:{n*1024}{sc} lds" for n in range(4)]))


def k2_setup(g, o, c2):
    g("s_nop 1")
    c2.setup_r()
    g(f"s_mul_i32 s44, s56, {112*16384}\ns_mul_i32 s45, s58, {28*16384}\ns_add_u32 s44, s44, s45")
    g.srd(8, PWS, 28 * 16384, H, "s44")
    g("s_mul_i32 s44, s56, 28\ns_mul_i32 s45, s58, 7\ns_add_u32 s44, s44, s45")
    g("v_and_b32 v26, 7, v1\nv_min_u32 v26, 6, v26\nv_add_u32 v26, s44, v26\nv_lshlrev_b32 v26, 7, v26")
    g("v_bfe_u32 v18, v1, 3, 1\nv_lshl_add_u32 v26, v18, 2, v26")
    g("s_mov_b32 s101, 0x80000\ns_mov_b32 s47, 0")
    g("s_mov_b32 s97, 0x7f\nv_mov_b32 v30, 0\nv_mov_b32 v16, 0x27ff0\ns_cmp_eq_u32 s3, 0\ns_cselect_b32 s44, 0, 0x80000000\nv_or_b32 v26, s44, v26")


class Rec(G):
    def __init__(s, g):
        s.g0, s.items = g, []

    def __call__(s, txt):
        s.items.append([ln.strip() for ln in txt.split("\n") if ln.strip()])


def k2_tail_setup(g0, o):
    g = Rec(g0)
    g("s_mul_i32 s55, s3, 12288\ns_add_u32 s55, s55, 0x8000")
    g("s_lshl_b32 s54, s56, 8\ns_lshl_b32 s44, s3, 6\ns_add_u32 s54, s54, s44\ns_lshl_b32 s44, s58, 4\ns_add_u32 s54, s54, s44")
    k2_rows(g)
    g(f"s_lshl_b32 s61, s57, 8\ns_sub_u32 s45, {S*D*2 + 4096}, s61")
    g.srd(12, PX, "s45", -4096, "s61")
    tile_dma(g, 12, XS, 0, "", one=True)
    g("s_sub_u32 s48, 1794, s61\ns_cmp_ge_u32 s57, 4\ns_cselect_b32 s44, s48, s61\ns_cselect_b32 s48, 248, 0\ns_cselect_b32 s49, -1, 0")
    g(f"s_sub_u32 s45, {1025*PQ_PITCH + 4096}, s44")
    g.srd(12, PWS, "s45", PP - 4096, "s44")
    g.srd(16, PWS, "s45", QQ - 4096, "s44")
    g("s_xor_b32 s62, s62, s49\ns_cmp_lg_u32 s62, 0\ns_cselect_b32 s62, 1.0, -1.0\ns_mov_b32 s63, s62")
    g("v_and_b32 v18, 15, v1\nv_lshrrev_b32 v19, 5, v1\nv_xor_b32 v19, v19, v18")
    g("v_lshlrev_b32 v19, 4, v19\nv_lshl_add_u32 v19, v18, 8, v19\nv_bfe_u32 v20, v1, 4, 1\nv_lshl_add_u32 v19, v20, 3, v19")
    for j in range(8):
        g(f"v_xor_b32 v20, {32*j}, v19\nv_add_u32 v{AX+j}, s55, v20")
        g(f"v_xor_b32 v20, s48, v20\nv_add_u32 v{AP+j}, s55, v20")
    g("v_lshrrev_b32 v18, 4, v1\nv_and_b32 v19, 15, v1")
    for n in range(4):
        g(f"v_add_u32 v21, {4*n}, v18\nv_xor_b32 v20, v21, v19\nv_lshlrev_b32 v20, 4, v20")
        g(f"v_lshl_add_u32 v20, v21, 8, v20\nv_add_u32 v{RB+n}, s55, v20")
    g(f"s_lshl_b32 s44, s56, 3\ns_add_u32 s44, s44, s57\ns_mul_i32 s44, s44, {4*49152}\ns_lshl_b32 s45, s3, 12\ns_add_u32 s44, s44, s45")
    g.srd(24, PWS, 4 * 49152, PART, "s44")
    for i in range(1, 4):
        g(f"s_add_u32 s{49+i}, s58, {i}\ns_and_b32 s{49+i}, s{49+i}, 3\ns_mul_i32 s{49+i}, s{49+i}, 49152\ns_add_u32 s{49+i}, s{49+i}, {(i-1)*16384}")
    g("s_mul_i32 s53, s58, 49152\nv_lshlrev_b32 v29, 4, v1")
    g("v_and_b32 v22, 31, v1\nv_add_u32 v22, 224, v22\nv_lshlrev_b32 v22, 7, v22\nv_lshrrev_b32 v23, 5, v1\nv_lshl_add_u32 v22, v23, 2, v22")
    g("s_cmp_lt_u32 s42, 4\ns_cselect_b32 s44, 8, 7\nv_lshrrev_b32 v23, 1, v1\nv_min_u32 v23, 2, v23")
    g("v_add_u32 v23, 1, v23\nv_add_u32 v23, s58, v23\nv_and_b32 v23, 3, v23")
    g("s_mul_i32 s45, s58, s44\ns_sub_u32 s45, s43, s45\nv_mul_u32_u24 v23, s44, v23")
    g("v_add_u32 v23, s45, v23\nv_lshlrev_b32 v23, 7, v23")
    g("s_lshl_b32 s44, s3, 3\ns_add_u32 s44, s44, 16\nv_and_b32 v27, 1, v1\nv_lshl_add_u32 v27, v27, 2, s44\nv_add_u32 v23, v27, v23")
    g("s_lshl_b32 s45, s43, 7\nv_add_u32 v27, s45, v27")
    return g.items


def main_kernel(g, o):
    g.begin(NAME)
    g("s_cmp_ge_u32 s2, 256\ns_cbranch_scc1 L_done")
    g("s_load_dwordx16 s[64:79], s[0:1], 0\ns_load_dwordx8 s[80:87], s[0:1], 64")
    g("v_lshrrev_b32 v2, 6, v0\nv_and_b32 v1, 63, v0\ns_nop 0\nv_readfirstlane_b32 s3, v2")
    if o.get("stamp"):
        g(f"v_mov_b32 v{VST}, 0")
    stamp(g, o, 0)
    g("s_and_b32 s41, s2, 7\ns_lshr_b32 s42, s2, 3\ns_lshr_b32 s37, s3, 1\ns_and_b32 s38, s3, 1")
    g("s_cmp_lt_u32 s42, 4\ns_cbranch_scc1 L_fft")

    g("s_sub_u32 s44, s42, 4")
    g("s_and_b32 s54, s41, 1\ns_lshl_b32 s54, s54, 2\ns_and_b32 s45, s44, 3\ns_add_u32 s54, s54, s45")
    g("s_lshr_b32 s55, s41, 1\ns_mul_i32 s55, s55, 7\ns_lshr_b32 s45, s44, 2\ns_add_u32 s55, s55, s45")
    g("s_mul_i32 s43, s54, 28\ns_add_u32 s43, s43, s55")
    c1 = Core(g, MF=8, nh=2, SUBS=1, act_first=False, wpitch=F * 2, span=o.get("span1", 0.85), tch=o.get("pf", 1))
    c1.aperm = True
    c1.hack = o.get('hack', 0)
    c1.wpol = o.get('w1pol', ' nt')
    c1.setup_w()
    g("s_waitcnt lgkmcnt(0)")
    tag_issue(g)
    ln_loads(g)
    early(g, o)
    g(f"s_lshl_b32 s46, s55, 8\ns_sub_u32 s47, {D*F*2 + 4096}, s46")
    g.srd(12, PWG, "s47", -4096, "s46")
    g.srd(16, PWU, "s47", -4096, "s46")
    nW, nC = o.get("nW", 0), o.get("nC", 0)

    def warm_g():
        g(f"s_cmp_ge_u32 s43, 112\ns_cselect_b32 s62, s{PWU}, s{PWG}\ns_cselect_b32 s63, s{PWU+1}, s{PWG+1}\ns_cselect_b32 s61, 112, 0\ns_sub_u32 s61, s43, s61")
        g(f"s_lshl_b32 s61, s61, 6\ns_add_u32 s61, s61, {128*56}")
        warm_lines(g, 62, D * F * 2, "s61", 0, 128, nW, 7168)
        if not nC:
            return
        g(f"s_bitcmp1_b32 s43, 0\ns_cselect_b32 s62, s{PSI}, s{PSR}\ns_cselect_b32 s63, s{PSI+1}, s{PSR+1}\ns_lshr_b32 s61, s43, 1\ns_lshl_b32 s61, s61, 6")
        warm_lines(g, 62, 1024 * 4096, "s61", 4, 4096, nC, 7168)
    def warm1():
        g("v_mul_u32_u24 v26, 37, v1\nv_lshrrev_b32 v26, 9, v26\nv_mul_u32_u24 v27, 14, v26\nv_sub_u32 v27, v1, v27")
        g(f"s_lshl_b32 s4, s43, 2\nv_add_u32 v26, s4, v26\nv_mul_u32_u24 v26, {F*2}, v26\nv_lshrrev_b32 v28, 1, v27\nv_lshl_add_u32 v26, v28, 10, v26")
        g("v_and_b32 v27, 1, v27\nv_lshl_add_u32 v26, v27, 7, v26")
        for ptr in (PWG, PWU):
            g.srd(8, ptr, D * F * 2)
            g("buffer_load_dword v29, v26, s[8:11], 0 offen offset:256")
    pf = o.get("pf", 1)
    wl = sum((c1.dma_w(slot) for slot in range(4)), [])
    n0, n1 = o.get("wpre", 6), o.get("wmid", 0)
    c1.flat(wl[:n0])
    ln_body(g, o, n_early(o) + n0, "g", wl[n0:n0 + n1], warm_g if (nW or nC) else (warm1 if o.get('warm1', 0) else None))
    late = wl[n0 + n1:]
    post = []
    if o.get("wpost", 1):
        late, post = [], late
    c1.flat(late)
    c1.setup_r()
    g("s_and_b32 s46, s54, 3\ns_lshl_b32 s46, s46, 13\nv_lshl_add_u32 v22, v1, 7, s46")
    g("s_lshl_b32 s46, s54, 19")
    g.srd(8, PWS, 0x80000, XN, "s46")
    lg = o.get("lpw", 3)
    lc = 4 << lg
    g("s_add_u32 s46, s55, 2\ns_lshr_b32 s46, s46, 2\ns_sub_u32 s46, s55, s46\ns_mul_i32 s47, s54, 21\ns_add_u32 s46, s46, s47")
    g(f"s_and_b32 s47, s55, 3\ns_cmp_eq_u32 s47, 1\ns_cselect_b32 s63, 0, {F*D*2}\ns_cselect_b32 s98, 0, {1024*4096}")
    g(f"s_bitcmp1_b32 s46, 0\ns_cselect_b32 s96, s{PSI}, s{PSR}\ns_cselect_b32 s97, s{PSI+1}, s{PSR+1}")
    g(f"v_lshrrev_b32 v18, {lg}, v1\nv_min_u32 v18, 1, v18\nv_lshlrev_b32 v18, 31, v18\ns_lshl_b32 s47, s3, {lg}\nv_add_u32 v19, s47, v1")
    g(f"s_lshl_b32 s47, s46, {lg+2}\nv_add_u32 v20, s47, v19\nv_lshl_or_b32 v23, v20, 7, v18")
    g(f"s_lshr_b32 s46, s46, 1\ns_lshl_b32 s46, s46, {lg+2}\nv_add_u32 v19, s46, v19\nv_and_b32 v21, 15, v19\nv_lshrrev_b32 v20, 4, v19")
    g("v_lshlrev_b32 v20, 12, v20\nv_lshl_add_u32 v20, v21, 7, v20\nv_or_b32 v26, v20, v18")
    publish(g, 1, True, len(late))
    c1.flat(post)
    g(f"s_mov_b32 s24, s96\ns_mov_b32 s25, s97\ns_mov_b32 s26, s98\ns_mov_b32 s27, 0x20000\ns_mov_b32 s62, {84 * lc // 16 * 4096}")
    stamp(g, o, 3)
    poll(g, [(22, 1)], sleep=o.get("psl", 1))
    stamp(g, o, 4)
    c1.start()
    c1.sw = [[f"s_cmp_eq_u32 s{c1.sCnt}, {o.get('sw', 5)}", f"s_cselect_b32 s24, s{PWD}, s24", f"s_cselect_b32 s25, s{PWD+1}, s25",
              "s_cselect_b32 s26, s63, s26", f"s_cselect_b32 s62, {168 * lc * 128}, s62", "s_cselect_b64 s[46:47], -1, 0",
              "v_cndmask_b32 v26, v26, v23, s[46:47]"]]
    c1.loop(6, "L_g1")
    c1.sw = []
    gm, g = g, Rec(g)
    c2 = k2_ids(g, o)
    g.srd(24, PWS, S * F * 2, H)
    g(f"s_mul_i32 s50, s54, {112*16384}\ns_lshl_b32 s51, s37, 13\ns_add_u32 s50, s50, s51")
    g("s_lshl_b32 s51, s55, 2\ns_lshl_b32 s52, s38, 1\ns_add_u32 s51, s51, s52\ns_lshl_b32 s51, s51, 14")
    g("s_add_u32 s50, s50, s51\ns_add_u32 s51, s50, 0x4000")
    g("v_lshlrev_b32 v26, 4, v1\nv_add_u32 v27, 0x1000, v26")
    g(f"s_lshl_b32 s4, s38, 15\ns_lshl_b32 s5, s37, 13\ns_add_u32 s4, s4, s5\ns_add_u32 s4, s4, {HSTG}\nv_add_u32 v28, s4, v26")
    pre_last, g = g.items, gm
    c2.g = g
    blocks = []
    for kbl in range(2):
        for i in range(8):
            o4 = (12, 16)[len(blocks) & 1]
            work = []
            for jj in range(2):
                j = 2 * kbl + jj
                gr = c1.acc[j, i][1]
                kind, ur = c1.acc[4 + j, i]
                if kind == "a":
                    work += [f"v_accvgpr_read_b32 v{20+x}, a{ur+x}" for x in range(4)]
                    ur = 20
                work += [f"v_mul_f32 v{gr+x}, v{gr+x}, v{ur+x}" for x in range(4)] if o.get("epmul", 0) else \
                        [f"v_pk_mul_f32 v[{gr}:{gr+1}], v[{gr}:{gr+1}], v[{ur}:{ur+1}]", f"v_pk_mul_f32 v[{gr+2}:{gr+3}], v[{gr+2}:{gr+3}], v[{ur+2}:{ur+3}]"]
                work += [f"v_cvt_pk_bf16_f32 v{o4+2*jj}, v{gr}, v{gr+1}", f"v_cvt_pk_bf16_f32 v{o4+2*jj+1}, v{gr+2}, v{gr+3}"]
            work.append(f"buffer_store_dwordx4 v[{o4}:{o4+3}], v{26 + (i >> 2)}, s[24:27], s{50+kbl} offen offset:{(i&3)*1024} sc1")
            work.append(f"ds_write_b128 v28, v[{o4}:{o4+3}] offset:{kbl*16384 + i*1024}")
            blocks.append(([(2 * kbl, i), (2 * kbl + 1, i), (4 + 2 * kbl, i), (5 + 2 * kbl, i)], work))
    if True:
        c1.last([pre_last, c2.dma_w(0) + c2.dma_w(1) + c2.dma_w(2) + c2.dma_w(3), [], []], final=(blocks, 2, 1) if o.get('two1', 1) else (blocks, 3))
    stamp(g, o, 5)
    k2_setup(g, o, c2)
    for i in range(4):
        g(f"v_add_u32 v{18+i}, {HSTG}, v{12+i}")
    g("s_bitset0_b32 s97, s98\ns_waitcnt vmcnt(16) lgkmcnt(0)\ns_barrier")
    stamp(g, o, 6)
    for u in range(4):
        for i in range(4):
            r = c2.fa(u, 0, i)
            g(f"ds_read_b128 a[{r}:{r+3}], v{18+i} offset:{u*16384}")
    stamp(g, o, 10)

    def late2():
        lab = g.newlabel("p2")
        stamp(g, o, 17)
        g(f"s_cmp_lg_u32 s3, 0\ns_cbranch_scc1 {lab}")
        g("s_lshl_b32 s4, s43, 7\ns_add_u32 s5, s100, 2\nv_lshl_add_u32 v2, v1, 2, s4\nv_mov_b32 v3, s5\ns_mov_b64 exec, 0xffffffff")
        g("buffer_store_dword v3, v2, s[28:31], 0 offen sc1\ns_mov_b64 exec, -1")
        g.label(lab)
        g("buffer_load_dword v30, v26, s[28:31], 0 offen sc1")
    c2.flat(c2.reads(0, 0))
    c2.start(late=late2, chk=(lambda: tile_pick(g, 4), lambda: tile_get(g)), extra=k2_tail_setup(g, o))
    stamp(g, o, 18)
    g("s_mov_b32 s46, 5\ns_branch L_k2")

    g.label("L_fft")
    g("s_and_b32 s54, s41, 1\ns_lshr_b32 s55, s41, 1")
    g("s_lshl_b32 s43, s41, 2\ns_add_u32 s43, s43, s42\ns_add_u32 s43, s43, 224")
    f1 = Core(g, MF=8, nh=1, SUBS=1, act_first=True, wpitch=D * 2, xblocks=16)
    f1.aperm = True
    f1.setup_w()
    g("s_waitcnt lgkmcnt(0)")
    tag_issue(g)
    ln_loads(g)
    early(g, o)
    g("s_cmp_eq_u32 s54, 0")
    g(f"s_cselect_b32 s96, s{PHR}, s{PHI}\ns_cselect_b32 s97, s{PHR+1}, s{PHI+1}\ns_cselect_b32 s98, s{PSR}, s{PSI}\ns_cselect_b32 s99, s{PSR+1}, s{PSI+1}")
    g(f"s_lshl_b32 s46, s55, 8\ns_sub_u32 s47, {512*2048 + 4096}, s46")
    g.srd(12, 96, "s47", -4096, "s46")

    def warm_f():
        g(f"s_lshl_b32 s61, s55, 2\ns_add_u32 s61, s61, s42\ns_lshl_b32 s61, s61, 6\ns_add_u32 s62, s61, {128*8}\ns_add_u32 s61, s61, 14336")
        if o.get('warm1', 0):
            warm1()
        warm_lines(g, 96, 512 * 2048, "s62", 3, 2048, 3, 1024)
        if o.get("nCf", 0):
            warm_lines(g, 98, 1024 * 4096, "s61", 4, 4096, o.get("nCf", 0), 1024)
    wl = sum((f1.dma_w(slot) for slot in range(4)), [])
    f1.flat(wl[:n0])
    ln_body(g, o, n_early(o) + min(n0, 8), "f", wl[n0:], warm_f if o.get("warmf", 1) else None)
    late = []
    g("s_lshl_b32 s63, s42, 1\ns_add_u32 s63, s63, s37\ns_and_b32 s63, s63, 3")
    f1.setup_r("s63")
    g("v_lshlrev_b32 v24, 7, v1\nv_add_u32 v25, 0x2000, v24\nv_add_u32 v26, 0x4000, v24\nv_add_u32 v27, 0x6000, v24")
    publish(g, 1, True, len(late))
    stamp(g, o, 3)
    poll(g, [(24, 1), (25, 1), (26, 1), (27, 1)])
    stamp(g, o, 4)
    g(f"s_mul_i32 s46, s54, {XOO - XEE}\ns_lshl_b32 s47, s42, 18\ns_add_u32 s46, s46, s47")
    g.srd(8, PWS, 0x40000, XEE, "s46")
    g.srd(16, PWS, 1024, XEEX)
    g("v_lshlrev_b32 v24, 4, v1\nbuffer_load_dwordx4 v[40:43], v24, s[16:19], 0 offen sc1")

    def t2():
        g(f"v_lshlrev_b32 v24, 8, v1\nv_add_u32 v24, {f1.xbase}, v24\ns_waitcnt vmcnt({4 * f1.pA})\nds_write_b128 v24, v[40:43]")
    f1.start(0, t2)
    f1.loop(2, "L_f1")
    g("s_lshl_b32 s62, s42, 1\ns_add_u32 s62, s62, s37")
    f2 = Core(g, MF=4, nh=2, SUBS=1, act_first=True, wpitch=S * 2, xblocks=32, wsrd=16, vW=24, sW=(59, 60))
    f2.wpol = o.get('f2pol', '')
    f2.setup_w()
    f2.rot2 = True
    g("s_lshl_b32 s59, s42, 20")
    g(f"s_lshl_b32 s46, s42, 9\ns_sub_u32 s47, {1024*4096 + 4096}, s46")
    g.srd(16, 98, "s47", -4096, "s46")
    g("s_sub_u32 s47, s47, 256")
    g.srd(20, 98, "s47", -4096 + 256, "s46")
    g("s_cmp_eq_u32 s54, 0\ns_cselect_b32 s47, 0x10000, 0")
    g.srd(24, PWS, "s47", REC)
    T = f1.vtop
    g("v_lshrrev_b32 v28, 4, v1\nv_lshlrev_b32 v28, 7, v28")
    g("s_lshl_b32 s50, s42, 13\ns_lshl_b32 s51, s37, 12\ns_add_u32 s50, s50, s51\ns_mov_b32 s51, 0x8000")
    lc1 = [[f"buffer_load_dwordx4 v[{T+4*i}:{T+4*i+3}], v28, s[24:27], s50 offen offset:{i*512} sc1"] for i in range(8)]
    lc1.append([f"buffer_load_dword v{T+32}, v28, s[24:27], s51 offen sc1"])
    f1.last([f2.dma_w(0) + lc1, f2.dma_w(1), f2.dma_w(2), f2.dma_w(3)])
    stamp(g, o, 5)
    g(f"s_waitcnt vmcnt({3 * f2.pW})")
    g("v_and_b32 v3, 1, v1\nv_lshlrev_b32 v3, 31, v3\nv_or_b32 v3, 1.0, v3")
    g(f"s_mul_i32 s46, s54, {BOT - AET}\ns_lshl_b32 s47, s55, 18\ns_add_u32 s46, s46, s47")
    g.srd(8, PWS, 0x40000, AET, "s46")
    g("s_lshl_b32 s50, s42, 16\ns_lshl_b32 s51, s37, 15\ns_add_u32 s50, s50, s51\ns_lshl_b32 s51, s38, 12\ns_add_u32 s50, s50, s51")
    g("v_lshlrev_b32 v2, 4, v1\ns_nop 4")
    k = 0
    for ip in range(4):
        for j in range(4):
            o4 = 4 + 4 * (k & 1); k += 1
            for ii in range(2):
                i = 2 * ip + ii
                r = f1.acc[j, i][1]
                for x in range(4):
                    g(f"v_fmac_f32 v{r+x}, v{T+4*i+x}, v3")
                g(f"v_cvt_pk_bf16_f32 v{o4+2*ii}, v{r}, v{r+1}\nv_cvt_pk_bf16_f32 v{o4+2*ii+1}, v{r+2}, v{r+3}")
            g(f"buffer_store_dwordx4 v[{o4}:{o4+3}], v2, s[8:11], s50 offen offset:{j*1024} sc1")
        g("s_add_u32 s50, s50, 0x2000")
    g("v_and_b32 v2, 15, v1\nv_lshlrev_b32 v2, 2, v2")
    g("s_lshl_b32 s50, s62, 11\ns_lshl_b32 s51, s55, 9\ns_add_u32 s50, s50, s51")
    g(f"s_lshl_b32 s52, s38, 8\ns_add_u32 s50, s50, s52\ns_add_u32 s50, s50, {RP - REC}")
    U = T + 36
    for j in range(4):
        r0 = f1.acc[j, 0][1]
        g(f"v_pk_add_f32 v[{U}:{U+1}], v[{r0}:{r0+1}], v[{r0+2}:{r0+3}]")
        for i in range(1, 8):
            r = f1.acc[j, i][1]
            g(f"v_pk_add_f32 v[{U}:{U+1}], v[{U}:{U+1}], v[{r}:{r+1}]\nv_pk_add_f32 v[{U}:{U+1}], v[{U}:{U+1}], v[{r+2}:{r+3}]")
        g(f"v_sub_f32 v{U+4+j}, v{U}, v{U+1}")
        g(f"v_mov_b32 v{U+2}, v{U+4+j}\ns_nop 1\nv_permlane32_swap_b32 v{U+4+j}, v{U+2}\ns_nop 1\nv_add_f32 v{U+4+j}, v{U+4+j}, v{U+2}")
        g(f"v_mov_b32 v{U+2}, v{U+4+j}\ns_nop 1\nv_permlane16_swap_b32 v{U+4+j}, v{U+2}\ns_nop 1\nv_add_f32 v{U+4+j}, v{U+4+j}, v{U+2}")
        g(f"buffer_store_dword v{U+4+j}, v2, s[24:27], s50 offen offset:{j*64} sc1")
    g("s_cmp_ge_u32 s62, 4\ns_cbranch_scc1 L_f1_noc2")
    g(f"v_fmac_f32 v{f1.accx}, v{T+32}, v3")
    g(f"s_add_u32 s50, s51, s52\ns_lshl_b32 s52, s62, 6\ns_add_u32 s50, s50, s52\ns_add_u32 s50, s50, {C2 - REC}")
    g(f"s_mov_b64 exec, 0xffff\nbuffer_store_dword v{f1.accx}, v2, s[24:27], s50 offen sc1\ns_mov_b64 exec, -1")
    g.label("L_f1_noc2")
    g("s_lshl_b32 s62, s55, 1\ns_add_u32 s62, s62, s37")
    f2.setup_r("s62")
    g("s_mov_b32 s101, 0x80000")
    g(f"s_lshl_b32 s46, s3, 13\nv_lshl_add_u32 v28, v1, 7, s46\nbuffer_load_dwordx4 v[{T}:{T+3}], v28, s[24:27], 0 offen offset:16 sc1")
    g(f"s_lshl_b32 s{f2.sAoff}, s42, 16\ns_lshl_b32 s47, s42, 13\nv_add_u32 v{f2.vX}, s47, v{f2.vX}")
    publish(g, 2)
    stamp(g, o, 6)
    stamp(g, o, 7)

    def x2():
        g("v_lshrrev_b32 v28, 3, v1\nv_lshlrev_b32 v28, 10, v28\nv_and_b32 v29, 3, v1\nv_lshl_add_u32 v28, v29, 8, v28")
        g(f"v_bfe_u32 v29, v1, 2, 1\nv_lshl_add_u32 v28, v29, 3, v28\ns_add_u32 s46, s46, {f2.xbase}\nv_add_u32 v28, s46, v28")
        g(f"v_cvt_pk_bf16_f32 v{T}, v{T}, v{T+1}\nv_cvt_pk_bf16_f32 v{T+1}, v{T+2}, v{T+3}\nds_write_b64 v28, v[{T}:{T+1}]")
        g("s_and_b32 s46, s43, 0xfc\nv_and_b32 v28, 3, v1\nv_add_u32 v28, s46, v28\nv_lshlrev_b32 v28, 7, v28\nv_and_b32 v29, 4, v1\nv_add_u32 v28, v28, v29")
        g(f"s_mov_b32 s63, 0x7fff\nv_mov_b32 v29, {f2.xbase}")
    f2.start(0, x2)

    def chk2():
        g(f"s_and_b32 s{f2.sAoff}, s{f2.sAoff}, 0x3ffff\ns_and_b32 s{f2.sWoff}, s{f2.sWoff}, 0x3fffff\ns_lshr_b32 s46, s{f2.sAoff}, 16")
        spin(g, 28, 2, True, lane="s46")
    f2.loop(6, "L_f2", chk=chk2)
    T = f2.vtop
    RV, AV, B, EA = T + 20, T + 32, T + 48, T + 80
    c2 = k2_ids(g, o)
    g("v_lshrrev_b32 v28, 4, v1\nv_lshlrev_b32 v28, 4, v28")
    g(f"s_lshl_b32 s50, s55, 9\ns_lshl_b32 s51, s37, 8\ns_add_u32 s51, s50, s51\ns_add_u32 s51, s51, {C2 - REC}\ns_mov_b32 s52, {0x8000 + 16}")
    lc2 = [[f"buffer_load_dwordx4 v[{T+4*i}:{T+4*i+3}], v28, s[24:27], s51 offen offset:{i*64} sc1"] for i in range(4)]
    lc2.append([f"buffer_load_dword v{T+16}, v28, s[24:27], s52 offen sc1"])
    g(f"v_and_b32 v{EA+9}, 127, v0\nv_lshlrev_b32 v{EA+9}, 2, v{EA+9}\nv_add_u32 v{EA+9}, s50, v{EA+9}\nv_lshlrev_b32 v{EA+10}, 7, v1")
    g(f"s_lshr_b32 s4, s3, 1\ns_or_b32 s4, s4, s42\ns_cmp_eq_u32 s4, 0\ns_cselect_b32 s4, 0, 0x80000000\nv_or_b32 v{EA+8}, s4, v{EA+9}")
    g(f"s_xor_b32 s4, s3, 2\ns_or_b32 s4, s4, s42\ns_or_b32 s4, s4, s55\ns_cmp_eq_u32 s4, 0\ns_cselect_b32 s4, 0, 0x80000000\nv_or_b32 v{EA+10}, s4, v{EA+10}")
    for k in range(4):
        g(f"s_mov_b32 s{44+k}, {RP - REC + 4096 * k}")
    g(f"s_mov_b32 s48, {C2 - REC}\ns_mov_b32 s49, 0x2000\ns_mov_b32 s53, 0x6000")
    lr = [[f"buffer_load_dword v{RV+k}, v{EA+8}, s[24:27], s{44+(k>>1)} offen offset:{(k&1)*2048} sc1"] for k in range(8)]
    lr.append([f"buffer_load_dword v{RV+8}, v{EA+8}, s[24:27], s48 offen sc1"])
    g("s_mov_b32 s61, 0x4000")
    lr += [[f"buffer_load_dwordx4 v[{AV+4*k}:{AV+4*k+3}], v{EA+10}, s[24:27], {('0', 's49', 's61', 's53')[k]} offen offset:16 sc1"] for k in range(4)]
    g(f"v_and_b32 v{EA+6}, 1, v1\nv_lshlrev_b32 v{EA+6}, 31, v{EA+6}\nv_or_b32 v{EA+6}, 1.0, v{EA+6}")
    g(f"s_mul_i32 s4, s54, {QQ - PP}")
    g.srd(8, PWS, 1025 * PQ_PITCH, PP, "s4")
    g(f"s_lshl_b32 s4, s3, 13\ns_add_u32 s4, s4, {LDS_AUX}")
    g("v_and_b32 v18, 15, v1\nv_and_b32 v19, 7, v1\nv_lshrrev_b32 v20, 5, v1\nv_bfe_u32 v21, v1, 4, 1")
    g(f"v_mul_u32_u24 v{EA+7}, {PQ_PITCH}, v18\nv_lshlrev_b32 v18, 7, v18\nv_lshl_add_u32 v18, v21, 3, v18\nv_add_u32 v18, s4, v18")
    for i in range(4):
        g(f"v_add_u32 v21, {2*i}, v20\nv_xor_b32 v21, v21, v19\nv_lshl_add_u32 v{EA+i}, v21, 4, v18")
    g(f"v_lshrrev_b32 v20, 3, v1\nv_xor_b32 v21, v20, v19\nv_lshlrev_b32 v18, 7, v20\nv_lshl_add_u32 v18, v21, 4, v18\nv_add_u32 v{EA+4}, s4, v18")
    g(f"v_mul_u32_u24 v{EA+5}, {PQ_PITCH}, v20\nv_lshl_add_u32 v{EA+5}, v19, 4, v{EA+5}")
    f2.last([lc2 + lr, [], [], []])
    stamp(g, o, 8)
    g(f"s_lshl_b32 s50, s42, 8\ns_lshl_b32 s51, s38, 6\ns_add_u32 s50, s50, s51\ns_mul_i32 s52, s50, {PQ_PITCH}")
    g("s_lshl_b32 s50, s55, 8\ns_lshl_b32 s51, s37, 7\ns_add_u32 s50, s50, s51\ns_add_u32 s50, s50, s52")
    g("s_waitcnt vmcnt(0)")
    for h in range(2):
        for jj in range(4):
            for i in range(4):
                r = f2.acc[4 * h + jj, i][1]
                for x in range(4):
                    g(f"v_fmac_f32 v{r+x}, v{T+4*i+x}, v{EA+6}")
                g(f"v_cvt_pk_bf16_f32 v{r}, v{r}, v{r+1}\nv_cvt_pk_bf16_f32 v{r+1}, v{r+2}, v{r+3}")
                g(f"ds_write_b64 v{EA+i}, v[{r}:{r+1}] offset:{jj*2048}")
        g("s_waitcnt lgkmcnt(0)")
        for n in range(8):
            g(f"ds_read_b128 v[{B+4*n}:{B+4*n+3}], v{EA+4} offset:{n*1024}")
        for n in range(8):
            g(f"s_add_u32 s51, s50, {(h*128 + n*8) * PQ_PITCH}\ns_waitcnt lgkmcnt({7-n})")
            g(f"buffer_store_dwordx4 v[{B+4*n}:{B+4*n+3}], v{EA+5}, s[8:11], s51 offen sc1")
    g(f"v_fmac_f32 v{f2.accx}, v{T+16}, v{EA+6}\ns_cmp_eq_u32 s54, 0\ns_cselect_b32 s46, -1, 0")
    g(f"v_cvt_pk_bf16_f32 v16, v{f2.accx}, v{f2.accx}\nv_and_b32 v16, s46, v16")
    g(f"s_lshr_b32 s46, s62, 2\ns_lshl_b32 s46, s46, 7\ns_and_b32 s47, s62, 3\ns_lshl_b32 s47, s47, 4\ns_add_u32 s46, s46, s47")
    g(f"s_mul_i32 s46, s46, {PQ_PITCH}\ns_add_u32 s46, s46, s52")
    g("v_and_b32 v16, 0xffff, v16\nv_lshrrev_b32 v17, 3, v1\nv_lshlrev_b32 v17, 2, v17\nv_add_u32 v18, 32, v17\nv_and_b32 v19, 7, v1\nv_cmp_eq_u32 vcc, 0, v19")
    g("ds_bpermute_b32 v4, v17, v16\nds_bpermute_b32 v8, v18, v16")
    g("v_mov_b32 v5, 0\nv_mov_b32 v6, 0\nv_mov_b32 v7, 0\nv_mov_b32 v9, 0\nv_mov_b32 v10, 0\nv_mov_b32 v11, 0\ns_waitcnt lgkmcnt(0)")
    g(f"v_cndmask_b32 v4, 0, v4, vcc\nv_cndmask_b32 v8, 0, v8, vcc\ns_add_u32 s47, s46, {8 * PQ_PITCH}")
    g(f"buffer_store_dwordx4 v[4:7], v{EA+5}, s[8:11], s46 offen offset:1024 sc1\nbuffer_store_dwordx4 v[8:11], v{EA+5}, s[8:11], s47 offen offset:1024 sc1")
    g("s_cmp_lg_u32 s42, 0\ns_cbranch_scc1 L_f2_done\ns_cmp_ge_u32 s3, 2\ns_cbranch_scc1 L_f2_corner")
    for k in range(8):
        g(f"v_add_f32 v{RV+8}, v{RV+8}, v{RV+k}")
    g(f"v_cvt_pk_bf16_f32 v12, v{RV+8}, v{RV+8}\nv_lshrrev_b32 v2, 1, v{EA+9}\ns_mov_b32 s51, {1024 * PQ_PITCH}")
    g("buffer_store_short v12, v2, s[8:11], s51 offen sc1\ns_branch L_f2_done")
    g.label("L_f2_corner")
    g("s_cmp_lg_u32 s3, 2\ns_cbranch_scc1 L_f2_done\ns_cmp_lg_u32 s55, 0\ns_cbranch_scc1 L_f2_done")
    for k in range(2, 16, 2):
        g(f"v_pk_add_f32 v[{AV}:{AV+1}], v[{AV}:{AV+1}], v[{AV+k}:{AV+k+1}]")
    g(f"v_sub_f32 v4, v{AV}, v{AV+1}")
    wave_sum(g, [4])
    g(f"v_readlane_b32 s50, v4, 63\ns_mov_b32 s51, {1024 * PQ_PITCH + 1024}\ns_nop 0\nv_add_f32 v4, s50, v{T+16}\nv_cvt_pk_bf16_f32 v12, v4, v4\nv_lshlrev_b32 v2, 2, v1")
    g("s_mov_b64 exec, 0xffffffff\nbuffer_store_dword v12, v2, s[8:11], s51 offen sc1\ns_mov_b64 exec, -1")
    g.label("L_f2_done")
    stamp(g, o, 16)
    k2_setup(g, o, c2)
    c2.flat(k2_tail_setup(g, o))
    for (kind, r) in c2.acc.values():
        for x in range(4):
            g(f"v_mov_b32 v{r+x}, 0")
    publish(g, 3)
    stamp(g, o, 9)
    tile_pick(g, 4)
    g("s_barrier")
    tile_get(g)
    stamp(g, o, 10)
    stamp(g, o, 17)
    c2.flat(c2.restart())
    stamp(g, o, 18)
    g("s_mov_b32 s46, 6")

    g.label("L_k2")
    g("v_mov_b32 v30, 0")
    tile_pick(g)
    g(f"s_waitcnt vmcnt({3 * c2.pW + 2 * c2.pA})\ns_barrier\nds_read_b32 v17, v16")
    c2.flat(c2.reads(0, 0))

    def pick_next():
        lab = g.newlabel("pn")
        g(f"s_cmp_eq_u32 s97, 0\ns_cbranch_scc1 {lab}")
        tile_pick(g)
        g.label(lab)

    def head0():
        lab = g.newlabel("h0")
        g(f"v_readfirstlane_b32 s99, v17\ns_cmp_lg_u32 s{c2.sCnt}, 1\ns_cbranch_scc1 {lab}\nbuffer_load_dword v28, v22, s[28:31], 0 offen sc1")
        g.label(lab)
    c2.loop("s46", "L_k2_loop", chk={0: head0, 3: pick_next})
    stamp(g, o, 13)
    blocks = []
    for i in (1, 2, 3, 0):
        for k in range(4):
            work = []
            if i:
                d = 192 + 4 * (len(blocks) & 3)
                for jj in range(2):
                    r = c2.acc[2 * k + jj, i][1]
                    work += [f"v_cvt_pk_bf16_f32 v{d+2*jj}, v{r}, v{r+1}", f"v_cvt_pk_bf16_f32 v{d+2*jj+1}, v{r+2}, v{r+3}"]
                work.append(f"buffer_store_dwordx4 v[{d}:{d+3}], v29, s[24:27], s{49+i} offen offset:{k*1024} sc1")
            blocks.append(([(2 * k, i), (2 * k + 1, i)], work))
    rec = Rec(g)
    tile_dma(rec, 12, PS, 4096, " sc1")
    tile_dma(rec, 16, PS, 8192, " sc1")
    pq = [[x] for grp in rec.items for x in grp if x != "s_nop 0"]
    c2.last([pq[:5], pq[5:], [], []], pres=[lambda: spin(g, 22, 3, True, vf=28), None, None, None], final=(blocks, 3, 1) if o.get('two2', 1) else (blocks, 4))
    stamp(g, o, 11)
    g("s_waitcnt vmcnt(12)")
    sent = 0
    Y, XF, PT, RD = 64, 96, 208, 128
    for j in range(8):
        g(f"ds_read_b64 v[{RD+4*j}:{RD+4*j+1}], v{AP+j} offset:4096\nds_read_b64 v[{RD+4*j+2}:{RD+4*j+3}], v{AP+j} offset:8192")
    g.srd(20, POUT, S * D * 2)
    g("s_mov_b32 s44, 0xbfb8aa3b\ns_mov_b32 s45, 0xbfb8aa3b\ns_mov_b32 s54, 0xffff0000\ns_mov_b32 s46, 1.0\ns_mov_b32 s47, 1.0")
    g("s_mov_b32 s48, 0x3f80\ns_mov_b32 s49, 0x3f800000\ns_add_u32 s4, s100, 7\nv_mov_b32 v28, s4")
    g("s_cmp_ge_u32 s57, 4\ns_cbranch_scc1 L_k2_rev")
    for rev in (0, 1):
        if rev:
            g("s_branch L_k2_y")
            g.label("L_k2_rev")
        for j in range(8):
            g(f"s_waitcnt lgkmcnt({14 - 2*j})")
            for src, dst in ((RD + 4 * j, Y + 4 * j), (RD + 4 * j + 2, 4)):
                for x in range(4):
                    d = dst + (3 - x if rev else x)
                    w = src + (x >> 1)
                    g(f"v_and_b32 v{d}, s54, v{w}" if x & 1 else f"v_lshlrev_b32 v{d}, 16, v{w}")
            y = Y + 4 * j
            g(f"v_pk_fma_f32 v[{y}:{y+1}], v[4:5], s[62:63], v[{y}:{y+1}]\nv_pk_fma_f32 v[{y+2}:{y+3}], v[6:7], s[62:63], v[{y+2}:{y+3}]")
    g.label("L_k2_y")
    for j in range(8):
        g(f"ds_read_b64 v[{RD+2*j}:{RD+2*j+1}], v{AX+j}")
    g("s_waitcnt vmcnt(0)\ns_mov_b64 exec, 3\nbuffer_store_dword v28, v27, s[28:31], 0 offen sc1\ns_mov_b64 exec, -1")
    g("buffer_load_dword v30, v23, s[28:31], 0 offen sc1")
    stamp(g, o, 14)
    for j in range(8):
        g(f"s_waitcnt lgkmcnt({7 - j})")
        g(f"v_lshlrev_b32 v{XF+4*j}, 16, v{RD+2*j}\nv_and_b32 v{XF+4*j+1}, s54, v{RD+2*j}\nv_lshlrev_b32 v{XF+4*j+2}, 16, v{RD+2*j+1}\nv_and_b32 v{XF+4*j+3}, s54, v{RD+2*j+1}")
    g("s_waitcnt vmcnt(0)")
    spin(g, 23, 7, True)
    stamp(g, o, 15)
    for k in range(4):
        for i in range(3):
            g(f"s_add_u32 s4, s53, {i*16384}\nbuffer_load_dwordx4 v[{PT+16*i+4*k}:{PT+16*i+4*k+3}], v29, s[24:27], s4 offen offset:{k*1024} sc1")
    for j in range(8):
        r = c2.acc[j, 0][1]
        if j % 2 == 0 and not sent:
            g(f"s_waitcnt vmcnt({9 - 3 * (j >> 1)})")
        for i in range(3):
            w = PT + 16 * i + 2 * j
            for x in range(4):
                g(f"v_dot2c_f32_bf16 v{r+x}, s{48 + (x & 1)}, v{w + (x >> 1)}")
        g(f"s_nop 1\nv_pk_mul_f32 v[4:5], v[{r}:{r+1}], s[44:45]\nv_pk_mul_f32 v[6:7], v[{r+2}:{r+3}], s[44:45]")
        for x in range(4):
            g(f"v_exp_f32 v{4+x}, v{4+x}")
        g("s_nop 0\nv_pk_add_f32 v[4:5], v[4:5], s[46:47]\nv_pk_add_f32 v[6:7], v[6:7], s[46:47]")
        for x in range(4):
            g(f"v_rcp_f32 v{4+x}, v{4+x}")
        y, xf = Y + 4 * j, XF + 4 * j
        g(f"v_pk_mul_f32 v[{y}:{y+1}], v[{y}:{y+1}], v[{r}:{r+1}]\nv_pk_mul_f32 v[{y+2}:{y+3}], v[{y+2}:{y+3}], v[{r+2}:{r+3}]")
        g(f"v_pk_fma_f32 v[{xf}:{xf+1}], v[4:5], v[{y}:{y+1}], v[{xf}:{xf+1}]\nv_pk_fma_f32 v[{xf+2}:{xf+3}], v[6:7], v[{y+2}:{y+3}], v[{xf+2}:{xf+3}]")
        g(f"v_cvt_pk_bf16_f32 v{xf}, v{xf}, v{xf+1}\nv_cvt_pk_bf16_f32 v{xf+1}, v{xf+2}, v{xf+3}")
        g(f"ds_write_b64 v{AX+j}, v[{xf}:{xf+1}]")
    for n in range(4):
        g(f"ds_read_b128 v[{RD+4*n}:{RD+4*n+3}], v{RB+n}")
    for n in range(4):
        g(f"s_waitcnt lgkmcnt({3-n})\nbuffer_store_dwordx4 v[{RD+4*n}:{RD+4*n+3}], v{GO+n}, s[20:23], s61 offen{o.get('opol', '')}")
    stamp_flush(g, o, 12)
    g.label("L_done")
    g("s_endpgm")
    g.kd(NAME, 256 + 224, 102, 256)


HEADER = open("recurrent_scan__spectral_fnet__glu_gated_bilinear__prompt.s.ref").read().split("\n")


def build(o=None):
    o = dict(o or {})
    global ASC
    ASC = ' sc1' if o.get('asc1', 0) else ''
    g = G()
    main_kernel(g, o)
    if o.get("aslist"):
        launch = f"; @launch kernel={NAME} grid=(256,1,1) block=(256,1,1) lds={LDS_TOTAL}"
    else:
        launch = f"; @launch grid=(256,1,1) block=(256,1,1) lds={LDS_TOTAL}"
    txt = "\n".join(HEADER[:13] + [launch]) + '\n.amdgcn_target "amdgcn-amd-amdhsa--gfx950"\n.text\n'
    txt += "\n".join(g.L) + '\n.section .rodata,"a"\n' + "\n".join(g.kds) + "\n"
    return txt


if __name__ == "__main__":
    out = sys.argv[1] if len(sys.argv) > 1 else "recurrent_scan__spectral_fnet__glu_gated_bilinear__prompt.s"
    o = eval(sys.argv[2]) if len(sys.argv) > 2 else {}
    open(out, "w").write(build(o))
```

```python
import sys

S, D, F = 2048, 1024, 3584
XN   = 0x0000000
H    = 0x0400000
XEE  = 0x1200000
XEEX = 0x1300000
XOO  = 0x1400000
AET  = 0x1500000
BOT  = 0x1600000
PP   = 0x1700000
QQ   = 0x1900000
REC  = 0x1D00000
C2   = 0x1D09000
RP   = 0x1D0A000
FLG  = 0x1E00000
PART = 0x2000000
STAMP = 0x3000000
PQ_PITCH = 1152
NAME = "recurrent_scan__spectral_fnet__glu_gated_bilinear__prompt_kernel"
PX, PSR, PSI, PHR, PHI, PWG, PWU, PWD, POUT, PDBG, PWS = 64, 66, 68, 70, 72, 76, 78, 80, 82, 84, 86
LDS_AUX = 0x20000
LDS_TOTAL = 0x28000
HSTG = 0x14000
VST = 31
ASC = ' sc1'


class G:
    def __init__(s):
        s.L = []
        s.kds = []
        s.uid = 0

    def __call__(s, txt):
        for ln in txt.split("\n"):
            ln = ln.strip()
            if ln:
                s.L.append("  " + ln)

    def label(s, n):
        s.L.append(n + ":")

    def newlabel(s, p="L"):
        s.uid += 1
        return f"{p}_{s.uid}"

    def begin(s, name):
        s.L.append(f".globl {name}\n.p2align 8\n.type {name},@function\n{name}:")

    def kd(s, name, vgpr, sgpr, accum):
        s.kds.append(f""".p2align 6
.amdhsa_kernel {name}
  .amdhsa_next_free_vgpr {vgpr}
  .amdhsa_next_free_sgpr {sgpr}
  .amdhsa_accum_offset {accum}
  .amdhsa_group_segment_fixed_size 0
  .amdhsa_kernarg_size 96
  .amdhsa_user_sgpr_count 2
  .amdhsa_user_sgpr_kernarg_segment_ptr 1
  .amdhsa_system_sgpr_workgroup_id_x 1
.end_amdhsa_kernel""")

    def srd(s, d, ptr, nbytes, const=0, soff=None):
        lo, hi = ptr, ptr + 1
        if soff is not None:
            s(f"s_add_u32 s{d}, s{lo}, {soff}\ns_addc_u32 s{d+1}, s{hi}, 0")
            lo, hi = d, d + 1
        if const > 0:
            s(f"s_add_u32 s{d}, s{lo}, {const:#x}\ns_addc_u32 s{d+1}, s{hi}, 0")
        elif const < 0:
            s(f"s_sub_u32 s{d}, s{lo}, {-const:#x}\ns_subb_u32 s{d+1}, s{hi}, 0")
        elif soff is None:
            s(f"s_mov_b32 s{d}, s{lo}\ns_mov_b32 s{d+1}, s{hi}")
        nb = nbytes if isinstance(nbytes, str) else f"{nbytes:#x}"
        s(f"s_mov_b32 s{d+2}, {nb}\ns_mov_b32 s{d+3}, 0x20000")


def stamp(g, o, idx):
    if o.get("stamp"):
        g(f"s_memtime s[88:89]\ns_waitcnt lgkmcnt(0)\nv_writelane_b32 v{VST}, s88, {idx}")
        if idx in (4, 5, 18, 13):
            g(f"s_memrealtime s[88:89]\ns_waitcnt lgkmcnt(0)\nv_writelane_b32 v{VST}, s88, {20 + (4, 5, 18, 13).index(idx)}")
        if idx == 0:
            g(f"s_memrealtime s[88:89]\ns_waitcnt lgkmcnt(0)\nv_writelane_b32 v{VST}, s88, 30")


def stamp_flush(g, o, idx):
    if not o.get("stamp"):
        return
    lab = g.newlabel("st")
    g("s_waitcnt vmcnt(0)")
    stamp(g, o, idx)
    g(f"s_memrealtime s[88:89]\ns_waitcnt lgkmcnt(0)\nv_writelane_b32 v{VST}, s88, 31")
    g(f"s_cmp_lg_u32 s3, 0\ns_cbranch_scc1 {lab}")
    g.srd(92, PWS, 0x100000, STAMP)
    g("v_lshlrev_b32 v0, 2, v1\ns_lshl_b32 s90, s2, 7\ns_mov_b64 exec, 0xffffffff")
    g(f"buffer_store_dword v{VST}, v0, s[92:95], s90 offen")
    g.label(lab)


def wave_sum(g, regs):
    steps = ["quad_perm:[1,0,3,2] row_mask:0xf", "quad_perm:[2,3,0,1] row_mask:0xf", "row_half_mirror row_mask:0xf",
             "row_mirror row_mask:0xf", "row_bcast:15 row_mask:0xa", "row_bcast:31 row_mask:0xc"]
    for st in steps:
        g("s_nop 1" if len(regs) == 1 else "s_nop 0")
        for r in regs:
            g(f"v_add_f32_dpp v{r}, v{r}, v{r} {st} bank_mask:0xf")
    g("s_nop 1")


def tag_issue(g):
    lab = g.newlabel("tg")
    g.srd(28, PDBG, 256)
    g(f"v_mov_b32 v18, 0\ns_or_b32 s4, s2, s3\ns_cmp_lg_u32 s4, 0\ns_cbranch_scc1 {lab}")
    g("s_memrealtime s[4:5]\ns_waitcnt lgkmcnt(0)\ns_lshl_b32 s4, s4, 3\ns_or_b32 s4, s4, 0x80000000\nv_mov_b32 v19, s4")
    g("buffer_store_dword v19, v18, s[28:31], 0 offen sc1")
    g.label(lab)


def tag_load(g):
    g("buffer_load_dword v30, v18, s[28:31], 0 offen sc1")


def tag_get(g):
    l0, l1 = g.newlabel("tg"), g.newlabel("tgd")
    g("s_mov_b32 s5, 0x80000\nv_mov_b32 v18, 0")
    g.label(l0)
    g(f"v_readfirstlane_b32 s100, v30\ns_sub_u32 s5, s5, 1\ns_cbranch_scc1 {l1}\ns_cmp_lg_u32 s100, 0\ns_cbranch_scc1 {l1}")
    g(f"s_sleep 1\nbuffer_load_dword v30, v18, s[28:31], 0 offen sc1\ns_waitcnt vmcnt(0)\ns_branch {l0}")
    g.label(l1)
    g.srd(28, PWS, 0x8000, FLG)


def publish(g, val, first=False, younger=0, wave=0):
    lab = g.newlabel("pub")
    g(f"s_waitcnt vmcnt({younger})")
    if first:
        tag_get(g)
    g("s_barrier")
    g(f"s_cmp_lg_u32 s3, {wave}\ns_cbranch_scc1 {lab}")
    g(f"s_lshl_b32 s4, s43, 7\ns_add_u32 s5, s100, {val}\nv_lshl_add_u32 v18, v1, 2, s4\nv_mov_b32 v19, s5\ns_mov_b64 exec, 0xffffffff")
    g("buffer_store_dword v19, v18, s[28:31], 0 offen sc1\ns_mov_b64 exec, -1")
    g.label(lab)


def flag_bad(g, vals):
    for k, (vf, thr) in enumerate(vals):
        g(f"v_subrev_u32 v{vf}, s100, v{vf}\nv_subrev_u32 v{vf}, {thr}, v{vf}")
        if k:
            g(f"v_max_u32 v{vals[0][0]}, v{vals[0][0]}, v{vf}")
    g(f"v_cmp_lt_u32 vcc, 7, v{vals[0][0]}")


def poll(g, addrs, sleep=1, wave=0):
    l0, l1 = g.newlabel("poll"), g.newlabel("polld")
    g(f"s_cmp_lg_u32 s3, {wave}\ns_cbranch_scc1 {l1}\ns_mov_b32 s5, 0x80000")
    g.label(l0)
    for k, (va, thr) in enumerate(addrs):
        g(f"buffer_load_dwordx2 v[{40+2*k}:{41+2*k}], v{va}, s[28:31], 0 offen sc1")
    g("s_waitcnt vmcnt(0)")
    flag_bad(g, [(40 + k, addrs[k >> 1][1]) for k in range(2 * len(addrs))])
    g(f"s_sub_u32 s5, s5, 1\ns_cbranch_scc1 {l1}")
    g(f"s_cbranch_vccz {l1}\ns_sleep {sleep}\ns_branch {l0}")
    g.label(l1)
    g("s_barrier")


XP, EP = 2064, 1040
LN_EB = LDS_AUX + 8 * XP
LN_OB = LN_EB + 5 * EP
LN_RB = LN_OB + 4 * EP


def ln_loads(g):
    g("v_lshlrev_b32 v32, 4, v1\nv_sub_u32 v33, 0x7f0, v32")
    g("s_lshl_b32 s44, s43, 2\ns_add_u32 s44, s44, s3")
    g("s_sub_u32 s45, 2048, s44\ns_cmp_eq_u32 s44, 0\ns_cselect_b32 s45, 1024, s45")
    g("s_lshl_b32 s46, s44, 11\ns_lshl_b32 s47, s45, 11")
    g("s_waitcnt lgkmcnt(0)")
    g.srd(20, PX, S * D * 2)
    g("buffer_load_dwordx4 v[40:43], v32, s[20:23], s46 offen\nbuffer_load_dwordx4 v[44:47], v33, s[20:23], s46 offen")
    g("buffer_load_dwordx4 v[48:51], v32, s[20:23], s47 offen\nbuffer_load_dwordx4 v[52:55], v33, s[20:23], s47 offen")


def ln_body(g0, o, younger, pfx, fill, warm):
    fill = list(fill)

    class Spr:
        n = 0
        on = False

        def __call__(s, txt):
            for ln in txt.split("\n"):
                g0(ln)
                if s.on and ln.strip().startswith("v_") and "dpp" not in ln and "readlane" not in ln and "v_cmp" not in ln:
                    s.n += 1
                    if s.n % 10 == 0 and fill:
                        for ins in fill.pop(0):
                            g0("s_nop 0" if ins == "@" else ins)

        def __getattr__(s, k):
            return getattr(g0, k)
    g = Spr()
    XA, XB = 56, 72
    g.srd(24, PWS, 0x2000000)
    g("s_mov_b32 s48, 0xffff0000")
    g(f"s_waitcnt vmcnt({younger + 2})")
    stamp(g, o, 1)
    for i in range(8):
        g(f"v_lshlrev_b32 v{XA+2*i}, 16, v{40+i}\nv_and_b32 v{XA+2*i+1}, s48, v{40+i}")
    g(f"s_waitcnt vmcnt({younger})")
    if warm:
        g(f"s_cmp_lg_u32 s3, 3\ns_cbranch_scc1 {pfx}_nowarm")
        warm()
        g.label(pfx + "_nowarm")
    g.on = True
    for i in range(8):
        g(f"v_lshlrev_b32 v{XB+2*i}, 16, v{48+i}\nv_and_b32 v{XB+2*i+1}, s48, v{48+i}")
    MA, MB, VA, VB = 88, 92, 96, 100
    for X, T in ((XA, MA), (XB, MB)):
        g(f"v_pk_add_f32 v[{T}:{T+1}], v[{X}:{X+1}], v[{X+2}:{X+3}]")
        g(f"v_pk_add_f32 v[{T+2}:{T+3}], v[{X+4}:{X+5}], v[{X+6}:{X+7}]")
        for i in (8, 12):
            g(f"v_pk_add_f32 v[{T}:{T+1}], v[{T}:{T+1}], v[{X+i}:{X+i+1}]")
            g(f"v_pk_add_f32 v[{T+2}:{T+3}], v[{T+2}:{T+3}], v[{X+i+2}:{X+i+3}]")
        g(f"v_pk_add_f32 v[{T}:{T+1}], v[{T}:{T+1}], v[{T+2}:{T+3}]")
        g(f"v_add_f32 v{T}, v{T}, v{T+1}")
    wave_sum(g, [MA, MB])
    g(f"v_readlane_b32 s50, v{MA}, 63\nv_readlane_b32 s51, v{MB}, 63\nv_mov_b32 v34, 0x3a800000\ns_nop 0")
    g(f"v_mul_f32 v{MA}, s50, v34\nv_mul_f32 v{MB}, s51, v34\nv_mov_b32 v{MA+1}, v{MA}\nv_mov_b32 v{MB+1}, v{MB}")
    for T in (VA, VB):
        g(f"v_mov_b32 v{T}, 0\nv_mov_b32 v{T+1}, 0")
    for i in range(0, 16, 2):
        for X, M, T in ((XA, MA, VA), (XB, MB, VB)):
            g(f"v_pk_add_f32 v[{T+2}:{T+3}], v[{X+i}:{X+i+1}], v[{M}:{M+1}] neg_lo:[0,1] neg_hi:[0,1]")
        for X, M, T in ((XA, MA, VA), (XB, MB, VB)):
            g(f"v_pk_fma_f32 v[{T}:{T+1}], v[{T+2}:{T+3}], v[{T+2}:{T+3}], v[{T}:{T+1}]")
    g(f"v_add_f32 v{VA}, v{VA}, v{VA+1}\nv_add_f32 v{VB}, v{VB}, v{VB+1}")
    wave_sum(g, [VA, VB])
    g(f"v_readlane_b32 s50, v{VA}, 63\nv_readlane_b32 s51, v{VB}, 63")
    g(f"v_cvt_pk_bf16_f32 v{MA+2}, v{MA}, v{MB}\ns_nop 0")
    g(f"v_mul_f32 v{VA}, s50, v34\nv_mul_f32 v{VB}, s51, v34")
    g(f"v_lshlrev_b32 v{MA}, 16, v{MA+2}\nv_and_b32 v{MB}, s48, v{MA+2}")
    g(f"v_cvt_pk_bf16_f32 v{VA+1}, v{VA}, v{VB}")
    g(f"v_mov_b32 v{MA+1}, v{MA}\nv_mov_b32 v{MB+1}, v{MB}")
    g(f"v_lshlrev_b32 v{VA}, 16, v{VA+1}\nv_and_b32 v{VB}, s48, v{VA+1}")
    g(f"v_add_f32 v{VA}, 0x3727c5ac, v{VA}\nv_add_f32 v{VB}, 0x3727c5ac, v{VB}")
    g(f"v_cvt_pk_bf16_f32 v{VA+1}, v{VA}, v{VB}")
    g(f"v_lshlrev_b32 v{VA}, 16, v{VA+1}\nv_and_b32 v{VB}, s48, v{VA+1}")
    g(f"v_sqrt_f32 v{VA}, v{VA}\nv_sqrt_f32 v{VB}, v{VB}")
    for X, M, PKD in ((XA, MA, 40), (XB, MB, 48)):
        for i in range(8):
            a = X + 2 * i
            g(f"v_pk_add_f32 v[{a}:{a+1}], v[{a}:{a+1}], v[{M}:{M+1}] neg_lo:[0,1] neg_hi:[0,1]")
    g(f"v_cvt_pk_bf16_f32 v{VA+1}, v{VA}, v{VB}")
    g(f"v_lshlrev_b32 v{VA}, 16, v{VA+1}\nv_and_b32 v{VB}, s48, v{VA+1}")
    g(f"v_rcp_f32 v{VA}, v{VA}\nv_rcp_f32 v{VB}, v{VB}")
    for X, PKD in ((XA, 40), (XB, 48)):
        for i in range(8):
            g(f"v_cvt_pk_bf16_f32 v{PKD+i}, v{X+2*i}, v{X+2*i+1}")
    g(f"v_mov_b32 v{VA+1}, v{VA}\nv_mov_b32 v{VB+1}, v{VB}")
    for X, R, PKD in ((XA, VA, 40), (XB, VB, 48)):
        for i in range(8):
            a = X + 2 * i
            g(f"v_lshlrev_b32 v{a}, 16, v{PKD+i}\nv_and_b32 v{a+1}, s48, v{PKD+i}")
        for i in range(8):
            a = X + 2 * i
            g(f"v_pk_mul_f32 v[{a}:{a+1}], v[{a}:{a+1}], v[{R}:{R+1}]")
        for i in range(8):
            g(f"v_cvt_pk_bf16_f32 v{PKD+i}, v{X+2*i}, v{X+2*i+1}")
    g.on = False
    assert not fill
    g(f"s_mul_i32 s49, s3, {XP}\ns_add_u32 s49, s49, {LDS_AUX}")
    g("v_add_u32 v35, s49, v32\nv_add_u32 v36, s49, v33")
    g("ds_write_b128 v35, v[40:43]\nds_write_b128 v36, v[44:47]")
    g(f"ds_write_b128 v35, v[48:51] offset:{4*XP}\nds_write_b128 v36, v[52:55] offset:{4*XP}")
    for X, PKD in ((XA, 40), (XB, 48)):
        for i in range(8):
            a = X + 2 * i
            g(f"v_lshlrev_b32 v{a}, 16, v{PKD+i}\nv_and_b32 v{a+1}, s48, v{PKD+i}")
    g(f"s_mul_i32 s49, s3, {EP}\ns_add_u32 s49, s49, {LN_EB}\nv_add_u32 v37, s49, v32")
    E, O, PK, TM = 104, 120, 136, 140

    def dfold(src, sign):
        op = "v_add_f32" if sign > 0 else "v_sub_f32"
        g(f"s_nop 1\nv_mov_b32_dpp v{TM+8}, v{src+8} wave_shr:1 row_mask:0xf bank_mask:0xf bound_ctrl:0")
        for j in range(1, 8):
            g(f"{op} v{TM+j}, v{src+j}, v{src+16-j}")
        g(f"{op} v{TM}, v{src}, v{TM+8}")
        for j in range(4):
            g(f"v_cvt_pk_bf16_f32 v{PK+j}, v{TM+2*j}, v{TM+2*j+1}")

    def even_row(src, lds_off, own):
        dfold(src, +1)
        g(f"ds_write_b128 v37, v[{PK}:{PK+3}] offset:{lds_off}")
        g(f"v_pk_add_f32 v[{TM}:{TM+1}], v[{src}:{src+1}], v[{src+2}:{src+3}]")
        for i in range(4, 16, 2):
            g(f"v_pk_add_f32 v[{TM}:{TM+1}], v[{TM}:{TM+1}], v[{src+i}:{src+i+1}]")
        g(f"v_sub_f32 v{TM}, v{TM}, v{TM+1}")
        wave_sum(g, [TM])
        g("s_mov_b32 exec_lo, 0\ns_mov_b32 exec_hi, 0x80000000")
        if own:
            g(f"s_lshl_b32 s50, s3, 2\ns_add_u32 s50, s50, {LN_RB}\nv_mov_b32 v{TM+2}, s50")
            g(f"ds_write_b32 v{TM+2}, v{src+8}\nds_write_b32 v{TM+2}, v{TM} offset:16")
        else:
            g(f"v_readlane_b32 s51, v{src+8}, 63\nv_readlane_b32 s52, v{TM}, 63\ns_mov_b64 exec, 0xffffffff\ns_mov_b32 s50, {REC + 256*128:#x}")
            g(f"v_mov_b32 v{TM+3}, s52\nv_lshlrev_b32 v{TM+2}, 2, v1\nv_writelane_b32 v{TM+3}, s51, 0")
            g(f"buffer_store_dword v{TM+3}, v{TM+2}, s[24:27], s50 offen sc1")
        g("s_mov_b64 exec, -1")

    lz, lj, ld = pfx + "_pair0", pfx + "_join", pfx + "_lnd"
    g(f"s_cmp_eq_u32 s44, 0\ns_cbranch_scc1 {lz}")
    for i in range(0, 16, 2):
        g(f"v_pk_add_f32 v[{O+i}:{O+i+1}], v[{XA+i}:{XA+i+1}], v[{XB+i}:{XB+i+1}] neg_lo:[0,1] neg_hi:[0,1]")
    for i in range(0, 16, 2):
        g(f"v_pk_add_f32 v[{E+i}:{E+i+1}], v[{XA+i}:{XA+i+1}], v[{XB+i}:{XB+i+1}]")
    dfold(O, -1)
    g(f"ds_write_b128 v37, v[{PK}:{PK+3}] offset:{LN_OB - LN_EB}")
    even_row(E, 0, True)
    g(f"s_branch {lj}")
    g.label(lz)
    even_row(XA, 0, True)
    even_row(XB, 4 * EP, False)
    for j in range(4):
        g(f"v_mov_b32 v{PK+j}, 0")
    g(f"ds_write_b128 v37, v[{PK}:{PK+3}] offset:{LN_OB - LN_EB}")
    g.label(lj)
    g("v_and_b32 v40, 3, v1\nv_lshrrev_b32 v49, 4, v1\nv_bfe_u32 v50, v1, 2, 2")
    g(f"s_mov_b32 s49, {LDS_AUX}\ns_cmp_eq_u32 s3, 1\ns_cselect_b32 s49, {LDS_AUX + 4*XP}, s49\ns_cselect_b32 s48, 0x200000, 0")
    g(f"s_lshr_b32 s50, s43, 6\ns_lshl_b32 s51, s50, 19\ns_add_u32 s48, s48, s51\ns_add_u32 s53, s48, 0x40000\ns_lshl_b32 s50, s50, 18")
    g(f"s_add_u32 s46, s50, {XEE:#x}\ns_add_u32 s47, s50, {XOO:#x}\ns_mov_b32 s51, {XP}\ns_mov_b32 s52, 1024\ns_cmp_eq_u32 s3, 2")
    g(f"s_cselect_b32 s49, {LN_EB}, s49\ns_cselect_b32 s51, {EP}, s51\ns_cselect_b32 s52, {LN_OB - LN_EB}, s52\ns_cselect_b32 s48, s46, s48\ns_cselect_b32 s53, s47, s53")
    g("s_and_b32 s50, s43, 63\ns_lshl_b32 s50, s50, 8\nv_and_b32 v46, 15, v1\nv_lshlrev_b32 v46, 4, v46\nv_lshl_add_u32 v46, v49, 14, v46\nv_add_u32 v46, s50, v46")
    g("v_mul_lo_u32 v53, v40, s51\nv_lshl_add_u32 v53, v49, 6, v53\nv_lshl_add_u32 v53, v50, 3, v53\nv_add_u32 v53, s49, v53\nv_add_u32 v54, s52, v53")
    g("v_mov_b32 v18, 0\ns_waitcnt lgkmcnt(0)\ns_barrier")
    stamp(g, o, 2)
    tag_load(g)
    g(f"s_cmp_eq_u32 s3, 3\ns_cbranch_scc1 {ld}")
    for n in range(8):
        g(f"ds_read2_b64 v[{56+4*n}:{59+4*n}], v{53 + (n >> 2)} offset0:{(n&3)*32} offset1:{(n&3)*32+4}")
    for n in range(8):
        sr = 48 if n < 4 else 53
        g(f"s_waitcnt lgkmcnt({7-n})\nbuffer_store_dwordx4 v[{56+4*n}:{59+4*n}], v46, s[24:27], s{sr} offen sc1\ns_add_u32 s{sr}, s{sr}, 0x10000")
    g(f"s_cmp_lg_u32 s3, 2\ns_cbranch_scc1 {ld}")
    g(f"v_lshlrev_b32 v51, 2, v1\nv_add_u32 v52, {LN_RB}, v51\ns_lshl_b32 s52, s43, 7\ns_add_u32 s52, s52, {REC:#x}\ns_mov_b64 exec, 0xffffffff")
    g("ds_read_b32 v90, v52\ns_waitcnt lgkmcnt(0)\nbuffer_store_dword v90, v51, s[24:27], s52 offen sc1\ns_mov_b64 exec, -1")
    g(f"s_cmp_lg_u32 s43, 0\ns_cbranch_scc1 {ld}")
    g("v_lshrrev_b32 v49, 2, v1\nv_and_b32 v50, 3, v1\nv_lshlrev_b32 v51, 4, v1")
    g("v_lshlrev_b32 v52, 6, v49\nv_lshl_add_u32 v52, v50, 3, v52")
    g(f"v_add_u32 v52, {LN_EB + 4*EP}, v52")
    g("ds_read2_b64 v[92:95], v52 offset0:0 offset1:4")
    g(f"s_mov_b32 s52, {XEEX:#x}")
    g("s_waitcnt lgkmcnt(0)\nbuffer_store_dwordx4 v[92:95], v51, s[24:27], s52 offen sc1")
    g.label(ld)


class Core:
    NS = 4

    def __init__(s, g, MF, nh, SUBS, act_first, wpitch, xblocks=0, span=0.85, wsrd=12, vW=13, sW=(33, 35), tch=False, dact=False):
        s.g, s.MF, s.nh, s.SUBS, s.act_first, s.wpitch = g, MF, nh, SUBS, act_first, wpitch
        s.dact = dact
        s.NF = (8 if dact else 4) * nh
        s.nA = MF if dact else MF // 2
        s.gact = (4 if dact else 2) * MF * 1024
        s.actb = 0 if dact else s.gact
        s.subb = s.actb + nh * 8192
        s.slotb = s.subb * SUBS
        s.ringb = s.slotb * s.NS
        s.xb = xblocks
        s.xbase = s.ringb
        assert s.ringb + xblocks * 1024 <= LDS_AUX
        s.pA, s.pW = s.nA * SUBS, 2 * nh * SUBS
        s.tch = tch
        s.wrap = None
        s.sw = []
        s.rot2 = False
        s.aperm = False
        s.wpol = ''
        s.ndma = s.pA + s.pW
        s.span = span
        s.acc = {}
        v, a = 32, 128
        order = [(j, i) for i in range(MF) for j in range(s.NF)] if dact else [(j, i) for j in range(s.NF) for i in range(MF)]
        for j, i in order:
            if True:
                if v + 4 <= 256:
                    s.acc[j, i] = ("v", v); v += 4
                else:
                    s.acc[j, i] = ("a", a); a += 4
        if s.xb:
            s.accx = v; v += 4
        s.vtop = v
        s.nfr = (0 if dact else MF) + s.NF + (2 if s.xb else 0)
        s.fper = s.nfr * 4 * SUBS
        assert 2 * s.fper <= 128
        s.vArd = [2, 3]
        s.vWrd = [[4, 5, 6, 7], [8, 9, 10, 11]]
        s.vAdma = 12
        s.vWdma = [vW + k for k in range(2 * nh)]
        s.vX, s.vXW = 17, (22, 23)
        s.wsrd = wsrd
        s.sAoff, s.sMA, s.sCnt = 32, 34, 36
        s.sWoff, s.sMW = sW

    def accr(s, j, i):
        k, r = s.acc[j, i]
        return f"{k}[{r}:{r+3}]"

    def fr(s, st, u, n):
        if st == 2:
            return (192 if s.dact else 160) + n * 4
        return st * s.fper + u * s.nfr * 4 + n * 4

    def fw(s, st, u, j):
        return s.fr(st, u, (0 if s.dact else s.MF) + j)

    def fa(s, p, u, i):
        if s.dact:
            return 128 + ((p & 3) * s.SUBS + u) * s.MF * 4 + i * 4
        return s.fr(p & 1, u, i)

    def setup_w(s):
        g = s.g
        g(f"s_mul_i32 s{s.sMW}, s3, {s.nh*2048}\ns_add_u32 s{s.sMW}, s{s.sMW}, {s.actb}\ns_mov_b32 s{s.sWoff}, 0")
        g("v_lshrrev_b32 v19, 4, v1\nv_and_b32 v20, 15, v1")
        g(f"s_mov_b32 s40, {s.wpitch}\ns_mul_i32 s39, s3, {8*s.wpitch}")
        for u in range(2):
            g(f"v_add_u32 v21, {4*u}, v19")
            g("v_mul_lo_u32 v18, v21, s40\nv_add_u32 v18, s39, v18")
            g("v_lshlrev_b32 v21, 1, v21\nv_xor_b32 v21, v21, v20\nv_lshl_add_u32 v18, v21, 4, v18")
            for h in range(s.nh):
                g(f"v_add_u32 v{s.vWdma[2*h+u]}, {4096 - (2*h+u)*1024}, v18")

    def setup_r(s, xsel=None):
        g = s.g
        g("v_lshlrev_b32 v18, 4, v1")
        if s.dact:
            assert s.ringb <= 65536 and s.nh == 1
            g(f"s_mul_i32 s39, s3, {s.nA*1024}\nv_add_u32 v18, s39, v18\ns_mov_b32 s{s.sAoff}, 0")
            for i in range(4):
                g(f"s_add_u32 s39, s58, {i}\ns_and_b32 s39, s39, 3\ns_lshl_b32 s39, s39, 10\nv_add_u32 v{12+i}, s39, v18")
            g("v_bfe_u32 v19, v1, 2, 3\nv_lshrrev_b32 v20, 5, v1\nv_lshlrev_b32 v20, 11, v20\nv_lshl_add_u32 v20, v19, 8, v20")
            g("v_and_b32 v21, 3, v1\nv_lshl_add_u32 v20, v21, 3, v20\nv_lshl_add_u32 v20, v19, 5, v20")
            for j in range(8):
                g(f"v_xor_b32 v{4+j}, {32*j}, v20")
            return
        g(f"s_mul_i32 s39, s37, {s.MF*1024}\nv_add_u32 v{s.vArd[0]}, s39, v18\nv_add_u32 v{s.vArd[1]}, {2*s.slotb}, v{s.vArd[0]}")
        g(f"s_mul_i32 s{s.sMA}, s3, {s.nA*1024}\ns_mov_b32 s{s.sAoff}, 0")
        if s.aperm:
            g("v_bfe_u32 v19, v1, 2, 2\nv_lshlrev_b32 v19, 8, v19\nv_lshrrev_b32 v20, 4, v1\nv_lshl_add_u32 v19, v20, 6, v19\nv_and_b32 v20, 3, v1")
            g(f"v_lshl_add_u32 v19, v20, 4, v19\nv_add_u32 v{s.vAdma}, s{s.sMA}, v19")
        else:
            g(f"v_add_u32 v{s.vAdma}, s{s.sMA}, v18")
        if s.xb:
            g(f"v_add_u32 v{s.vX}, {s.xbase}, v18")
        g("v_bfe_u32 v19, v1, 2, 3")
        g(f"v_lshrrev_b32 v20, 5, v1\nv_mul_u32_u24 v20, {s.nh*2048}, v20\nv_lshl_add_u32 v20, v19, 8, v20")
        g(f"v_and_b32 v21, 3, v1\nv_lshl_add_u32 v20, v21, 3, v20\nv_add_u32 v20, {s.actb}, v20")
        g("s_lshl_b32 s39, s38, 2")
        for jj in range(4):
            g(f"s_add_u32 s40, s39, {jj}\nv_xor_b32 v21, s40, v19")
            g(f"v_lshl_add_u32 v{s.vWrd[0][jj]}, v21, 5, v20\nv_add_u32 v{s.vWrd[1][jj]}, {2*s.slotb}, v{s.vWrd[0][jj]}")
        if s.xb:
            g(f"s_and_b32 s40, {xsel}, 3\ns_add_u32 s40, s40, s39\nv_xor_b32 v21, s40, v19\nv_lshl_add_u32 v{s.vXW[0]}, v21, 5, v20")
            g(f"s_lshr_b32 s40, {xsel}, 2\ns_lshl_b32 s40, s40, 11\nv_add_u32 v{s.vXW[0]}, s40, v{s.vXW[0]}")
            g(f"v_add_u32 v{s.vXW[1]}, {2*s.slotb}, v{s.vXW[0]}")

    def dma_a(s, slot):
        it = []
        for u in range(s.SUBS):
            if s.dact:
                for i in range(s.MF):
                    r = s.fa(slot, u, i)
                    it.append([f"buffer_load_dwordx4 a[{r}:{r+3}], v{12+i}, s[8:11], s{s.sAoff} offen{ASC}"])
                it[-1].append(f"s_add_u32 s{s.sAoff}, s{s.sAoff}, {s.gact}")
                continue
            first = [f"s_add_u32 m0, s{s.sMA}, {slot * s.slotb + u * s.subb}", "@"]
            for i in range(s.nA):
                it.append(first + [f"buffer_load_dwordx4 v{s.vAdma}, s[8:11], s{s.sAoff} offen offset:{i*1024}{ASC} lds"])
                first = []
            it[-1].append(f"s_add_u32 s{s.sAoff}, s{s.sAoff}, {s.gact}")
        return it

    def dma_w(s, slot):
        it = []
        for u in range(s.SUBS):
            first = [f"s_add_u32 m0, s{s.sMW}, {slot * s.slotb + u * s.subb}", "@"]
            for h in range(s.nh):
                for uu in range(2):
                    r = s.wsrd + 4 * h
                    it.append(first + [f"buffer_load_dwordx4 v{s.vWdma[2*h+uu]}, s[{r}:{r+3}], s{s.sWoff} offen offset:{(2*h+uu)*1024}{s.wpol} lds"])
                    first = []
            it[-1].append(f"s_add_u32 s{s.sWoff}, s{s.sWoff}, {32*s.wpitch}")
        return it

    def touch(s):
        return [["buffer_load_dword v29, v26, s[24:27], 0 offen", "v_add_u32 v26, s62, v26"]] if s.tch else []

    def group(s, p):
        a, w = s.dma_a(p + 3 if s.dact else p), s.dma_w(p)
        if getattr(s, "hack", 0) & 1:
            a = []
        if getattr(s, "hack", 0) & 2:
            w = []
        if s.wrap:
            if p == 0:
                w = [[f"s_lshl_b32 s{s.sWoff}, s99, 18", f"s_add_u32 s{s.sWoff}, s{s.sWoff}, s96"]] + w
                w = w + [["buffer_load_dword v30, v26, s[28:31], 0 offen sc1"]]
            if p == 1:
                a = [[f"s_lshl_b32 s{s.sAoff}, s99, 16"]] + a
            if p == 3:
                a = [["ds_read_b32 v17, v16"]] + a
        if s.rot2 and p == 1:
            w = w + [["buffer_load_dword v30, v28, s[28:31], 0 offen sc1"]]
        return s.touch() + (s.sw if p == 3 else []) + a + w

    def reads(s, slot, st):
        it = []
        hi = slot >> 1
        for u in range(s.SUBS):
            if s.dact:
                for j in range(s.NF):
                    r = s.fw(st, u, j)
                    for half in range(2):
                        it.append([f"ds_read_b64_tr_b16 a[{r+2*half}:{r+2*half+1}], v{4+j} offset:{slot*s.slotb + u*s.subb + half*4096}"])
                continue
            base = (slot & 1) * s.slotb + u * s.subb
            wl, al = [], []
            for j in range(s.NF):
                h, jj = divmod(j, 4)
                r = s.fr(st, u, s.MF + j)
                for half in range(2):
                    wl.append(f"ds_read_b64_tr_b16 a[{r+2*half}:{r+2*half+1}], v{s.vWrd[hi][jj]} offset:{base + h*2048 + half*2*s.nh*2048}")
            for i in range(s.MF):
                r = s.fr(st, u, i)
                al.append(f"ds_read_b128 a[{r}:{r+3}], v{s.vArd[hi]} offset:{base + i*1024}")
            if s.xb:
                r = s.fr(st, u, s.MF + s.NF)
                al.append(f"ds_read_b128 a[{r}:{r+3}], v{s.vX}")
                for half in range(2):
                    wl.append(f"ds_read_b64_tr_b16 a[{r+4+2*half}:{r+5+2*half}], v{s.vXW[hi]} offset:{base + half*2*s.nh*2048}")
            while wl or al:
                if al: it.append([al.pop(0)])
                if wl: it.append([wl.pop(0)])
                if wl: it.append([wl.pop(0)])
            if s.xb:
                it.append([f"v_add_u32 v{s.vX}, 1024, v{s.vX}"] + ([f"v_and_or_b32 v{s.vX}, v{s.vX}, s63, v29"] if s.rot2 else []))
        return it

    def mfma1(s, p, j, i, st=None):
        st = p & 1 if st is None else st
        a, w = (s.fa(p, 0, i) if s.dact else s.fr(st, 0, i)), s.fw(st, 0, j)
        A, W = f"a[{a}:{a+3}]", f"a[{w}:{w+3}]"
        x, y = (A, W) if s.act_first else (W, A)
        return f"v_mfma_f32_16x16x32_bf16 {s.accr(j,i)}, {x}, {y}, {s.accr(j,i)}"

    def final_phase(s, vm, blocks, lag, pre_items=(), two=False):
        g = s.g
        g(f"s_waitcnt vmcnt({vm}) lgkmcnt(0)" if vm is not None else "s_waitcnt lgkmcnt(0)")
        g("s_barrier")
        pre = [ins for grp in pre_items for ins in grp]
        for b, (tiles, _) in enumerate(blocks):
            work = list(blocks[b - lag][1]) if b >= lag else []
            if b < lag and pre:
                k = -(-len(pre) // (lag - b))
                work, pre = ["s_nop 0" if x == "@" else x for x in pre[:k]], pre[k:]
            mf = [s.mfma1(3, j, i) for (j, i) in tiles]
            if two:
                mf = [s.mfma1(2, j, i) for (j, i) in tiles] + [s.mfma1(3, j, i, 2) for (j, i) in tiles]
            per = -(-len(work) // len(mf))
            for m in mf:
                g(m)
                for ins in work[:per]:
                    g(ins)
                work = work[per:]
        g("s_nop 7")
        for b in range(len(blocks) - lag, len(blocks)):
            for ins in blocks[b][1]:
                g(ins)

    def mfmas(s, p, zero):
        out = []
        st = p & 1
        for u in range(s.SUBS):
            z = zero and u == 0
            for j in range(s.NF):
                ii = range(s.MF) if j % 2 == 0 else range(s.MF - 1, -1, -1)
                for i in ii:
                    a, w = s.fa(p, u, i), s.fw(st, u, j)
                    A, W = f"a[{a}:{a+3}]", f"a[{w}:{w+3}]"
                    x, y = (A, W) if s.act_first else (W, A)
                    out.append(f"v_mfma_f32_16x16x32_bf16 {s.accr(j,i)}, {x}, {y}, {'0' if z else s.accr(j,i)}")
            if s.xb:
                a = s.fr(st, u, s.MF + s.NF)
                c = f"v[{s.accx}:{s.accx+3}]"
                out.append(f"v_mfma_f32_16x16x32_bf16 {c}, a[{a}:{a+3}], a[{a+4}:{a+7}], {'0' if z else c}")
        return out

    def flat(s, items):
        for grp in items:
            for ins in grp:
                s.g("s_nop 0" if ins == "@" else ins)

    def phase(s, p, vm, dma, rd=True, zero=False, tail=None, pre=None, preb=None):
        g = s.g
        st = p & 1
        g(f"s_waitcnt vmcnt({vm}) lgkmcnt(0)" if vm is not None else "s_waitcnt lgkmcnt(0)")
        if preb:
            preb()
        g("s_barrier")
        if pre:
            pre()
        rdl = s.reads((p + 1) % s.NS, st ^ 1) if rd else []
        if getattr(s, "hack", 0) & 4:
            rdl = [x for x in rdl if "b128" not in x[0]]
        if getattr(s, "hack", 0) & 8:
            rdl = [x for x in rdl if "tr_b16" not in x[0]]
        fill = []
        nr, nd = len(rdl), len(dma)
        ri = di = 0
        while ri < nr or di < nd:
            if di < nd and (ri >= nr or di * nr <= ri * nd):
                fill.append(dma[di]); di += 1
            else:
                fill.append(rdl[ri]); ri += 1
        flat = []
        for grp in fill:
            cur = []
            for ins in grp:
                if ins == "@":
                    flat.append(cur); cur = []
                else:
                    cur.append(ins)
            flat.append(cur)
        mf = s.mfmas(p, zero)
        n = len(mf)
        lim = max(1, int(n * s.span))
        pos = {}
        for idx, grp in enumerate(flat):
            pos.setdefault(min(n - 2, idx * lim // len(flat)), []).append(grp)
        for k, m in enumerate(mf):
            g(m)
            grps = pos.get(k, [])
            for gi, grp in enumerate(grps):
                if gi and grps[gi-1] and grps[gi-1][-1].startswith("s_add_u32 m0"):
                    g("s_nop 0")
                for ins in grp:
                    g(ins)
            if tail and k == n - 2:
                g(tail)

    def start(s, nT=0, touch=None, chk=None, late=None, extra=()):
        g = s.g
        extra = list(extra)
        if s.dact:
            for p in range(3):
                k = -(-len(extra) // (3 - p))
                grp, extra = extra[:k], extra[k:]
                s.phase(p, 0 if p == 2 else None, grp, zero=(p == 0), pre=(late if p == 2 else None))
            s.phase(3, 0, s.restart(), rd=False, preb=chk[0], pre=chk[1])
            return
        for slot in range(s.NS):
            s.flat(s.dma_a(slot))
        if touch:
            touch()
        g(f"s_waitcnt vmcnt({3*s.pA + nT}) lgkmcnt(0)\ns_barrier")
        s.flat(s.reads(0, 0))
        vms = [2 * s.pA + nT, s.pA + nT + s.ndma, nT + 2 * s.ndma, 2 * s.ndma]
        for p in range(4):
            s.phase(p, vms[p], s.group(p), zero=(p == 0))

    def restart(s):
        it = [[f"s_lshl_b32 s{s.sWoff}, s99, 18", f"s_add_u32 s{s.sWoff}, s{s.sWoff}, s96", f"s_lshl_b32 s{s.sAoff}, s99, 16"]]
        for p in range(3):
            it += s.dma_w(p) + s.dma_a(p)
        return it + s.dma_w(3)

    def loop(s, cnt, name, head=None, chk=None):
        g = s.g
        g(f"s_mov_b32 s{s.sCnt}, {cnt}")
        g.label(name)
        if head:
            head()
        for p in range(4):
            s.phase(p, 2 * s.ndma, s.group(p), preb=(chk.get(p) if isinstance(chk, dict) else chk if p == 0 else None),
                    tail=(f"s_sub_u32 s{s.sCnt}, s{s.sCnt}, 1\ns_cmp_lg_u32 s{s.sCnt}, 0" if p == 3 else None))
        g(f"s_cbranch_scc1 {name}")

    def last(s, fills=None, pres=None, flfirst=False, final=None):
        fills = fills or [[], [], [], []]
        pres = pres or [None] * 4
        cnt = lambda f: sum(1 for grp in f for ins in grp if ins.startswith("buffer_"))
        if s.dact:
            fills = [fills[0] + s.dma_a(3) if flfirst else s.dma_a(3) + fills[0]] + list(fills[1:])
        n = [cnt(f) for f in fills]
        vms = [2 * s.ndma, s.ndma + n[0], n[0] + n[1], ((0 if flfirst else n[0] - s.pA) + n[1] + n[2]) if s.dact else None]
        if final and len(final) > 2:
            s.phase(0, vms[0], fills[0], pre=pres[0])
            s.phase(1, n[0], fills[1] + s.reads(3, 2), pre=pres[1])
            s.final_phase((n[0] - s.pA + n[1]) if s.dact else None, final[0], final[1], fills[2] + fills[3], two=True)
            return
        for p in range(4):
            if p == 3 and final:
                s.final_phase(vms[3], final[0], final[1], fills[3])
            else:
                s.phase(p, vms[p], fills[p], rd=(p < 3), pre=pres[p])


def accv(g, core, j, i, tmp):
    k, r = core.acc[j, i]
    if k == "v":
        return r
    for x in range(4):
        g(f"v_accvgpr_read_b32 v{tmp+x}, a{r+x}")
    return tmp


def warm_lines(g, ptr, nbytes, first, rl, pitch, n, step):
    g.srd(8, ptr, nbytes)
    g(f"v_add_u32 v26, {first}, v1\nv_lshrrev_b32 v27, {rl}, v26\nv_lshlrev_b32 v28, {rl}, v27\nv_sub_u32 v26, v26, v28")
    g(f"s_mov_b32 s4, {pitch}\nv_mul_lo_u32 v27, v27, s4\nv_lshl_add_u32 v26, v26, 7, v27")
    for k in range(n):
        g("buffer_load_dword v29, v26, s[8:11], 0 offen")
        if k + 1 < n:
            g(f"v_add_u32 v26, {(step >> rl) * pitch}, v26")


def cnt_vm(items):
    return sum(1 for grp in items for ins in grp if ins.startswith("buffer_"))


def k2_sids(g):
    g("s_and_b32 s56, s41, 1\ns_lshl_b32 s56, s56, 2\ns_and_b32 s57, s42, 3\ns_add_u32 s56, s56, s57\ns_lshr_b32 s57, s42, 2\ns_lshr_b32 s58, s41, 1")


def slab_srd(g):
    g(f"s_lshl_b32 s4, s56, 3\ns_add_u32 s4, s4, s57\ns_mul_i32 s4, s4, {4*49152}\ns_lshl_b32 s5, s3, 12\ns_add_u32 s4, s4, s5")
    g.srd(24, PWS, 4 * 49152, PART, "s4")


def n_early(o):
    return 0


def early(g, o):
    pass


def code_warm(g, o):
    mode = o.get("codepf", 3)
    if not mode:
        return
    g("s_getpc_b64 s[24:25]")
    g.label("L_pc")
    g(f"s_sub_u32 s24, s24, L_pc-{NAME}\ns_subb_u32 s25, s25, 0\ns_mov_b32 s26, L_end-{NAME}\ns_mov_b32 s27, 0x20000\nv_lshlrev_b32 v26, 7, v1")
    if mode == 4:
        g(f"s_cmp_lt_u32 s42, 4\ns_cselect_b32 s4, L_fft-{NAME}, 0\ns_lshl_b32 s5, s3, 11\ns_add_u32 s4, s4, s5\nv_add_u32 v27, s4, v26")
        g("s_lshl_b32 s4, s42, 2\ns_add_u32 s4, s4, s3\ns_lshl_b32 s4, s4, 9\ns_sub_u32 s4, s4, 2048\nv_add_u32 v26, s4, v26")
        g("s_mov_b64 s[4:5], 0xffff\nv_cndmask_b32 v26, v26, v27, s[4:5]\ns_mov_b64 exec, 0xfffff")
        g("buffer_load_dword v29, v26, s[24:27], 0 offen\ns_mov_b64 exec, -1")
        return
    if mode & 2:
        g(f"s_cmp_lt_u32 s42, 4\ns_cselect_b32 s4, L_fft-{NAME}, 0\nbuffer_load_dword v29, v26, s[24:27], s4 offen")
    if mode & 1:
        g("s_lshl_b32 s4, s42, 2\ns_add_u32 s4, s4, s3\ns_lshl_b32 s4, s4, 9\nv_add_u32 v26, s4, v26\ns_mov_b64 exec, 15")
        g("buffer_load_dword v29, v26, s[24:27], 0 offen\ns_mov_b64 exec, -1")


def k2_ids(g, o):
    k2_sids(g)
    c2 = Core(g, MF=4, nh=1, SUBS=1, act_first=False, wpitch=D * 2, wsrd=20, vW=24, sW=(59, 60), span=o.get("span2", 0.9), dact=True)
    c2.wpol = o.get('w2pol', '')
    c2.setup_w()
    g(f"s_mul_i32 s96, s58, {896 * D * 2}")
    g("s_sub_u32 s98, s42, 4\ns_max_i32 s98, s98, 0\ns_lshr_b32 s98, s98, 2")
    g("s_lshl_b32 s59, s98, 18\ns_add_u32 s59, s59, s96")
    c2.wrap = True
    g(f"s_lshl_b32 s44, s57, 8\ns_sub_u32 s45, {F*D*2 + 4096}, s44")
    g.srd(20, PWD, "s45", -4096, "s44")
    return c2


XS, PS, AX, AP, RB, GO = 160, 164, 168, 176, 184, 188


def spin(g, va, thr, first_loaded, vf=30, lane=None):
    l0, l1, l2 = g.newlabel("sp"), g.newlabel("spd"), g.newlabel("spc")
    if first_loaded:
        g(f"s_branch {l2}")
    g.label(l0)
    g(f"buffer_load_dword v{vf}, v{va}, s[28:31], 0 offen sc1\ns_waitcnt vmcnt(0)")
    g.label(l2)
    flag_bad(g, [(vf, thr)])
    if lane:
        g(f"s_lshl_b32 s4, 0x11, {lane}\ns_and_b32 vcc_lo, vcc_lo, s4\ns_mov_b32 vcc_hi, 0")
    g(f"s_sub_u32 s101, s101, 1\ns_cbranch_scc1 {l1}\ns_cbranch_vccnz {l0}")
    g.label(l1)


def k2_rows(g):
    g("v_lshrrev_b32 v18, 4, v1\nv_and_b32 v19, 15, v1\ns_cmp_ge_u32 s56, 4\ns_cselect_b64 s[62:63], -1, 0\nv_mov_b32 v28, 0x400")
    for n in range(4):
        g(f"v_add_u32 v20, {4*n}, v18\nv_xor_b32 v21, v20, v19\nv_lshlrev_b32 v21, 4, v21\nv_add_u32 v21, {4096 - n*1024}, v21\nv_add_u32 v20, s54, v20")
        g(f"v_cmp_eq_u32 vcc, v20, v28\nv_sub_u32 v{XS+n}, 0xc00, v20\nv_and_b32 v{PS+n}, 0x3ff, v20\nv_cndmask_b32 v{XS+n}, v20, v{XS+n}, s[62:63]")
        g(f"v_cndmask_b32 v{XS+n}, v{XS+n}, v28, vcc\nv_cndmask_b32 v{PS+n}, v{PS+n}, v28, vcc")
        g(f"v_lshlrev_b32 v{XS+n}, 11, v{XS+n}\nv_lshl_add_u32 v{GO+n}, v19, 4, v{XS+n}\nv_add_u32 v{XS+n}, v{XS+n}, v21")
        g(f"v_mul_u32_u24 v{PS+n}, {PQ_PITCH}, v{PS+n}\nv_add_u32 v{PS+n}, v{PS+n}, v21")


def tile_pick(g, off=0):
    l0, l1, l2, l3 = g.newlabel("tp"), g.newlabel("tpd"), g.newlabel("tpc"), g.newlabel("tpx")
    g(f"s_cmp_lg_u32 s3, 0\ns_cbranch_scc1 {l3}")
    g(f"s_cmp_eq_u32 s47, 0x7f\ns_cbranch_scc1 {l1}\ns_branch {l2}")
    g.label(l0)
    g("buffer_load_dword v30, v26, s[28:31], 0 offen sc1\ns_waitcnt vmcnt(0)")
    g.label(l2)
    flag_bad(g, [(30, 2)])
    g("s_lshr_b32 s4, vcc_lo, 8\ns_or_b32 s4, s4, vcc_lo\ns_sub_u32 s101, s101, 1\ns_cselect_b32 s4, 0, s4\ns_andn2_b32 s4, 0x7f, s4\ns_or_b32 s47, s47, s4")
    g(f"s_and_b32 s4, s47, s97\ns_cbranch_scc0 {l0}")
    g.label(l1)
    g(f"s_and_b32 s4, s47, s97\ns_ff1_i32_b32 s4, s4\ns_bitset0_b32 s97, s4\nv_mov_b32 v17, s4\nds_write_b32 v16, v17 offset:{off}\ns_waitcnt lgkmcnt(0)")
    g.label(l3)


def tile_get(g):
    g("ds_read_b32 v17, v16 offset:4\ns_waitcnt lgkmcnt(0)\nv_readfirstlane_b32 s99, v17")


def tile_dma(g, srd, va, off, sc, one=False):
    g("\n".join([f"s_add_u32 m0, s55, {off}", "s_nop 0"] +
                [f"buffer_load_dwordx4 v{va+n}, s[{srd}:{srd+3}], 0 offen offset:{n*1024}{sc} lds" for n in range(4)]))


def k2_setup(g, o, c2):
    g("s_nop 1")
    c2.setup_r()
    g(f"s_mul_i32 s44, s56, {112*16384}\ns_mul_i32 s45, s58, {28*16384}\ns_add_u32 s44, s44, s45")
    g.srd(8, PWS, 28 * 16384, H, "s44")
    g("s_mul_i32 s44, s56, 28\ns_mul_i32 s45, s58, 7\ns_add_u32 s44, s44, s45")
    g("v_and_b32 v26, 7, v1\nv_min_u32 v26, 6, v26\nv_add_u32 v26, s44, v26\nv_lshlrev_b32 v26, 7, v26")
    g("v_bfe_u32 v18, v1, 3, 1\nv_lshl_add_u32 v26, v18, 2, v26")
    g("s_mov_b32 s101, 0x80000\ns_mov_b32 s47, 0")
    g("s_mov_b32 s97, 0x7f\nv_mov_b32 v30, 0\nv_mov_b32 v16, 0x27ff0\ns_cmp_eq_u32 s3, 0\ns_cselect_b32 s44, 0, 0x80000000\nv_or_b32 v26, s44, v26")


class Rec(G):
    def __init__(s, g):
        s.g0, s.items = g, []

    def __call__(s, txt):
        s.items.append([ln.strip() for ln in txt.split("\n") if ln.strip()])


def k2_tail_setup(g0, o):
    g = Rec(g0)
    g("s_mul_i32 s55, s3, 12288\ns_add_u32 s55, s55, 0x8000")
    g("s_lshl_b32 s54, s56, 8\ns_lshl_b32 s44, s3, 6\ns_add_u32 s54, s54, s44\ns_lshl_b32 s44, s58, 4\ns_add_u32 s54, s54, s44")
    k2_rows(g)
    g(f"s_lshl_b32 s61, s57, 8\ns_sub_u32 s45, {S*D*2 + 4096}, s61")
    g.srd(12, PX, "s45", -4096, "s61")
    tile_dma(g, 12, XS, 0, "", one=True)
    g("s_sub_u32 s48, 1794, s61\ns_cmp_ge_u32 s57, 4\ns_cselect_b32 s44, s48, s61\ns_cselect_b32 s48, 248, 0\ns_cselect_b32 s49, -1, 0")
    g(f"s_sub_u32 s45, {1025*PQ_PITCH + 4096}, s44")
    g.srd(12, PWS, "s45", PP - 4096, "s44")
    g.srd(16, PWS, "s45", QQ - 4096, "s44")
    g("s_xor_b32 s62, s62, s49\ns_cmp_lg_u32 s62, 0\ns_cselect_b32 s62, 1.0, -1.0\ns_mov_b32 s63, s62")
    g("v_and_b32 v18, 15, v1\nv_lshrrev_b32 v19, 5, v1\nv_xor_b32 v19, v19, v18")
    g("v_lshlrev_b32 v19, 4, v19\nv_lshl_add_u32 v19, v18, 8, v19\nv_bfe_u32 v20, v1, 4, 1\nv_lshl_add_u32 v19, v20, 3, v19")
    for j in range(8):
        g(f"v_xor_b32 v20, {32*j}, v19\nv_add_u32 v{AX+j}, s55, v20")
        g(f"v_xor_b32 v20, s48, v20\nv_add_u32 v{AP+j}, s55, v20")
    g("v_lshrrev_b32 v18, 4, v1\nv_and_b32 v19, 15, v1")
    for n in range(4):
        g(f"v_add_u32 v21, {4*n}, v18\nv_xor_b32 v20, v21, v19\nv_lshlrev_b32 v20, 4, v20")
        g(f"v_lshl_add_u32 v20, v21, 8, v20\nv_add_u32 v{RB+n}, s55, v20")
    g(f"s_lshl_b32 s44, s56, 3\ns_add_u32 s44, s44, s57\ns_mul_i32 s44, s44, {4*49152}\ns_lshl_b32 s45, s3, 12\ns_add_u32 s44, s44, s45")
    g.srd(24, PWS, 4 * 49152, PART, "s44")
    for i in range(1, 4):
        g(f"s_add_u32 s{49+i}, s58, {i}\ns_and_b32 s{49+i}, s{49+i}, 3\ns_mul_i32 s{49+i}, s{49+i}, 49152\ns_add_u32 s{49+i}, s{49+i}, {(i-1)*16384}")
    g("s_mul_i32 s53, s58, 49152\nv_lshlrev_b32 v29, 4, v1")
    g("v_and_b32 v22, 31, v1\nv_add_u32 v22, 224, v22\nv_lshlrev_b32 v22, 7, v22\nv_lshrrev_b32 v23, 5, v1\nv_lshl_add_u32 v22, v23, 2, v22")
    g("s_cmp_lt_u32 s42, 4\ns_cselect_b32 s44, 8, 7\nv_lshrrev_b32 v23, 1, v1\nv_min_u32 v23, 2, v23")
    g("v_add_u32 v23, 1, v23\nv_add_u32 v23, s58, v23\nv_and_b32 v23, 3, v23")
    g("s_mul_i32 s45, s58, s44\ns_sub_u32 s45, s43, s45\nv_mul_u32_u24 v23, s44, v23")
    g("v_add_u32 v23, s45, v23\nv_lshlrev_b32 v23, 7, v23")
    g("s_lshl_b32 s44, s3, 3\ns_add_u32 s44, s44, 16\nv_and_b32 v27, 1, v1\nv_lshl_add_u32 v27, v27, 2, s44\nv_add_u32 v23, v27, v23")
    g("s_lshl_b32 s45, s43, 7\nv_add_u32 v27, s45, v27")
    return g.items


def main_kernel(g, o):
    g.begin(NAME)
    g("s_cmp_ge_u32 s2, 256\ns_cbranch_scc1 L_done")
    g("s_load_dwordx16 s[64:79], s[0:1], 0\ns_load_dwordx8 s[80:87], s[0:1], 64")
    g("v_lshrrev_b32 v2, 6, v0\nv_and_b32 v1, 63, v0\ns_nop 0\nv_readfirstlane_b32 s3, v2")
    if o.get("stamp"):
        g(f"v_mov_b32 v{VST}, 0")
    stamp(g, o, 0)
    g("s_and_b32 s41, s2, 7\ns_lshr_b32 s42, s2, 3\ns_lshr_b32 s37, s3, 1\ns_and_b32 s38, s3, 1")
    code_warm(g, o)
    g("s_sub_u32 s44, s42, 4")
    g("s_and_b32 s54, s41, 1\ns_lshl_b32 s54, s54, 2\ns_and_b32 s45, s44, 3\ns_add_u32 s54, s54, s45")
    g("s_lshr_b32 s55, s41, 1\ns_mul_i32 s55, s55, 7\ns_lshr_b32 s45, s44, 2\ns_add_u32 s55, s55, s45")
    g("s_mul_i32 s43, s54, 28\ns_add_u32 s43, s43, s55")
    g("s_lshl_b32 s44, s41, 2\ns_add_u32 s44, s44, s42\ns_add_u32 s44, s44, 224\ns_cmp_lt_u32 s42, 4\ns_cselect_b32 s43, s44, s43")
    ln_loads(g)
    tag_issue(g)
    g("s_cmp_lt_u32 s42, 4\ns_cbranch_scc1 L_fft")

    c1 = Core(g, MF=8, nh=2, SUBS=1, act_first=False, wpitch=F * 2, span=o.get("span1", 0.85), tch=o.get("pf", 1))
    c1.aperm = True
    c1.hack = o.get('hack', 0)
    c1.wpol = o.get('w1pol', ' nt')
    c1.setup_w()
    g(f"s_lshl_b32 s46, s55, 8\ns_sub_u32 s47, {D*F*2 + 4096}, s46")
    g.srd(12, PWG, "s47", -4096, "s46")
    g.srd(16, PWU, "s47", -4096, "s46")
    nW, nC = o.get("nW", 0), o.get("nC", 0)

    def warm_g():
        g(f"s_cmp_ge_u32 s43, 112\ns_cselect_b32 s62, s{PWU}, s{PWG}\ns_cselect_b32 s63, s{PWU+1}, s{PWG+1}\ns_cselect_b32 s61, 112, 0\ns_sub_u32 s61, s43, s61")
        g(f"s_lshl_b32 s61, s61, 6\ns_add_u32 s61, s61, {128*56}")
        warm_lines(g, 62, D * F * 2, "s61", 0, 128, nW, 7168)
        if not nC:
            return
        g(f"s_bitcmp1_b32 s43, 0\ns_cselect_b32 s62, s{PSI}, s{PSR}\ns_cselect_b32 s63, s{PSI+1}, s{PSR+1}\ns_lshr_b32 s61, s43, 1\ns_lshl_b32 s61, s61, 6")
        warm_lines(g, 62, 1024 * 4096, "s61", 4, 4096, nC, 7168)
    def warm1():
        g("v_mul_u32_u24 v26, 37, v1\nv_lshrrev_b32 v26, 9, v26\nv_mul_u32_u24 v27, 14, v26\nv_sub_u32 v27, v1, v27")
        g(f"s_lshl_b32 s4, s43, 2\nv_add_u32 v26, s4, v26\nv_mul_u32_u24 v26, {F*2}, v26\nv_lshrrev_b32 v28, 1, v27\nv_lshl_add_u32 v26, v28, 10, v26")
        g("v_and_b32 v27, 1, v27\nv_lshl_add_u32 v26, v27, 7, v26")
        for ptr in (PWG, PWU):
            g.srd(8, ptr, D * F * 2)
            g("buffer_load_dword v29, v26, s[8:11], 0 offen offset:256")
    pf = o.get("pf", 1)
    wl = sum((c1.dma_w(slot) for slot in range(4)), [])
    n0, n1 = o.get("wpre", 6), o.get("wmid", 0)
    c1.flat(wl[:n0])
    ln_body(g, o, n_early(o) + n0, "g", wl[n0:n0 + n1], warm_g if (nW or nC) else (warm1 if o.get('warm1', 0) else None))
    late = wl[n0 + n1:]
    post = []
    if o.get("wpost", 1):
        late, post = [], late
    c1.flat(late)
    c1.setup_r()
    g("s_and_b32 s46, s54, 3\ns_lshl_b32 s46, s46, 13\nv_lshl_add_u32 v22, v1, 7, s46")
    g("s_lshl_b32 s46, s54, 19")
    g.srd(8, PWS, 0x80000, XN, "s46")
    lg = o.get("lpw", 3)
    lc = 4 << lg
    g("s_add_u32 s46, s55, 2\ns_lshr_b32 s46, s46, 2\ns_sub_u32 s46, s55, s46\ns_mul_i32 s47, s54, 21\ns_add_u32 s46, s46, s47")
    g(f"s_and_b32 s47, s55, 3\ns_cmp_eq_u32 s47, 1\ns_cselect_b32 s63, 0, {F*D*2}\ns_cselect_b32 s98, 0, {1024*4096}")
    g(f"s_bitcmp1_b32 s46, 0\ns_cselect_b32 s96, s{PSI}, s{PSR}\ns_cselect_b32 s97, s{PSI+1}, s{PSR+1}")
    g(f"v_lshrrev_b32 v18, {lg}, v1\nv_min_u32 v18, 1, v18\nv_lshlrev_b32 v18, 31, v18\ns_lshl_b32 s47, s3, {lg}\nv_add_u32 v19, s47, v1")
    g(f"s_lshl_b32 s47, s46, {lg+2}\nv_add_u32 v20, s47, v19\nv_lshl_or_b32 v23, v20, 7, v18")
    g(f"s_lshr_b32 s46, s46, 1\ns_lshl_b32 s46, s46, {lg+2}\nv_add_u32 v19, s46, v19\nv_and_b32 v21, 15, v19\nv_lshrrev_b32 v20, 4, v19")
    g("v_lshlrev_b32 v20, 12, v20\nv_lshl_add_u32 v20, v21, 7, v20\nv_or_b32 v26, v20, v18")
    publish(g, 1, True, len(late))
    c1.flat(post)
    g(f"s_mov_b32 s24, s96\ns_mov_b32 s25, s97\ns_mov_b32 s26, s98\ns_mov_b32 s27, 0x20000\ns_mov_b32 s62, {84 * lc // 16 * 4096}")
    stamp(g, o, 3)
    poll(g, [(22, 1)], sleep=o.get("psl", 1))
    stamp(g, o, 4)
    c1.start()
    c1.sw = [[f"s_cmp_eq_u32 s{c1.sCnt}, {o.get('sw', 5)}", f"s_cselect_b32 s24, s{PWD}, s24", f"s_cselect_b32 s25, s{PWD+1}, s25",
              "s_cselect_b32 s26, s63, s26", f"s_cselect_b32 s62, {168 * lc * 128}, s62", "s_cselect_b64 s[46:47], -1, 0",
              "v_cndmask_b32 v26, v26, v23, s[46:47]"]]
    c1.loop(6, "L_g1")
    c1.sw = []
    gm, g = g, Rec(g)
    c2 = k2_ids(g, o)
    g.srd(24, PWS, S * F * 2, H)
    g(f"s_mul_i32 s50, s54, {112*16384}\ns_lshl_b32 s51, s37, 13\ns_add_u32 s50, s50, s51")
    g("s_lshl_b32 s51, s55, 2\ns_lshl_b32 s52, s38, 1\ns_add_u32 s51, s51, s52\ns_lshl_b32 s51, s51, 14")
    g("s_add_u32 s50, s50, s51\ns_add_u32 s51, s50, 0x4000")
    g("v_lshlrev_b32 v26, 4, v1\nv_add_u32 v27, 0x1000, v26")
    g(f"s_lshl_b32 s4, s38, 15\ns_lshl_b32 s5, s37, 13\ns_add_u32 s4, s4, s5\ns_add_u32 s4, s4, {HSTG}\nv_add_u32 v28, s4, v26")
    pre_last, g = g.items, gm
    c2.g = g
    blocks = []
    for kbl in range(2):
        for i in range(8):
            o4 = (12, 16)[len(blocks) & 1]
            work = []
            for jj in range(2):
                j = 2 * kbl + jj
                gr = c1.acc[j, i][1]
                kind, ur = c1.acc[4 + j, i]
                if kind == "a":
                    work += [f"v_accvgpr_read_b32 v{20+x}, a{ur+x}" for x in range(4)]
                    ur = 20
                work += [f"v_mul_f32 v{gr+x}, v{gr+x}, v{ur+x}" for x in range(4)] if o.get("epmul", 0) else \
                        [f"v_pk_mul_f32 v[{gr}:{gr+1}], v[{gr}:{gr+1}], v[{ur}:{ur+1}]", f"v_pk_mul_f32 v[{gr+2}:{gr+3}], v[{gr+2}:{gr+3}], v[{ur+2}:{ur+3}]"]
                work += [f"v_cvt_pk_bf16_f32 v{o4+2*jj}, v{gr}, v{gr+1}", f"v_cvt_pk_bf16_f32 v{o4+2*jj+1}, v{gr+2}, v{gr+3}"]
            work.append(f"buffer_store_dwordx4 v[{o4}:{o4+3}], v{26 + (i >> 2)}, s[24:27], s{50+kbl} offen offset:{(i&3)*1024} sc1")
            work.append(f"ds_write_b128 v28, v[{o4}:{o4+3}] offset:{kbl*16384 + i*1024}")
            blocks.append(([(2 * kbl, i), (2 * kbl + 1, i), (4 + 2 * kbl, i), (5 + 2 * kbl, i)], work))
    if True:
        c1.last([pre_last, c2.dma_w(0) + c2.dma_w(1) + c2.dma_w(2) + c2.dma_w(3), [], []], final=(blocks, 2, 1) if o.get('two1', 1) else (blocks, 3))
    stamp(g, o, 5)
    k2_setup(g, o, c2)
    for i in range(4):
        g(f"v_add_u32 v{18+i}, {HSTG}, v{12+i}")
    g("s_bitset0_b32 s97, s98\ns_waitcnt vmcnt(16) lgkmcnt(0)\ns_barrier")
    stamp(g, o, 6)
    for u in range(4):
        for i in range(4):
            r = c2.fa(u, 0, i)
            g(f"ds_read_b128 a[{r}:{r+3}], v{18+i} offset:{u*16384}")
    stamp(g, o, 10)

    def late2():
        lab = g.newlabel("p2")
        stamp(g, o, 17)
        g(f"s_cmp_lg_u32 s3, 0\ns_cbranch_scc1 {lab}")
        g("s_lshl_b32 s4, s43, 7\ns_add_u32 s5, s100, 2\nv_lshl_add_u32 v2, v1, 2, s4\nv_mov_b32 v3, s5\ns_mov_b64 exec, 0xffffffff")
        g("buffer_store_dword v3, v2, s[28:31], 0 offen sc1\ns_mov_b64 exec, -1")
        g.label(lab)
        g("buffer_load_dword v30, v26, s[28:31], 0 offen sc1")
    c2.flat(c2.reads(0, 0))
    c2.start(late=late2, chk=(lambda: tile_pick(g, 4), lambda: tile_get(g)), extra=k2_tail_setup(g, o))
    stamp(g, o, 18)
    g("s_mov_b32 s46, 5\ns_branch L_k2")

    g.label("L_fft")
    g("s_and_b32 s54, s41, 1\ns_lshr_b32 s55, s41, 1")
    f1 = Core(g, MF=8, nh=1, SUBS=1, act_first=True, wpitch=D * 2, xblocks=16)
    f1.aperm = True
    f1.setup_w()
    g("s_cmp_eq_u32 s54, 0")
    g(f"s_cselect_b32 s96, s{PHR}, s{PHI}\ns_cselect_b32 s97, s{PHR+1}, s{PHI+1}\ns_cselect_b32 s98, s{PSR}, s{PSI}\ns_cselect_b32 s99, s{PSR+1}, s{PSI+1}")
    g(f"s_lshl_b32 s46, s55, 8\ns_sub_u32 s47, {512*2048 + 4096}, s46")
    g.srd(12, 96, "s47", -4096, "s46")

    def warm_f():
        g(f"s_lshl_b32 s61, s55, 2\ns_add_u32 s61, s61, s42\ns_lshl_b32 s61, s61, 6\ns_add_u32 s62, s61, {128*8}\ns_add_u32 s61, s61, 14336")
        if o.get('warm1', 0):
            warm1()
        warm_lines(g, 96, 512 * 2048, "s62", 3, 2048, 3, 1024)
        if o.get("nCf", 0):
            warm_lines(g, 98, 1024 * 4096, "s61", 4, 4096, o.get("nCf", 0), 1024)
    wl = sum((f1.dma_w(slot) for slot in range(4)), [])
    f1.flat(wl[:n0])
    ln_body(g, o, n_early(o) + min(n0, 8), "f", wl[n0:], warm_f if o.get("warmf", 1) else None)
    late = []
    g("s_lshl_b32 s63, s42, 1\ns_add_u32 s63, s63, s37\ns_and_b32 s63, s63, 3")
    f1.setup_r("s63")
    g("v_lshlrev_b32 v24, 7, v1\nv_add_u32 v25, 0x2000, v24\nv_add_u32 v26, 0x4000, v24\nv_add_u32 v27, 0x6000, v24")
    publish(g, 1, True, len(late))
    stamp(g, o, 3)
    poll(g, [(24, 1), (25, 1), (26, 1), (27, 1)])
    stamp(g, o, 4)
    g(f"s_mul_i32 s46, s54, {XOO - XEE}\ns_lshl_b32 s47, s42, 18\ns_add_u32 s46, s46, s47")
    g.srd(8, PWS, 0x40000, XEE, "s46")
    g.srd(16, PWS, 1024, XEEX)
    g("v_lshlrev_b32 v24, 4, v1\nbuffer_load_dwordx4 v[40:43], v24, s[16:19], 0 offen sc1")

    def t2():
        g(f"v_lshlrev_b32 v24, 8, v1\nv_add_u32 v24, {f1.xbase}, v24\ns_waitcnt vmcnt({4 * f1.pA})\nds_write_b128 v24, v[40:43]")
    f1.start(0, t2)
    f1.loop(2, "L_f1")
    g("s_lshl_b32 s62, s42, 1\ns_add_u32 s62, s62, s37")
    f2 = Core(g, MF=4, nh=2, SUBS=1, act_first=True, wpitch=S * 2, xblocks=32, wsrd=16, vW=24, sW=(59, 60))
    f2.wpol = o.get('f2pol', '')
    f2.setup_w()
    f2.rot2 = True
    g("s_lshl_b32 s59, s42, 20")
    g(f"s_lshl_b32 s46, s42, 9\ns_sub_u32 s47, {1024*4096 + 4096}, s46")
    g.srd(16, 98, "s47", -4096, "s46")
    g("s_sub_u32 s47, s47, 256")
    g.srd(20, 98, "s47", -4096 + 256, "s46")
    g("s_cmp_eq_u32 s54, 0\ns_cselect_b32 s47, 0x10000, 0")
    g.srd(24, PWS, "s47", REC)
    T = f1.vtop
    g("v_lshrrev_b32 v28, 4, v1\nv_lshlrev_b32 v28, 7, v28")
    g("s_lshl_b32 s50, s42, 13\ns_lshl_b32 s51, s37, 12\ns_add_u32 s50, s50, s51\ns_mov_b32 s51, 0x8000")
    lc1 = [[f"buffer_load_dwordx4 v[{T+4*i}:{T+4*i+3}], v28, s[24:27], s50 offen offset:{i*512} sc1"] for i in range(8)]
    lc1.append([f"buffer_load_dword v{T+32}, v28, s[24:27], s51 offen sc1"])
    f1.last([f2.dma_w(0) + lc1, f2.dma_w(1), f2.dma_w(2), f2.dma_w(3)])
    stamp(g, o, 5)
    g(f"s_waitcnt vmcnt({3 * f2.pW})")
    g("v_and_b32 v3, 1, v1\nv_lshlrev_b32 v3, 31, v3\nv_or_b32 v3, 1.0, v3")
    g(f"s_mul_i32 s46, s54, {BOT - AET}\ns_lshl_b32 s47, s55, 18\ns_add_u32 s46, s46, s47")
    g.srd(8, PWS, 0x40000, AET, "s46")
    g("s_lshl_b32 s50, s42, 16\ns_lshl_b32 s51, s37, 15\ns_add_u32 s50, s50, s51\ns_lshl_b32 s51, s38, 12\ns_add_u32 s50, s50, s51")
    g("v_lshlrev_b32 v2, 4, v1\ns_nop 4")
    k = 0
    for ip in range(4):
        for j in range(4):
            o4 = 4 + 4 * (k & 1); k += 1
            for ii in range(2):
                i = 2 * ip + ii
                r = f1.acc[j, i][1]
                for x in range(4):
                    g(f"v_fmac_f32 v{r+x}, v{T+4*i+x}, v3")
                g(f"v_cvt_pk_bf16_f32 v{o4+2*ii}, v{r}, v{r+1}\nv_cvt_pk_bf16_f32 v{o4+2*ii+1}, v{r+2}, v{r+3}")
            g(f"buffer_store_dwordx4 v[{o4}:{o4+3}], v2, s[8:11], s50 offen offset:{j*1024} sc1")
        g("s_add_u32 s50, s50, 0x2000")
    g("v_and_b32 v2, 15, v1\nv_lshlrev_b32 v2, 2, v2")
    g("s_lshl_b32 s50, s62, 11\ns_lshl_b32 s51, s55, 9\ns_add_u32 s50, s50, s51")
    g(f"s_lshl_b32 s52, s38, 8\ns_add_u32 s50, s50, s52\ns_add_u32 s50, s50, {RP - REC}")
    U = T + 36
    for j in range(4):
        r0 = f1.acc[j, 0][1]
        g(f"v_pk_add_f32 v[{U}:{U+1}], v[{r0}:{r0+1}], v[{r0+2}:{r0+3}]")
        for i in range(1, 8):
            r = f1.acc[j, i][1]
            g(f"v_pk_add_f32 v[{U}:{U+1}], v[{U}:{U+1}], v[{r}:{r+1}]\nv_pk_add_f32 v[{U}:{U+1}], v[{U}:{U+1}], v[{r+2}:{r+3}]")
        g(f"v_sub_f32 v{U+4+j}, v{U}, v{U+1}")
        g(f"v_mov_b32 v{U+2}, v{U+4+j}\ns_nop 1\nv_permlane32_swap_b32 v{U+4+j}, v{U+2}\ns_nop 1\nv_add_f32 v{U+4+j}, v{U+4+j}, v{U+2}")
        g(f"v_mov_b32 v{U+2}, v{U+4+j}\ns_nop 1\nv_permlane16_swap_b32 v{U+4+j}, v{U+2}\ns_nop 1\nv_add_f32 v{U+4+j}, v{U+4+j}, v{U+2}")
        g(f"buffer_store_dword v{U+4+j}, v2, s[24:27], s50 offen offset:{j*64} sc1")
    g("s_cmp_ge_u32 s62, 4\ns_cbranch_scc1 L_f1_noc2")
    g(f"v_fmac_f32 v{f1.accx}, v{T+32}, v3")
    g(f"s_add_u32 s50, s51, s52\ns_lshl_b32 s52, s62, 6\ns_add_u32 s50, s50, s52\ns_add_u32 s50, s50, {C2 - REC}")
    g(f"s_mov_b64 exec, 0xffff\nbuffer_store_dword v{f1.accx}, v2, s[24:27], s50 offen sc1\ns_mov_b64 exec, -1")
    g.label("L_f1_noc2")
    g("s_lshl_b32 s62, s55, 1\ns_add_u32 s62, s62, s37")
    f2.setup_r("s62")
    g("s_mov_b32 s101, 0x80000")
    g(f"s_lshl_b32 s46, s3, 13\nv_lshl_add_u32 v28, v1, 7, s46\nbuffer_load_dwordx4 v[{T}:{T+3}], v28, s[24:27], 0 offen offset:16 sc1")
    g(f"s_lshl_b32 s{f2.sAoff}, s42, 16\ns_lshl_b32 s47, s42, 13\nv_add_u32 v{f2.vX}, s47, v{f2.vX}")
    publish(g, 2)
    stamp(g, o, 6)
    stamp(g, o, 7)

    def x2():
        g("v_lshrrev_b32 v28, 3, v1\nv_lshlrev_b32 v28, 10, v28\nv_and_b32 v29, 3, v1\nv_lshl_add_u32 v28, v29, 8, v28")
        g(f"v_bfe_u32 v29, v1, 2, 1\nv_lshl_add_u32 v28, v29, 3, v28\ns_add_u32 s46, s46, {f2.xbase}\nv_add_u32 v28, s46, v28")
        g(f"v_cvt_pk_bf16_f32 v{T}, v{T}, v{T+1}\nv_cvt_pk_bf16_f32 v{T+1}, v{T+2}, v{T+3}\nds_write_b64 v28, v[{T}:{T+1}]")
        g("s_and_b32 s46, s43, 0xfc\nv_and_b32 v28, 3, v1\nv_add_u32 v28, s46, v28\nv_lshlrev_b32 v28, 7, v28\nv_and_b32 v29, 4, v1\nv_add_u32 v28, v28, v29")
        g(f"s_mov_b32 s63, 0x7fff\nv_mov_b32 v29, {f2.xbase}")
    f2.start(0, x2)

    def chk2():
        g(f"s_and_b32 s{f2.sAoff}, s{f2.sAoff}, 0x3ffff\ns_and_b32 s{f2.sWoff}, s{f2.sWoff}, 0x3fffff\ns_lshr_b32 s46, s{f2.sAoff}, 16")
        spin(g, 28, 2, True, lane="s46")
    f2.loop(6, "L_f2", chk=chk2)
    T = f2.vtop
    RV, AV, B, EA = T + 20, T + 32, T + 48, T + 80
    c2 = k2_ids(g, o)
    g("v_lshrrev_b32 v28, 4, v1\nv_lshlrev_b32 v28, 4, v28")
    g(f"s_lshl_b32 s50, s55, 9\ns_lshl_b32 s51, s37, 8\ns_add_u32 s51, s50, s51\ns_add_u32 s51, s51, {C2 - REC}\ns_mov_b32 s52, {0x8000 + 16}")
    lc2 = [[f"buffer_load_dwordx4 v[{T+4*i}:{T+4*i+3}], v28, s[24:27], s51 offen offset:{i*64} sc1"] for i in range(4)]
    lc2.append([f"buffer_load_dword v{T+16}, v28, s[24:27], s52 offen sc1"])
    g(f"v_and_b32 v{EA+9}, 127, v0\nv_lshlrev_b32 v{EA+9}, 2, v{EA+9}\nv_add_u32 v{EA+9}, s50, v{EA+9}\nv_lshlrev_b32 v{EA+10}, 7, v1")
    g(f"s_lshr_b32 s4, s3, 1\ns_or_b32 s4, s4, s42\ns_cmp_eq_u32 s4, 0\ns_cselect_b32 s4, 0, 0x80000000\nv_or_b32 v{EA+8}, s4, v{EA+9}")
    g(f"s_xor_b32 s4, s3, 2\ns_or_b32 s4, s4, s42\ns_or_b32 s4, s4, s55\ns_cmp_eq_u32 s4, 0\ns_cselect_b32 s4, 0, 0x80000000\nv_or_b32 v{EA+10}, s4, v{EA+10}")
    for k in range(4):
        g(f"s_mov_b32 s{44+k}, {RP - REC + 4096 * k}")
    g(f"s_mov_b32 s48, {C2 - REC}\ns_mov_b32 s49, 0x2000\ns_mov_b32 s53, 0x6000")
    lr = [[f"buffer_load_dword v{RV+k}, v{EA+8}, s[24:27], s{44+(k>>1)} offen offset:{(k&1)*2048} sc1"] for k in range(8)]
    lr.append([f"buffer_load_dword v{RV+8}, v{EA+8}, s[24:27], s48 offen sc1"])
    g("s_mov_b32 s61, 0x4000")
    lr += [[f"buffer_load_dwordx4 v[{AV+4*k}:{AV+4*k+3}], v{EA+10}, s[24:27], {('0', 's49', 's61', 's53')[k]} offen offset:16 sc1"] for k in range(4)]
    g(f"v_and_b32 v{EA+6}, 1, v1\nv_lshlrev_b32 v{EA+6}, 31, v{EA+6}\nv_or_b32 v{EA+6}, 1.0, v{EA+6}")
    g(f"s_mul_i32 s4, s54, {QQ - PP}")
    g.srd(8, PWS, 1025 * PQ_PITCH, PP, "s4")
    g(f"s_lshl_b32 s4, s3, 13\ns_add_u32 s4, s4, {LDS_AUX}")
    g("v_and_b32 v18, 15, v1\nv_and_b32 v19, 7, v1\nv_lshrrev_b32 v20, 5, v1\nv_bfe_u32 v21, v1, 4, 1")
    g(f"v_mul_u32_u24 v{EA+7}, {PQ_PITCH}, v18\nv_lshlrev_b32 v18, 7, v18\nv_lshl_add_u32 v18, v21, 3, v18\nv_add_u32 v18, s4, v18")
    for i in range(4):
        g(f"v_add_u32 v21, {2*i}, v20\nv_xor_b32 v21, v21, v19\nv_lshl_add_u32 v{EA+i}, v21, 4, v18")
    g(f"v_lshrrev_b32 v20, 3, v1\nv_xor_b32 v21, v20, v19\nv_lshlrev_b32 v18, 7, v20\nv_lshl_add_u32 v18, v21, 4, v18\nv_add_u32 v{EA+4}, s4, v18")
    g(f"v_mul_u32_u24 v{EA+5}, {PQ_PITCH}, v20\nv_lshl_add_u32 v{EA+5}, v19, 4, v{EA+5}")
    f2.last([lc2 + lr, [], [], []])
    stamp(g, o, 8)
    g(f"s_lshl_b32 s50, s42, 8\ns_lshl_b32 s51, s38, 6\ns_add_u32 s50, s50, s51\ns_mul_i32 s52, s50, {PQ_PITCH}")
    g("s_lshl_b32 s50, s55, 8\ns_lshl_b32 s51, s37, 7\ns_add_u32 s50, s50, s51\ns_add_u32 s50, s50, s52")
    g("s_waitcnt vmcnt(0)")
    for h in range(2):
        for jj in range(4):
            for i in range(4):
                r = f2.acc[4 * h + jj, i][1]
                for x in range(4):
                    g(f"v_fmac_f32 v{r+x}, v{T+4*i+x}, v{EA+6}")
                g(f"v_cvt_pk_bf16_f32 v{r}, v{r}, v{r+1}\nv_cvt_pk_bf16_f32 v{r+1}, v{r+2}, v{r+3}")
                g(f"ds_write_b64 v{EA+i}, v[{r}:{r+1}] offset:{jj*2048}")
        g("s_waitcnt lgkmcnt(0)")
        for n in range(8):
            g(f"ds_read_b128 v[{B+4*n}:{B+4*n+3}], v{EA+4} offset:{n*1024}")
        for n in range(8):
            g(f"s_add_u32 s51, s50, {(h*128 + n*8) * PQ_PITCH}\ns_waitcnt lgkmcnt({7-n})")
            g(f"buffer_store_dwordx4 v[{B+4*n}:{B+4*n+3}], v{EA+5}, s[8:11], s51 offen sc1")
    g(f"v_fmac_f32 v{f2.accx}, v{T+16}, v{EA+6}\ns_cmp_eq_u32 s54, 0\ns_cselect_b32 s46, -1, 0")
    g(f"v_cvt_pk_bf16_f32 v16, v{f2.accx}, v{f2.accx}\nv_and_b32 v16, s46, v16")
    g(f"s_lshr_b32 s46, s62, 2\ns_lshl_b32 s46, s46, 7\ns_and_b32 s47, s62, 3\ns_lshl_b32 s47, s47, 4\ns_add_u32 s46, s46, s47")
    g(f"s_mul_i32 s46, s46, {PQ_PITCH}\ns_add_u32 s46, s46, s52")
    g("v_and_b32 v16, 0xffff, v16\nv_lshrrev_b32 v17, 3, v1\nv_lshlrev_b32 v17, 2, v17\nv_add_u32 v18, 32, v17\nv_and_b32 v19, 7, v1\nv_cmp_eq_u32 vcc, 0, v19")
    g("ds_bpermute_b32 v4, v17, v16\nds_bpermute_b32 v8, v18, v16")
    g("v_mov_b32 v5, 0\nv_mov_b32 v6, 0\nv_mov_b32 v7, 0\nv_mov_b32 v9, 0\nv_mov_b32 v10, 0\nv_mov_b32 v11, 0\ns_waitcnt lgkmcnt(0)")
    g(f"v_cndmask_b32 v4, 0, v4, vcc\nv_cndmask_b32 v8, 0, v8, vcc\ns_add_u32 s47, s46, {8 * PQ_PITCH}")
    g(f"buffer_store_dwordx4 v[4:7], v{EA+5}, s[8:11], s46 offen offset:1024 sc1\nbuffer_store_dwordx4 v[8:11], v{EA+5}, s[8:11], s47 offen offset:1024 sc1")
    g("s_cmp_lg_u32 s42, 0\ns_cbranch_scc1 L_f2_done\ns_cmp_ge_u32 s3, 2\ns_cbranch_scc1 L_f2_corner")
    for k in range(8):
        g(f"v_add_f32 v{RV+8}, v{RV+8}, v{RV+k}")
    g(f"v_cvt_pk_bf16_f32 v12, v{RV+8}, v{RV+8}\nv_lshrrev_b32 v2, 1, v{EA+9}\ns_mov_b32 s51, {1024 * PQ_PITCH}")
    g("buffer_store_short v12, v2, s[8:11], s51 offen sc1\ns_branch L_f2_done")
    g.label("L_f2_corner")
    g("s_cmp_lg_u32 s3, 2\ns_cbranch_scc1 L_f2_done\ns_cmp_lg_u32 s55, 0\ns_cbranch_scc1 L_f2_done")
    for k in range(2, 16, 2):
        g(f"v_pk_add_f32 v[{AV}:{AV+1}], v[{AV}:{AV+1}], v[{AV+k}:{AV+k+1}]")
    g(f"v_sub_f32 v4, v{AV}, v{AV+1}")
    wave_sum(g, [4])
    g(f"v_readlane_b32 s50, v4, 63\ns_mov_b32 s51, {1024 * PQ_PITCH + 1024}\ns_nop 0\nv_add_f32 v4, s50, v{T+16}\nv_cvt_pk_bf16_f32 v12, v4, v4\nv_lshlrev_b32 v2, 2, v1")
    g("s_mov_b64 exec, 0xffffffff\nbuffer_store_dword v12, v2, s[8:11], s51 offen sc1\ns_mov_b64 exec, -1")
    g.label("L_f2_done")
    stamp(g, o, 16)
    k2_setup(g, o, c2)
    c2.flat(k2_tail_setup(g, o))
    for (kind, r) in c2.acc.values():
        for x in range(4):
            g(f"v_mov_b32 v{r+x}, 0")
    publish(g, 3)
    stamp(g, o, 9)
    tile_pick(g, 4)
    g("s_barrier")
    tile_get(g)
    stamp(g, o, 10)
    stamp(g, o, 17)
    c2.flat(c2.restart())
    stamp(g, o, 18)
    g("s_mov_b32 s46, 6")

    g.label("L_k2")
    g("v_mov_b32 v30, 0")
    tile_pick(g)
    g(f"s_waitcnt vmcnt({3 * c2.pW + 2 * c2.pA})\ns_barrier\nds_read_b32 v17, v16")
    c2.flat(c2.reads(0, 0))

    def pick_next():
        lab = g.newlabel("pn")
        g(f"s_cmp_eq_u32 s97, 0\ns_cbranch_scc1 {lab}")
        tile_pick(g)
        g.label(lab)

    def head0():
        lab = g.newlabel("h0")
        g(f"v_readfirstlane_b32 s99, v17\ns_cmp_lg_u32 s{c2.sCnt}, 1\ns_cbranch_scc1 {lab}\nbuffer_load_dword v28, v22, s[28:31], 0 offen sc1")
        g.label(lab)
    c2.loop("s46", "L_k2_loop", chk={0: head0, 3: pick_next})
    stamp(g, o, 13)
    blocks = []
    for i in (1, 2, 3, 0):
        for k in range(4):
            work = []
            if i:
                d = 192 + 4 * (len(blocks) & 3)
                for jj in range(2):
                    r = c2.acc[2 * k + jj, i][1]
                    work += [f"v_cvt_pk_bf16_f32 v{d+2*jj}, v{r}, v{r+1}", f"v_cvt_pk_bf16_f32 v{d+2*jj+1}, v{r+2}, v{r+3}"]
                work.append(f"buffer_store_dwordx4 v[{d}:{d+3}], v29, s[24:27], s{49+i} offen offset:{k*1024} sc1")
            blocks.append(([(2 * k, i), (2 * k + 1, i)], work))
    rec = Rec(g)
    tile_dma(rec, 12, PS, 4096, " sc1")
    tile_dma(rec, 16, PS, 8192, " sc1")
    pq = [[x] for grp in rec.items for x in grp if x != "s_nop 0"]
    c2.last([pq[:5], pq[5:], [], []], pres=[lambda: spin(g, 22, 3, True, vf=28), None, None, None], final=(blocks, 3, 1) if o.get('two2', 1) else (blocks, 4))
    stamp(g, o, 11)
    g("s_waitcnt vmcnt(12)")
    sent = 0
    Y, XF, PT, RD = 64, 96, 208, 128
    for j in range(8):
        g(f"ds_read_b64 v[{RD+4*j}:{RD+4*j+1}], v{AP+j} offset:4096\nds_read_b64 v[{RD+4*j+2}:{RD+4*j+3}], v{AP+j} offset:8192")
    g.srd(20, POUT, S * D * 2)
    g("s_mov_b32 s44, 0xbfb8aa3b\ns_mov_b32 s45, 0xbfb8aa3b\ns_mov_b32 s54, 0xffff0000\ns_mov_b32 s46, 1.0\ns_mov_b32 s47, 1.0")
    g("s_mov_b32 s48, 0x3f80\ns_mov_b32 s49, 0x3f800000\ns_add_u32 s4, s100, 7\nv_mov_b32 v28, s4")
    g("s_cmp_ge_u32 s57, 4\ns_cbranch_scc1 L_k2_rev")
    for rev in (0, 1):
        if rev:
            g("s_branch L_k2_y")
            g.label("L_k2_rev")
        for j in range(8):
            g(f"s_waitcnt lgkmcnt({14 - 2*j})")
            for src, dst in ((RD + 4 * j, Y + 4 * j), (RD + 4 * j + 2, 4)):
                for x in range(4):
                    d = dst + (3 - x if rev else x)
                    w = src + (x >> 1)
                    g(f"v_and_b32 v{d}, s54, v{w}" if x & 1 else f"v_lshlrev_b32 v{d}, 16, v{w}")
            y = Y + 4 * j
            g(f"v_pk_fma_f32 v[{y}:{y+1}], v[4:5], s[62:63], v[{y}:{y+1}]\nv_pk_fma_f32 v[{y+2}:{y+3}], v[6:7], s[62:63], v[{y+2}:{y+3}]")
    g.label("L_k2_y")
    for j in range(8):
        g(f"ds_read_b64 v[{RD+2*j}:{RD+2*j+1}], v{AX+j}")
    g("s_waitcnt vmcnt(0)\ns_mov_b64 exec, 3\nbuffer_store_dword v28, v27, s[28:31], 0 offen sc1\ns_mov_b64 exec, -1")
    g("buffer_load_dword v30, v23, s[28:31], 0 offen sc1")
    stamp(g, o, 14)
    for j in range(8):
        g(f"s_waitcnt lgkmcnt({7 - j})")
        g(f"v_lshlrev_b32 v{XF+4*j}, 16, v{RD+2*j}\nv_and_b32 v{XF+4*j+1}, s54, v{RD+2*j}\nv_lshlrev_b32 v{XF+4*j+2}, 16, v{RD+2*j+1}\nv_and_b32 v{XF+4*j+3}, s54, v{RD+2*j+1}")
    g("s_waitcnt vmcnt(0)")
    spin(g, 23, 7, True)
    stamp(g, o, 15)
    for k in range(4):
        for i in range(3):
            g(f"s_add_u32 s4, s53, {i*16384}\nbuffer_load_dwordx4 v[{PT+16*i+4*k}:{PT+16*i+4*k+3}], v29, s[24:27], s4 offen offset:{k*1024} sc1")
    for j in range(8):
        r = c2.acc[j, 0][1]
        if j % 2 == 0 and not sent:
            g(f"s_waitcnt vmcnt({9 - 3 * (j >> 1)})")
        for i in range(3):
            w = PT + 16 * i + 2 * j
            for x in range(4):
                g(f"v_dot2c_f32_bf16 v{r+x}, s{48 + (x & 1)}, v{w + (x >> 1)}")
        g(f"s_nop 1\nv_pk_mul_f32 v[4:5], v[{r}:{r+1}], s[44:45]\nv_pk_mul_f32 v[6:7], v[{r+2}:{r+3}], s[44:45]")
        for x in range(4):
            g(f"v_exp_f32 v{4+x}, v{4+x}")
        g("s_nop 0\nv_pk_add_f32 v[4:5], v[4:5], s[46:47]\nv_pk_add_f32 v[6:7], v[6:7], s[46:47]")
        for x in range(4):
            g(f"v_rcp_f32 v{4+x}, v{4+x}")
        y, xf = Y + 4 * j, XF + 4 * j
        g(f"v_pk_mul_f32 v[{y}:{y+1}], v[{y}:{y+1}], v[{r}:{r+1}]\nv_pk_mul_f32 v[{y+2}:{y+3}], v[{y+2}:{y+3}], v[{r+2}:{r+3}]")
        g(f"v_pk_fma_f32 v[{xf}:{xf+1}], v[4:5], v[{y}:{y+1}], v[{xf}:{xf+1}]\nv_pk_fma_f32 v[{xf+2}:{xf+3}], v[6:7], v[{y+2}:{y+3}], v[{xf+2}:{xf+3}]")
        g(f"v_cvt_pk_bf16_f32 v{xf}, v{xf}, v{xf+1}\nv_cvt_pk_bf16_f32 v{xf+1}, v{xf+2}, v{xf+3}")
        g(f"ds_write_b64 v{AX+j}, v[{xf}:{xf+1}]")
    for n in range(4):
        g(f"ds_read_b128 v[{RD+4*n}:{RD+4*n+3}], v{RB+n}")
    for n in range(4):
        g(f"s_waitcnt lgkmcnt({3-n})\nbuffer_store_dwordx4 v[{RD+4*n}:{RD+4*n+3}], v{GO+n}, s[20:23], s61 offen{o.get('opol', '')}")
    stamp_flush(g, o, 12)
    g.label("L_done")
    g("s_endpgm")
    g.label("L_end")
    g("s_endpgm")
    g.kd(NAME, 256 + 224, 102, 256)


HEADER = open("recurrent_scan__spectral_fnet__glu_gated_bilinear__prompt.s.ref").read().split("\n")


def build(o=None):
    o = dict(o or {})
    global ASC
    ASC = ' sc1' if o.get('asc1', 0) else ''
    g = G()
    main_kernel(g, o)
    if o.get("aslist"):
        launch = f"; @launch kernel={NAME} grid=(256,1,1) block=(256,1,1) lds={LDS_TOTAL}"
    else:
        launch = f"; @launch grid=(256,1,1) block=(256,1,1) lds={LDS_TOTAL}"
    txt = "\n".join(HEADER[:13] + [launch]) + '\n.amdgcn_target "amdgcn-amd-amdhsa--gfx950"\n.text\n'
    txt += "\n".join(g.L) + '\n.section .rodata,"a"\n' + "\n".join(g.kds) + "\n"
    return txt


if __name__ == "__main__":
    out = sys.argv[1] if len(sys.argv) > 1 else "recurrent_scan__spectral_fnet__glu_gated_bilinear__prompt.s"
    o = eval(sys.argv[2]) if len(sys.argv) > 2 else {}
    open(out, "w").write(build(o))
```

```python
import sys

S, D, F = 2048, 1024, 3584
XN   = 0x0000000
H    = 0x0400000
XEE  = 0x1200000
XEEX = 0x1300000
XOO  = 0x1400000
AET  = 0x1500000
BOT  = 0x1600000
PP   = 0x1700000
QQ   = 0x1900000
REC  = 0x1D00000
C2   = 0x1D09000
RP   = 0x1D0A000
FLG  = 0x1E00000
PART = 0x2000000
STAMP = 0x3000000
PQ_PITCH = 1152
NAME = "recurrent_scan__spectral_fnet__glu_gated_bilinear__prompt_kernel"
PX, PSR, PSI, PHR, PHI, PWG, PWU, PWD, POUT, PDBG, PWS = 64, 66, 68, 70, 72, 76, 78, 80, 82, 84, 86
LDS_AUX = 0x20000
LDS_TOTAL = 0x28000
HSTG = 0x14000
VST = 31
ASC = ' sc1'


class G:
    def __init__(s):
        s.L = []
        s.kds = []
        s.uid = 0

    def __call__(s, txt):
        for ln in txt.split("\n"):
            ln = ln.strip()
            if ln:
                s.L.append("  " + ln)

    def label(s, n):
        s.L.append(n + ":")

    def newlabel(s, p="L"):
        s.uid += 1
        return f"{p}_{s.uid}"

    def begin(s, name):
        s.L.append(f".globl {name}\n.p2align 8\n.type {name},@function\n{name}:")

    def kd(s, name, vgpr, sgpr, accum):
        s.kds.append(f""".p2align 6
.amdhsa_kernel {name}
  .amdhsa_next_free_vgpr {vgpr}
  .amdhsa_next_free_sgpr {sgpr}
  .amdhsa_accum_offset {accum}
  .amdhsa_group_segment_fixed_size 0
  .amdhsa_kernarg_size 96
  .amdhsa_user_sgpr_count 2
  .amdhsa_user_sgpr_kernarg_segment_ptr 1
  .amdhsa_system_sgpr_workgroup_id_x 1
.end_amdhsa_kernel""")

    def srd(s, d, ptr, nbytes, const=0, soff=None):
        lo, hi = ptr, ptr + 1
        if soff is not None:
            s(f"s_add_u32 s{d}, s{lo}, {soff}\ns_addc_u32 s{d+1}, s{hi}, 0")
            lo, hi = d, d + 1
        if const > 0:
            s(f"s_add_u32 s{d}, s{lo}, {const:#x}\ns_addc_u32 s{d+1}, s{hi}, 0")
        elif const < 0:
            s(f"s_sub_u32 s{d}, s{lo}, {-const:#x}\ns_subb_u32 s{d+1}, s{hi}, 0")
        elif soff is None:
            s(f"s_mov_b32 s{d}, s{lo}\ns_mov_b32 s{d+1}, s{hi}")
        nb = nbytes if isinstance(nbytes, str) else f"{nbytes:#x}"
        s(f"s_mov_b32 s{d+2}, {nb}\ns_mov_b32 s{d+3}, 0x20000")


def stamp(g, o, idx):
    if o.get("stamp"):
        g(f"s_memtime s[88:89]\ns_waitcnt lgkmcnt(0)\nv_writelane_b32 v{VST}, s88, {idx}")
        if idx in (4, 5, 18, 13):
            g(f"s_memrealtime s[88:89]\ns_waitcnt lgkmcnt(0)\nv_writelane_b32 v{VST}, s88, {20 + (4, 5, 18, 13).index(idx)}")
        if idx == 0:
            g(f"s_memrealtime s[88:89]\ns_waitcnt lgkmcnt(0)\nv_writelane_b32 v{VST}, s88, 30")


def stamp_flush(g, o, idx):
    if not o.get("stamp"):
        return
    lab = g.newlabel("st")
    g("s_waitcnt vmcnt(0)")
    stamp(g, o, idx)
    g(f"s_memrealtime s[88:89]\ns_waitcnt lgkmcnt(0)\nv_writelane_b32 v{VST}, s88, 31")
    g(f"s_cmp_lg_u32 s3, 0\ns_cbranch_scc1 {lab}")
    g.srd(92, PWS, 0x100000, STAMP)
    g("v_lshlrev_b32 v0, 2, v1\ns_lshl_b32 s90, s2, 7\ns_mov_b64 exec, 0xffffffff")
    g(f"buffer_store_dword v{VST}, v0, s[92:95], s90 offen")
    g.label(lab)


def wave_sum(g, regs):
    steps = ["quad_perm:[1,0,3,2] row_mask:0xf", "quad_perm:[2,3,0,1] row_mask:0xf", "row_half_mirror row_mask:0xf",
             "row_mirror row_mask:0xf", "row_bcast:15 row_mask:0xa", "row_bcast:31 row_mask:0xc"]
    for st in steps:
        g("s_nop 1" if len(regs) == 1 else "s_nop 0")
        for r in regs:
            g(f"v_add_f32_dpp v{r}, v{r}, v{r} {st} bank_mask:0xf")
    g("s_nop 1")


def tag_issue(g):
    lab = g.newlabel("tg")
    g.srd(28, PDBG, 256)
    g(f"v_mov_b32 v18, 0\ns_or_b32 s4, s2, s3\ns_cmp_lg_u32 s4, 0\ns_cbranch_scc1 {lab}")
    g("s_memrealtime s[4:5]\ns_waitcnt lgkmcnt(0)\ns_lshl_b32 s4, s4, 3\ns_or_b32 s4, s4, 0x80000000\nv_mov_b32 v19, s4")
    g("buffer_store_dword v19, v18, s[28:31], 0 offen sc1")
    g.label(lab)


def tag_load(g):
    g("buffer_load_dword v30, v18, s[28:31], 0 offen sc1")


def tag_get(g):
    l0, l1 = g.newlabel("tg"), g.newlabel("tgd")
    g("s_mov_b32 s5, 0x80000\nv_mov_b32 v18, 0")
    g.label(l0)
    g(f"v_readfirstlane_b32 s100, v30\ns_sub_u32 s5, s5, 1\ns_cbranch_scc1 {l1}\ns_cmp_lg_u32 s100, 0\ns_cbranch_scc1 {l1}")
    g(f"s_sleep 1\nbuffer_load_dword v30, v18, s[28:31], 0 offen sc1\ns_waitcnt vmcnt(0)\ns_branch {l0}")
    g.label(l1)
    g.srd(28, PWS, 0x8000, FLG)


def publish(g, val, first=False, younger=0, wave=0):
    lab = g.newlabel("pub")
    g(f"s_waitcnt vmcnt({younger})")
    if first:
        tag_get(g)
    g("s_barrier")
    g(f"s_cmp_lg_u32 s3, {wave}\ns_cbranch_scc1 {lab}")
    g(f"s_lshl_b32 s4, s43, 7\ns_add_u32 s5, s100, {val}\nv_lshl_add_u32 v18, v1, 2, s4\nv_mov_b32 v19, s5\ns_mov_b64 exec, 0xffffffff")
    g("buffer_store_dword v19, v18, s[28:31], 0 offen sc1\ns_mov_b64 exec, -1")
    g.label(lab)


def flag_bad(g, vals):
    for k, (vf, thr) in enumerate(vals):
        g(f"v_subrev_u32 v{vf}, s100, v{vf}\nv_subrev_u32 v{vf}, {thr}, v{vf}")
        if k:
            g(f"v_max_u32 v{vals[0][0]}, v{vals[0][0]}, v{vf}")
    g(f"v_cmp_lt_u32 vcc, 7, v{vals[0][0]}")


def poll(g, addrs, sleep=1, wave=0):
    l0, l1 = g.newlabel("poll"), g.newlabel("polld")
    g(f"s_cmp_lg_u32 s3, {wave}\ns_cbranch_scc1 {l1}\ns_mov_b32 s5, 0x80000")
    g.label(l0)
    for k, (va, thr) in enumerate(addrs):
        g(f"buffer_load_dwordx2 v[{40+2*k}:{41+2*k}], v{va}, s[28:31], 0 offen sc1")
    g("s_waitcnt vmcnt(0)")
    flag_bad(g, [(40 + k, addrs[k >> 1][1]) for k in range(2 * len(addrs))])
    g(f"s_sub_u32 s5, s5, 1\ns_cbranch_scc1 {l1}")
    g(f"s_cbranch_vccz {l1}\ns_sleep {sleep}\ns_branch {l0}")
    g.label(l1)
    g("s_barrier")


XP, EP = 2064, 1040
LN_EB = LDS_AUX + 8 * XP
LN_OB = LN_EB + 5 * EP
LN_RB = LN_OB + 4 * EP


def ln_loads(g):
    g("v_lshlrev_b32 v32, 4, v1\nv_sub_u32 v33, 0x7f0, v32")
    g("s_lshl_b32 s44, s43, 2\ns_add_u32 s44, s44, s3")
    g("s_sub_u32 s45, 2048, s44\ns_cmp_eq_u32 s44, 0\ns_cselect_b32 s45, 1024, s45")
    g("s_lshl_b32 s46, s44, 11\ns_lshl_b32 s47, s45, 11")
    g("s_waitcnt lgkmcnt(0)")
    g.srd(20, PX, S * D * 2)
    g("buffer_load_dwordx4 v[40:43], v32, s[20:23], s46 offen\nbuffer_load_dwordx4 v[44:47], v33, s[20:23], s46 offen")
    g("buffer_load_dwordx4 v[48:51], v32, s[20:23], s47 offen\nbuffer_load_dwordx4 v[52:55], v33, s[20:23], s47 offen")


def ln_body(g0, o, younger, pfx, fill, warm):
    fill = list(fill)

    class Spr:
        n = 0
        on = False

        def __call__(s, txt):
            for ln in txt.split("\n"):
                g0(ln)
                if s.on and ln.strip().startswith("v_") and "dpp" not in ln and "readlane" not in ln and "v_cmp" not in ln:
                    s.n += 1
                    if s.n % 10 == 0 and fill:
                        for ins in fill.pop(0):
                            g0("s_nop 0" if ins == "@" else ins)

        def __getattr__(s, k):
            return getattr(g0, k)
    g = Spr()
    XA, XB = 56, 72
    g.srd(24, PWS, 0x2000000)
    g("s_mov_b32 s48, 0xffff0000")
    g(f"s_waitcnt vmcnt({younger + 2})")
    stamp(g, o, 1)
    for i in range(8):
        g(f"v_lshlrev_b32 v{XA+2*i}, 16, v{40+i}\nv_and_b32 v{XA+2*i+1}, s48, v{40+i}")
    g(f"s_waitcnt vmcnt({younger})")
    if warm:
        g(f"s_cmp_lg_u32 s3, 3\ns_cbranch_scc1 {pfx}_nowarm")
        warm()
        g.label(pfx + "_nowarm")
    g.on = True
    for i in range(8):
        g(f"v_lshlrev_b32 v{XB+2*i}, 16, v{48+i}\nv_and_b32 v{XB+2*i+1}, s48, v{48+i}")
    MA, MB, VA, VB = 88, 92, 96, 100
    for X, T in ((XA, MA), (XB, MB)):
        g(f"v_pk_add_f32 v[{T}:{T+1}], v[{X}:{X+1}], v[{X+2}:{X+3}]")
        g(f"v_pk_add_f32 v[{T+2}:{T+3}], v[{X+4}:{X+5}], v[{X+6}:{X+7}]")
        for i in (8, 12):
            g(f"v_pk_add_f32 v[{T}:{T+1}], v[{T}:{T+1}], v[{X+i}:{X+i+1}]")
            g(f"v_pk_add_f32 v[{T+2}:{T+3}], v[{T+2}:{T+3}], v[{X+i+2}:{X+i+3}]")
        g(f"v_pk_add_f32 v[{T}:{T+1}], v[{T}:{T+1}], v[{T+2}:{T+3}]")
        g(f"v_add_f32 v{T}, v{T}, v{T+1}")
    wave_sum(g, [MA, MB])
    g(f"v_readlane_b32 s50, v{MA}, 63\nv_readlane_b32 s51, v{MB}, 63\nv_mov_b32 v34, 0x3a800000\ns_nop 0")
    g(f"v_mul_f32 v{MA}, s50, v34\nv_mul_f32 v{MB}, s51, v34\nv_mov_b32 v{MA+1}, v{MA}\nv_mov_b32 v{MB+1}, v{MB}")
    for T in (VA, VB):
        g(f"v_mov_b32 v{T}, 0\nv_mov_b32 v{T+1}, 0")
    for i in range(0, 16, 2):
        for X, M, T in ((XA, MA, VA), (XB, MB, VB)):
            g(f"v_pk_add_f32 v[{T+2}:{T+3}], v[{X+i}:{X+i+1}], v[{M}:{M+1}] neg_lo:[0,1] neg_hi:[0,1]")
        for X, M, T in ((XA, MA, VA), (XB, MB, VB)):
            g(f"v_pk_fma_f32 v[{T}:{T+1}], v[{T+2}:{T+3}], v[{T+2}:{T+3}], v[{T}:{T+1}]")
    g(f"v_add_f32 v{VA}, v{VA}, v{VA+1}\nv_add_f32 v{VB}, v{VB}, v{VB+1}")
    wave_sum(g, [VA, VB])
    g(f"v_readlane_b32 s50, v{VA}, 63\nv_readlane_b32 s51, v{VB}, 63")
    g(f"v_cvt_pk_bf16_f32 v{MA+2}, v{MA}, v{MB}\ns_nop 0")
    g(f"v_mul_f32 v{VA}, s50, v34\nv_mul_f32 v{VB}, s51, v34")
    g(f"v_lshlrev_b32 v{MA}, 16, v{MA+2}\nv_and_b32 v{MB}, s48, v{MA+2}")
    g(f"v_cvt_pk_bf16_f32 v{VA+1}, v{VA}, v{VB}")
    g(f"v_mov_b32 v{MA+1}, v{MA}\nv_mov_b32 v{MB+1}, v{MB}")
    g(f"v_lshlrev_b32 v{VA}, 16, v{VA+1}\nv_and_b32 v{VB}, s48, v{VA+1}")
    g(f"v_add_f32 v{VA}, 0x3727c5ac, v{VA}\nv_add_f32 v{VB}, 0x3727c5ac, v{VB}")
    g(f"v_cvt_pk_bf16_f32 v{VA+1}, v{VA}, v{VB}")
    g(f"v_lshlrev_b32 v{VA}, 16, v{VA+1}\nv_and_b32 v{VB}, s48, v{VA+1}")
    g(f"v_sqrt_f32 v{VA}, v{VA}\nv_sqrt_f32 v{VB}, v{VB}")
    for X, M, PKD in ((XA, MA, 40), (XB, MB, 48)):
        for i in range(8):
            a = X + 2 * i
            g(f"v_pk_add_f32 v[{a}:{a+1}], v[{a}:{a+1}], v[{M}:{M+1}] neg_lo:[0,1] neg_hi:[0,1]")
    g(f"v_cvt_pk_bf16_f32 v{VA+1}, v{VA}, v{VB}")
    g(f"v_lshlrev_b32 v{VA}, 16, v{VA+1}\nv_and_b32 v{VB}, s48, v{VA+1}")
    g(f"v_rcp_f32 v{VA}, v{VA}\nv_rcp_f32 v{VB}, v{VB}")
    for X, PKD in ((XA, 40), (XB, 48)):
        for i in range(8):
            g(f"v_cvt_pk_bf16_f32 v{PKD+i}, v{X+2*i}, v{X+2*i+1}")
    g(f"v_mov_b32 v{VA+1}, v{VA}\nv_mov_b32 v{VB+1}, v{VB}")
    for X, R, PKD in ((XA, VA, 40), (XB, VB, 48)):
        for i in range(8):
            a = X + 2 * i
            g(f"v_lshlrev_b32 v{a}, 16, v{PKD+i}\nv_and_b32 v{a+1}, s48, v{PKD+i}")
        for i in range(8):
            a = X + 2 * i
            g(f"v_pk_mul_f32 v[{a}:{a+1}], v[{a}:{a+1}], v[{R}:{R+1}]")
        for i in range(8):
            g(f"v_cvt_pk_bf16_f32 v{PKD+i}, v{X+2*i}, v{X+2*i+1}")
    g.on = False
    assert not fill
    g(f"s_mul_i32 s49, s3, {XP}\ns_add_u32 s49, s49, {LDS_AUX}")
    g("v_add_u32 v35, s49, v32\nv_add_u32 v36, s49, v33")
    g("ds_write_b128 v35, v[40:43]\nds_write_b128 v36, v[44:47]")
    g(f"ds_write_b128 v35, v[48:51] offset:{4*XP}\nds_write_b128 v36, v[52:55] offset:{4*XP}")
    for X, PKD in ((XA, 40), (XB, 48)):
        for i in range(8):
            a = X + 2 * i
            g(f"v_lshlrev_b32 v{a}, 16, v{PKD+i}\nv_and_b32 v{a+1}, s48, v{PKD+i}")
    g(f"s_mul_i32 s49, s3, {EP}\ns_add_u32 s49, s49, {LN_EB}\nv_add_u32 v37, s49, v32")
    E, O, PK, TM = 104, 120, 136, 140

    def dfold(src, sign):
        op = "v_add_f32" if sign > 0 else "v_sub_f32"
        g(f"s_nop 1\nv_mov_b32_dpp v{TM+8}, v{src+8} wave_shr:1 row_mask:0xf bank_mask:0xf bound_ctrl:0")
        for j in range(1, 8):
            g(f"{op} v{TM+j}, v{src+j}, v{src+16-j}")
        g(f"{op} v{TM}, v{src}, v{TM+8}")
        for j in range(4):
            g(f"v_cvt_pk_bf16_f32 v{PK+j}, v{TM+2*j}, v{TM+2*j+1}")

    def even_row(src, lds_off, own):
        dfold(src, +1)
        g(f"ds_write_b128 v37, v[{PK}:{PK+3}] offset:{lds_off}")
        g(f"v_pk_add_f32 v[{TM}:{TM+1}], v[{src}:{src+1}], v[{src+2}:{src+3}]")
        for i in range(4, 16, 2):
            g(f"v_pk_add_f32 v[{TM}:{TM+1}], v[{TM}:{TM+1}], v[{src+i}:{src+i+1}]")
        g(f"v_sub_f32 v{TM}, v{TM}, v{TM+1}")
        wave_sum(g, [TM])
        g("s_mov_b32 exec_lo, 0\ns_mov_b32 exec_hi, 0x80000000")
        if own:
            g(f"s_lshl_b32 s50, s3, 2\ns_add_u32 s50, s50, {LN_RB}\nv_mov_b32 v{TM+2}, s50")
            g(f"ds_write_b32 v{TM+2}, v{src+8}\nds_write_b32 v{TM+2}, v{TM} offset:16")
        else:
            g(f"v_readlane_b32 s51, v{src+8}, 63\nv_readlane_b32 s52, v{TM}, 63\ns_mov_b64 exec, 0xffffffff\ns_mov_b32 s50, {REC + 256*128:#x}")
            g(f"v_mov_b32 v{TM+3}, s52\nv_lshlrev_b32 v{TM+2}, 2, v1\nv_writelane_b32 v{TM+3}, s51, 0")
            g(f"buffer_store_dword v{TM+3}, v{TM+2}, s[24:27], s50 offen sc1")
        g("s_mov_b64 exec, -1")

    lz, lj, ld = pfx + "_pair0", pfx + "_join", pfx + "_lnd"
    g(f"s_cmp_eq_u32 s44, 0\ns_cbranch_scc1 {lz}")
    for i in range(0, 16, 2):
        g(f"v_pk_add_f32 v[{O+i}:{O+i+1}], v[{XA+i}:{XA+i+1}], v[{XB+i}:{XB+i+1}] neg_lo:[0,1] neg_hi:[0,1]")
    for i in range(0, 16, 2):
        g(f"v_pk_add_f32 v[{E+i}:{E+i+1}], v[{XA+i}:{XA+i+1}], v[{XB+i}:{XB+i+1}]")
    dfold(O, -1)
    g(f"ds_write_b128 v37, v[{PK}:{PK+3}] offset:{LN_OB - LN_EB}")
    even_row(E, 0, True)
    g(f"s_branch {lj}")
    g.label(lz)
    even_row(XA, 0, True)
    even_row(XB, 4 * EP, False)
    for j in range(4):
        g(f"v_mov_b32 v{PK+j}, 0")
    g(f"ds_write_b128 v37, v[{PK}:{PK+3}] offset:{LN_OB - LN_EB}")
    g.label(lj)
    g("v_and_b32 v40, 3, v1\nv_lshrrev_b32 v49, 4, v1\nv_bfe_u32 v50, v1, 2, 2")
    g(f"s_mov_b32 s49, {LDS_AUX}\ns_cmp_eq_u32 s3, 1\ns_cselect_b32 s49, {LDS_AUX + 4*XP}, s49\ns_cselect_b32 s48, 0x200000, 0")
    g(f"s_lshr_b32 s50, s43, 6\ns_lshl_b32 s51, s50, 19\ns_add_u32 s48, s48, s51\ns_add_u32 s53, s48, 0x40000\ns_lshl_b32 s50, s50, 18")
    g(f"s_add_u32 s46, s50, {XEE:#x}\ns_add_u32 s47, s50, {XOO:#x}\ns_mov_b32 s51, {XP}\ns_mov_b32 s52, 1024\ns_cmp_eq_u32 s3, 2")
    g(f"s_cselect_b32 s49, {LN_EB}, s49\ns_cselect_b32 s51, {EP}, s51\ns_cselect_b32 s52, {LN_OB - LN_EB}, s52\ns_cselect_b32 s48, s46, s48\ns_cselect_b32 s53, s47, s53")
    g("s_and_b32 s50, s43, 63\ns_lshl_b32 s50, s50, 8\nv_and_b32 v46, 15, v1\nv_lshlrev_b32 v46, 4, v46\nv_lshl_add_u32 v46, v49, 14, v46\nv_add_u32 v46, s50, v46")
    g("v_mul_lo_u32 v53, v40, s51\nv_lshl_add_u32 v53, v49, 6, v53\nv_lshl_add_u32 v53, v50, 3, v53\nv_add_u32 v53, s49, v53\nv_add_u32 v54, s52, v53")
    g("v_mov_b32 v18, 0\ns_waitcnt lgkmcnt(0)\ns_barrier")
    stamp(g, o, 2)
    tag_load(g)
    g(f"s_cmp_eq_u32 s3, 3\ns_cbranch_scc1 {ld}")
    for n in range(8):
        g(f"ds_read2_b64 v[{56+4*n}:{59+4*n}], v{53 + (n >> 2)} offset0:{(n&3)*32} offset1:{(n&3)*32+4}")
    for n in range(8):
        sr = 48 if n < 4 else 53
        g(f"s_waitcnt lgkmcnt({7-n})\nbuffer_store_dwordx4 v[{56+4*n}:{59+4*n}], v46, s[24:27], s{sr} offen sc1\ns_add_u32 s{sr}, s{sr}, 0x10000")
    g(f"s_cmp_lg_u32 s3, 2\ns_cbranch_scc1 {ld}")
    g(f"v_lshlrev_b32 v51, 2, v1\nv_add_u32 v52, {LN_RB}, v51\ns_lshl_b32 s52, s43, 7\ns_add_u32 s52, s52, {REC:#x}\ns_mov_b64 exec, 0xffffffff")
    g("ds_read_b32 v90, v52\ns_waitcnt lgkmcnt(0)\nbuffer_store_dword v90, v51, s[24:27], s52 offen sc1\ns_mov_b64 exec, -1")
    g(f"s_cmp_lg_u32 s43, 0\ns_cbranch_scc1 {ld}")
    g("v_lshrrev_b32 v49, 2, v1\nv_and_b32 v50, 3, v1\nv_lshlrev_b32 v51, 4, v1")
    g("v_lshlrev_b32 v52, 6, v49\nv_lshl_add_u32 v52, v50, 3, v52")
    g(f"v_add_u32 v52, {LN_EB + 4*EP}, v52")
    g("ds_read2_b64 v[92:95], v52 offset0:0 offset1:4")
    g(f"s_mov_b32 s52, {XEEX:#x}")
    g("s_waitcnt lgkmcnt(0)\nbuffer_store_dwordx4 v[92:95], v51, s[24:27], s52 offen sc1")
    g.label(ld)


class Core:
    NS = 4

    def __init__(s, g, MF, nh, SUBS, act_first, wpitch, xblocks=0, span=0.85, wsrd=12, vW=13, sW=(33, 35), tch=False, dact=False):
        s.g, s.MF, s.nh, s.SUBS, s.act_first, s.wpitch = g, MF, nh, SUBS, act_first, wpitch
        s.dact = dact
        s.NF = (8 if dact else 4) * nh
        s.nA = MF if dact else MF // 2
        s.gact = (4 if dact else 2) * MF * 1024
        s.actb = 0 if dact else s.gact
        s.subb = s.actb + nh * 8192
        s.slotb = s.subb * SUBS
        s.ringb = s.slotb * s.NS
        s.xb = xblocks
        s.xbase = s.ringb
        assert s.ringb + xblocks * 1024 <= LDS_AUX
        s.pA, s.pW = s.nA * SUBS, 2 * nh * SUBS
        s.tch = tch
        s.wrap = None
        s.sw = []
        s.rot2 = False
        s.aperm = False
        s.wpol = ''
        s.ndma = s.pA + s.pW
        s.span = span
        s.acc = {}
        v, a = 32, 128
        order = [(j, i) for i in range(MF) for j in range(s.NF)] if dact else [(j, i) for j in range(s.NF) for i in range(MF)]
        for j, i in order:
            if True:
                if v + 4 <= 256:
                    s.acc[j, i] = ("v", v); v += 4
                else:
                    s.acc[j, i] = ("a", a); a += 4
        if s.xb:
            s.accx = v; v += 4
        s.vtop = v
        s.nfr = (0 if dact else MF) + s.NF + (2 if s.xb else 0)
        s.fper = s.nfr * 4 * SUBS
        assert 2 * s.fper <= 128
        s.vArd = [2, 3]
        s.vWrd = [[4, 5, 6, 7], [8, 9, 10, 11]]
        s.vAdma = 12
        s.vWdma = [vW + k for k in range(2 * nh)]
        s.vX, s.vXW = 17, (22, 23)
        s.wsrd = wsrd
        s.sAoff, s.sMA, s.sCnt = 32, 34, 36
        s.sWoff, s.sMW = sW

    def accr(s, j, i):
        k, r = s.acc[j, i]
        return f"{k}[{r}:{r+3}]"

    def fr(s, st, u, n):
        if st == 2:
            return (192 if s.dact else 160) + n * 4
        return st * s.fper + u * s.nfr * 4 + n * 4

    def fw(s, st, u, j):
        return s.fr(st, u, (0 if s.dact else s.MF) + j)

    def fa(s, p, u, i):
        if s.dact:
            return 128 + ((p & 3) * s.SUBS + u) * s.MF * 4 + i * 4
        return s.fr(p & 1, u, i)

    def setup_w(s):
        g = s.g
        g(f"s_mul_i32 s{s.sMW}, s3, {s.nh*2048}\ns_add_u32 s{s.sMW}, s{s.sMW}, {s.actb}\ns_mov_b32 s{s.sWoff}, 0")
        g("v_lshrrev_b32 v19, 4, v1\nv_and_b32 v20, 15, v1")
        g(f"s_mov_b32 s40, {s.wpitch}\ns_mul_i32 s39, s3, {8*s.wpitch}")
        for u in range(2):
            g(f"v_add_u32 v21, {4*u}, v19")
            g("v_mul_lo_u32 v18, v21, s40\nv_add_u32 v18, s39, v18")
            g("v_lshlrev_b32 v21, 1, v21\nv_xor_b32 v21, v21, v20\nv_lshl_add_u32 v18, v21, 4, v18")
            for h in range(s.nh):
                g(f"v_add_u32 v{s.vWdma[2*h+u]}, {4096 - (2*h+u)*1024}, v18")

    def setup_r(s, xsel=None):
        g = s.g
        g("v_lshlrev_b32 v18, 4, v1")
        if s.dact:
            assert s.ringb <= 65536 and s.nh == 1
            g(f"s_mul_i32 s39, s3, {s.nA*1024}\nv_add_u32 v18, s39, v18\ns_mov_b32 s{s.sAoff}, 0")
            for i in range(4):
                g(f"s_add_u32 s39, s58, {i}\ns_and_b32 s39, s39, 3\ns_lshl_b32 s39, s39, 10\nv_add_u32 v{12+i}, s39, v18")
            g("v_bfe_u32 v19, v1, 2, 3\nv_lshrrev_b32 v20, 5, v1\nv_lshlrev_b32 v20, 11, v20\nv_lshl_add_u32 v20, v19, 8, v20")
            g("v_and_b32 v21, 3, v1\nv_lshl_add_u32 v20, v21, 3, v20\nv_lshl_add_u32 v20, v19, 5, v20")
            for j in range(8):
                g(f"v_xor_b32 v{4+j}, {32*j}, v20")
            return
        g(f"s_mul_i32 s39, s37, {s.MF*1024}\nv_add_u32 v{s.vArd[0]}, s39, v18\nv_add_u32 v{s.vArd[1]}, {2*s.slotb}, v{s.vArd[0]}")
        g(f"s_mul_i32 s{s.sMA}, s3, {s.nA*1024}\ns_mov_b32 s{s.sAoff}, 0")
        if s.aperm:
            g("v_bfe_u32 v19, v1, 2, 2\nv_lshlrev_b32 v19, 8, v19\nv_lshrrev_b32 v20, 4, v1\nv_lshl_add_u32 v19, v20, 6, v19\nv_and_b32 v20, 3, v1")
            g(f"v_lshl_add_u32 v19, v20, 4, v19\nv_add_u32 v{s.vAdma}, s{s.sMA}, v19")
        else:
            g(f"v_add_u32 v{s.vAdma}, s{s.sMA}, v18")
        if s.xb:
            g(f"v_add_u32 v{s.vX}, {s.xbase}, v18")
        g("v_bfe_u32 v19, v1, 2, 3")
        g(f"v_lshrrev_b32 v20, 5, v1\nv_mul_u32_u24 v20, {s.nh*2048}, v20\nv_lshl_add_u32 v20, v19, 8, v20")
        g(f"v_and_b32 v21, 3, v1\nv_lshl_add_u32 v20, v21, 3, v20\nv_add_u32 v20, {s.actb}, v20")
        g("s_lshl_b32 s39, s38, 2")
        for jj in range(4):
            g(f"s_add_u32 s40, s39, {jj}\nv_xor_b32 v21, s40, v19")
            g(f"v_lshl_add_u32 v{s.vWrd[0][jj]}, v21, 5, v20\nv_add_u32 v{s.vWrd[1][jj]}, {2*s.slotb}, v{s.vWrd[0][jj]}")
        if s.xb:
            g(f"s_and_b32 s40, {xsel}, 3\ns_add_u32 s40, s40, s39\nv_xor_b32 v21, s40, v19\nv_lshl_add_u32 v{s.vXW[0]}, v21, 5, v20")
            g(f"s_lshr_b32 s40, {xsel}, 2\ns_lshl_b32 s40, s40, 11\nv_add_u32 v{s.vXW[0]}, s40, v{s.vXW[0]}")
            g(f"v_add_u32 v{s.vXW[1]}, {2*s.slotb}, v{s.vXW[0]}")

    def dma_a(s, slot):
        it = []
        for u in range(s.SUBS):
            if s.dact:
                for i in range(s.MF):
                    r = s.fa(slot, u, i)
                    it.append([f"buffer_load_dwordx4 a[{r}:{r+3}], v{12+i}, s[8:11], s{s.sAoff} offen{ASC}"])
                it[-1].append(f"s_add_u32 s{s.sAoff}, s{s.sAoff}, {s.gact}")
                continue
            first = [f"s_add_u32 m0, s{s.sMA}, {slot * s.slotb + u * s.subb}", "@"]
            for i in range(s.nA):
                it.append(first + [f"buffer_load_dwordx4 v{s.vAdma}, s[8:11], s{s.sAoff} offen offset:{i*1024}{ASC} lds"])
                first = []
            it[-1].append(f"s_add_u32 s{s.sAoff}, s{s.sAoff}, {s.gact}")
        return it

    def dma_w(s, slot):
        it = []
        for u in range(s.SUBS):
            first = [f"s_add_u32 m0, s{s.sMW}, {slot * s.slotb + u * s.subb}", "@"]
            for h in range(s.nh):
                for uu in range(2):
                    r = s.wsrd + 4 * h
                    it.append(first + [f"buffer_load_dwordx4 v{s.vWdma[2*h+uu]}, s[{r}:{r+3}], s{s.sWoff} offen offset:{(2*h+uu)*1024}{s.wpol} lds"])
                    first = []
            it[-1].append(f"s_add_u32 s{s.sWoff}, s{s.sWoff}, {32*s.wpitch}")
        return it

    def touch(s):
        return [["buffer_load_dword v29, v26, s[24:27], 0 offen", "v_add_u32 v26, s62, v26"]] if s.tch else []

    def group(s, p):
        a, w = s.dma_a(p + 3 if s.dact else p), s.dma_w(p)
        if getattr(s, "hack", 0) & 1:
            a = []
        if getattr(s, "hack", 0) & 2:
            w = []
        if s.wrap:
            if p == 0:
                w = [[f"s_lshl_b32 s{s.sWoff}, s99, 18", f"s_add_u32 s{s.sWoff}, s{s.sWoff}, s96"]] + w
                w = w + [["buffer_load_dword v30, v26, s[28:31], 0 offen sc1"]]
            if p == 1:
                a = [[f"s_lshl_b32 s{s.sAoff}, s99, 16"]] + a
            if p == 3:
                a = [["ds_read_b32 v17, v16"]] + a
        if s.rot2 and p == 1:
            w = w + [["buffer_load_dword v30, v28, s[28:31], 0 offen sc1"]]
        return s.touch() + (s.sw if p == 3 else []) + a + w

    def reads(s, slot, st):
        it = []
        hi = slot >> 1
        for u in range(s.SUBS):
            if s.dact:
                for j in range(s.NF):
                    r = s.fw(st, u, j)
                    for half in range(2):
                        it.append([f"ds_read_b64_tr_b16 a[{r+2*half}:{r+2*half+1}], v{4+j} offset:{slot*s.slotb + u*s.subb + half*4096}"])
                continue
            base = (slot & 1) * s.slotb + u * s.subb
            wl, al = [], []
            for j in range(s.NF):
                h, jj = divmod(j, 4)
                r = s.fr(st, u, s.MF + j)
                for half in range(2):
                    wl.append(f"ds_read_b64_tr_b16 a[{r+2*half}:{r+2*half+1}], v{s.vWrd[hi][jj]} offset:{base + h*2048 + half*2*s.nh*2048}")
            for i in range(s.MF):
                r = s.fr(st, u, i)
                al.append(f"ds_read_b128 a[{r}:{r+3}], v{s.vArd[hi]} offset:{base + i*1024}")
            if s.xb:
                r = s.fr(st, u, s.MF + s.NF)
                al.append(f"ds_read_b128 a[{r}:{r+3}], v{s.vX}")
                for half in range(2):
                    wl.append(f"ds_read_b64_tr_b16 a[{r+4+2*half}:{r+5+2*half}], v{s.vXW[hi]} offset:{base + half*2*s.nh*2048}")
            while wl or al:
                if al: it.append([al.pop(0)])
                if wl: it.append([wl.pop(0)])
                if wl: it.append([wl.pop(0)])
            if s.xb:
                it.append([f"v_add_u32 v{s.vX}, 1024, v{s.vX}"] + ([f"v_and_or_b32 v{s.vX}, v{s.vX}, s63, v29"] if s.rot2 else []))
        return it

    def mfma1(s, p, j, i, st=None):
        st = p & 1 if st is None else st
        a, w = (s.fa(p, 0, i) if s.dact else s.fr(st, 0, i)), s.fw(st, 0, j)
        A, W = f"a[{a}:{a+3}]", f"a[{w}:{w+3}]"
        x, y = (A, W) if s.act_first else (W, A)
        return f"v_mfma_f32_16x16x32_bf16 {s.accr(j,i)}, {x}, {y}, {s.accr(j,i)}"

    def final_phase(s, vm, blocks, lag, pre_items=(), two=False):
        g = s.g
        g(f"s_waitcnt vmcnt({vm}) lgkmcnt(0)" if vm is not None else "s_waitcnt lgkmcnt(0)")
        g("s_barrier")
        pre = [ins for grp in pre_items for ins in grp]
        for b, (tiles, _) in enumerate(blocks):
            work = list(blocks[b - lag][1]) if b >= lag else []
            if b < lag and pre:
                k = -(-len(pre) // (lag - b))
                work, pre = ["s_nop 0" if x == "@" else x for x in pre[:k]], pre[k:]
            mf = [s.mfma1(3, j, i) for (j, i) in tiles]
            if two:
                mf = [s.mfma1(2, j, i) for (j, i) in tiles] + [s.mfma1(3, j, i, 2) for (j, i) in tiles]
            per = -(-len(work) // len(mf))
            for m in mf:
                g(m)
                for ins in work[:per]:
                    g(ins)
                work = work[per:]
        g("s_nop 7")
        for b in range(len(blocks) - lag, len(blocks)):
            for ins in blocks[b][1]:
                g(ins)

    def mfmas(s, p, zero):
        out = []
        st = p & 1
        for u in range(s.SUBS):
            z = zero and u == 0
            for j in range(s.NF):
                ii = range(s.MF) if j % 2 == 0 else range(s.MF - 1, -1, -1)
                for i in ii:
                    a, w = s.fa(p, u, i), s.fw(st, u, j)
                    A, W = f"a[{a}:{a+3}]", f"a[{w}:{w+3}]"
                    x, y = (A, W) if s.act_first else (W, A)
                    out.append(f"v_mfma_f32_16x16x32_bf16 {s.accr(j,i)}, {x}, {y}, {'0' if z else s.accr(j,i)}")
            if s.xb:
                a = s.fr(st, u, s.MF + s.NF)
                c = f"v[{s.accx}:{s.accx+3}]"
                out.append(f"v_mfma_f32_16x16x32_bf16 {c}, a[{a}:{a+3}], a[{a+4}:{a+7}], {'0' if z else c}")
        return out

    def flat(s, items):
        for grp in items:
            for ins in grp:
                s.g("s_nop 0" if ins == "@" else ins)

    def phase(s, p, vm, dma, rd=True, zero=False, tail=None, pre=None, preb=None):
        g = s.g
        st = p & 1
        g(f"s_waitcnt vmcnt({vm}) lgkmcnt(0)" if vm is not None else "s_waitcnt lgkmcnt(0)")
        if preb:
            preb()
        g("s_barrier")
        if pre:
            pre()
        rdl = s.reads((p + 1) % s.NS, st ^ 1) if rd else []
        if getattr(s, "hack", 0) & 4:
            rdl = [x for x in rdl if "b128" not in x[0]]
        if getattr(s, "hack", 0) & 8:
            rdl = [x for x in rdl if "tr_b16" not in x[0]]
        fill = []
        nr, nd = len(rdl), len(dma)
        ri = di = 0
        while ri < nr or di < nd:
            if di < nd and (ri >= nr or di * nr <= ri * nd):
                fill.append(dma[di]); di += 1
            else:
                fill.append(rdl[ri]); ri += 1
        flat = []
        for grp in fill:
            cur = []
            for ins in grp:
                if ins == "@":
                    flat.append(cur); cur = []
                else:
                    cur.append(ins)
            flat.append(cur)
        mf = s.mfmas(p, zero)
        n = len(mf)
        lim = max(1, int(n * s.span))
        pos = {}
        for idx, grp in enumerate(flat):
            pos.setdefault(min(n - 2, idx * lim // len(flat)), []).append(grp)
        for k, m in enumerate(mf):
            g(m)
            grps = pos.get(k, [])
            for gi, grp in enumerate(grps):
                if gi and grps[gi-1] and grps[gi-1][-1].startswith("s_add_u32 m0"):
                    g("s_nop 0")
                for ins in grp:
                    g(ins)
            if tail and k == n - 2:
                g(tail)

    def start(s, nT=0, touch=None, chk=None, late=None, extra=()):
        g = s.g
        extra = list(extra)
        if s.dact:
            for p in range(3):
                k = -(-len(extra) // (3 - p))
                grp, extra = extra[:k], extra[k:]
                s.phase(p, 0 if p == 2 else None, grp, zero=(p == 0), pre=(late if p == 2 else None))
            s.phase(3, 0, s.restart(), rd=False, preb=chk[0], pre=chk[1])
            return
        for slot in range(s.NS):
            s.flat(s.dma_a(slot))
        if touch:
            touch()
        g(f"s_waitcnt vmcnt({3*s.pA + nT}) lgkmcnt(0)\ns_barrier")
        s.flat(s.reads(0, 0))
        vms = [2 * s.pA + nT, s.pA + nT + s.ndma, nT + 2 * s.ndma, 2 * s.ndma]
        for p in range(4):
            s.phase(p, vms[p], s.group(p), zero=(p == 0))

    def restart(s):
        it = [[f"s_lshl_b32 s{s.sWoff}, s99, 18", f"s_add_u32 s{s.sWoff}, s{s.sWoff}, s96", f"s_lshl_b32 s{s.sAoff}, s99, 16"]]
        for p in range(3):
            it += s.dma_w(p) + s.dma_a(p)
        return it + s.dma_w(3)

    def loop(s, cnt, name, head=None, chk=None):
        g = s.g
        g(f"s_mov_b32 s{s.sCnt}, {cnt}")
        g.label(name)
        if head:
            head()
        for p in range(4):
            s.phase(p, 2 * s.ndma, s.group(p), preb=(chk.get(p) if isinstance(chk, dict) else chk if p == 0 else None),
                    tail=(f"s_sub_u32 s{s.sCnt}, s{s.sCnt}, 1\ns_cmp_lg_u32 s{s.sCnt}, 0" if p == 3 else None))
        g(f"s_cbranch_scc1 {name}")

    def last(s, fills=None, pres=None, flfirst=False, final=None):
        fills = fills or [[], [], [], []]
        pres = pres or [None] * 4
        cnt = lambda f: sum(1 for grp in f for ins in grp if ins.startswith("buffer_"))
        if s.dact:
            fills = [fills[0] + s.dma_a(3) if flfirst else s.dma_a(3) + fills[0]] + list(fills[1:])
        n = [cnt(f) for f in fills]
        vms = [2 * s.ndma, s.ndma + n[0], n[0] + n[1], ((0 if flfirst else n[0] - s.pA) + n[1] + n[2]) if s.dact else None]
        if final and len(final) > 2:
            s.phase(0, vms[0], fills[0], pre=pres[0])
            s.phase(1, n[0], fills[1] + s.reads(3, 2), pre=pres[1])
            s.final_phase((n[0] - s.pA + n[1]) if s.dact else None, final[0], final[1], fills[2] + fills[3], two=True)
            return
        for p in range(4):
            if p == 3 and final:
                s.final_phase(vms[3], final[0], final[1], fills[3])
            else:
                s.phase(p, vms[p], fills[p], rd=(p < 3), pre=pres[p])


def accv(g, core, j, i, tmp):
    k, r = core.acc[j, i]
    if k == "v":
        return r
    for x in range(4):
        g(f"v_accvgpr_read_b32 v{tmp+x}, a{r+x}")
    return tmp


def warm_lines(g, ptr, nbytes, first, rl, pitch, n, step):
    g.srd(8, ptr, nbytes)
    g(f"v_add_u32 v26, {first}, v1\nv_lshrrev_b32 v27, {rl}, v26\nv_lshlrev_b32 v28, {rl}, v27\nv_sub_u32 v26, v26, v28")
    g(f"s_mov_b32 s4, {pitch}\nv_mul_lo_u32 v27, v27, s4\nv_lshl_add_u32 v26, v26, 7, v27")
    for k in range(n):
        g("buffer_load_dword v29, v26, s[8:11], 0 offen")
        if k + 1 < n:
            g(f"v_add_u32 v26, {(step >> rl) * pitch}, v26")


def cnt_vm(items):
    return sum(1 for grp in items for ins in grp if ins.startswith("buffer_"))


def k2_sids(g):
    g("s_and_b32 s56, s41, 1\ns_lshl_b32 s56, s56, 2\ns_and_b32 s57, s42, 3\ns_add_u32 s56, s56, s57\ns_lshr_b32 s57, s42, 2\ns_lshr_b32 s58, s41, 1")


def slab_srd(g):
    g(f"s_lshl_b32 s4, s56, 3\ns_add_u32 s4, s4, s57\ns_mul_i32 s4, s4, {4*49152}\ns_lshl_b32 s5, s3, 12\ns_add_u32 s4, s4, s5")
    g.srd(24, PWS, 4 * 49152, PART, "s4")


def n_early(o):
    return 0


def early(g, o):
    pass


def code_warm(g, o):
    mode = o.get("codepf", 3)
    if not mode:
        return
    g("s_getpc_b64 s[24:25]")
    g.label("L_pc")
    g(f"s_sub_u32 s24, s24, L_pc-{NAME}\ns_subb_u32 s25, s25, 0\ns_mov_b32 s26, L_end-{NAME}\ns_mov_b32 s27, 0x20000\nv_lshlrev_b32 v26, 7, v1")
    if mode & 2:
        g("buffer_load_dword v29, v26, s[24:27], 0 offen")
    if mode & 1:
        g("s_lshl_b32 s4, s42, 2\ns_add_u32 s4, s4, s3\ns_lshl_b32 s4, s4, 9\nv_add_u32 v26, s4, v26\ns_mov_b64 exec, 15")
        g("buffer_load_dword v29, v26, s[24:27], 0 offen\ns_mov_b64 exec, -1")


def k2_ids(g, o):
    k2_sids(g)
    c2 = Core(g, MF=4, nh=1, SUBS=1, act_first=False, wpitch=D * 2, wsrd=20, vW=24, sW=(59, 60), span=o.get("span2", 0.9), dact=True)
    c2.wpol = o.get('w2pol', '')
    c2.setup_w()
    g(f"s_mul_i32 s96, s58, {896 * D * 2}")
    g("s_sub_u32 s98, s42, 4\ns_max_i32 s98, s98, 0\ns_lshr_b32 s98, s98, 2")
    g("s_lshl_b32 s59, s98, 18\ns_add_u32 s59, s59, s96")
    c2.wrap = True
    g(f"s_lshl_b32 s44, s57, 8\ns_sub_u32 s45, {F*D*2 + 4096}, s44")
    g.srd(20, PWD, "s45", -4096, "s44")
    return c2


XS, PS, AX, AP, RB, GO = 160, 164, 168, 176, 184, 188


def spin(g, va, thr, first_loaded, vf=30, lane=None):
    l0, l1, l2 = g.newlabel("sp"), g.newlabel("spd"), g.newlabel("spc")
    if first_loaded:
        g(f"s_branch {l2}")
    g.label(l0)
    g(f"buffer_load_dword v{vf}, v{va}, s[28:31], 0 offen sc1\ns_waitcnt vmcnt(0)")
    g.label(l2)
    flag_bad(g, [(vf, thr)])
    if lane:
        g(f"s_lshl_b32 s4, 0x11, {lane}\ns_and_b32 vcc_lo, vcc_lo, s4\ns_mov_b32 vcc_hi, 0")
    g(f"s_sub_u32 s101, s101, 1\ns_cbranch_scc1 {l1}\ns_cbranch_vccnz {l0}")
    g.label(l1)


def k2_rows(g):
    g("v_lshrrev_b32 v18, 4, v1\nv_and_b32 v19, 15, v1\ns_cmp_ge_u32 s56, 4\ns_cselect_b64 s[62:63], -1, 0\nv_mov_b32 v28, 0x400")
    for n in range(4):
        g(f"v_add_u32 v20, {4*n}, v18\nv_xor_b32 v21, v20, v19\nv_lshlrev_b32 v21, 4, v21\nv_add_u32 v21, {4096 - n*1024}, v21\nv_add_u32 v20, s54, v20")
        g(f"v_cmp_eq_u32 vcc, v20, v28\nv_sub_u32 v{XS+n}, 0xc00, v20\nv_and_b32 v{PS+n}, 0x3ff, v20\nv_cndmask_b32 v{XS+n}, v20, v{XS+n}, s[62:63]")
        g(f"v_cndmask_b32 v{XS+n}, v{XS+n}, v28, vcc\nv_cndmask_b32 v{PS+n}, v{PS+n}, v28, vcc")
        g(f"v_lshlrev_b32 v{XS+n}, 11, v{XS+n}\nv_lshl_add_u32 v{GO+n}, v19, 4, v{XS+n}\nv_add_u32 v{XS+n}, v{XS+n}, v21")
        g(f"v_mul_u32_u24 v{PS+n}, {PQ_PITCH}, v{PS+n}\nv_add_u32 v{PS+n}, v{PS+n}, v21")


def tile_pick(g, off=0):
    l0, l1, l2, l3 = g.newlabel("tp"), g.newlabel("tpd"), g.newlabel("tpc"), g.newlabel("tpx")
    g(f"s_cmp_lg_u32 s3, 0\ns_cbranch_scc1 {l3}")
    g(f"s_cmp_eq_u32 s47, 0x7f\ns_cbranch_scc1 {l1}\ns_branch {l2}")
    g.label(l0)
    g("buffer_load_dword v30, v26, s[28:31], 0 offen sc1\ns_waitcnt vmcnt(0)")
    g.label(l2)
    flag_bad(g, [(30, 2)])
    g("s_lshr_b32 s4, vcc_lo, 8\ns_or_b32 s4, s4, vcc_lo\ns_sub_u32 s101, s101, 1\ns_cselect_b32 s4, 0, s4\ns_andn2_b32 s4, 0x7f, s4\ns_or_b32 s47, s47, s4")
    g(f"s_and_b32 s4, s47, s97\ns_cbranch_scc0 {l0}")
    g.label(l1)
    g(f"s_and_b32 s4, s47, s97\ns_ff1_i32_b32 s4, s4\ns_bitset0_b32 s97, s4\nv_mov_b32 v17, s4\nds_write_b32 v16, v17 offset:{off}\ns_waitcnt lgkmcnt(0)")
    g.label(l3)


def tile_get(g):
    g("ds_read_b32 v17, v16 offset:4\ns_waitcnt lgkmcnt(0)\nv_readfirstlane_b32 s99, v17")


def tile_dma(g, srd, va, off, sc, one=False):
    g("\n".join([f"s_add_u32 m0, s55, {off}", "s_nop 0"] +
                [f"buffer_load_dwordx4 v{va+n}, s[{srd}:{srd+3}], 0 offen offset:{n*1024}{sc} lds" for n in range(4)]))


def k2_setup(g, o, c2):
    g("s_nop 1")
    c2.setup_r()
    g(f"s_mul_i32 s44, s56, {112*16384}\ns_mul_i32 s45, s58, {28*16384}\ns_add_u32 s44, s44, s45")
    g.srd(8, PWS, 28 * 16384, H, "s44")
    g("s_mul_i32 s44, s56, 28\ns_mul_i32 s45, s58, 7\ns_add_u32 s44, s44, s45")
    g("v_and_b32 v26, 7, v1\nv_min_u32 v26, 6, v26\nv_add_u32 v26, s44, v26\nv_lshlrev_b32 v26, 7, v26")
    g("v_bfe_u32 v18, v1, 3, 1\nv_lshl_add_u32 v26, v18, 2, v26")
    g("s_mov_b32 s101, 0x80000\ns_mov_b32 s47, 0")
    g("s_mov_b32 s97, 0x7f\nv_mov_b32 v30, 0\nv_mov_b32 v16, 0x27ff0\ns_cmp_eq_u32 s3, 0\ns_cselect_b32 s44, 0, 0x80000000\nv_or_b32 v26, s44, v26")


class Rec(G):
    def __init__(s, g):
        s.g0, s.items = g, []

    def __call__(s, txt):
        s.items.append([ln.strip() for ln in txt.split("\n") if ln.strip()])


def k2_tail_setup(g0, o):
    g = Rec(g0)
    g("s_mul_i32 s55, s3, 12288\ns_add_u32 s55, s55, 0x8000")
    g("s_lshl_b32 s54, s56, 8\ns_lshl_b32 s44, s3, 6\ns_add_u32 s54, s54, s44\ns_lshl_b32 s44, s58, 4\ns_add_u32 s54, s54, s44")
    k2_rows(g)
    g(f"s_lshl_b32 s61, s57, 8\ns_sub_u32 s45, {S*D*2 + 4096}, s61")
    g.srd(12, PX, "s45", -4096, "s61")
    tile_dma(g, 12, XS, 0, "", one=True)
    g("s_sub_u32 s48, 1794, s61\ns_cmp_ge_u32 s57, 4\ns_cselect_b32 s44, s48, s61\ns_cselect_b32 s48, 248, 0\ns_cselect_b32 s49, -1, 0")
    g(f"s_sub_u32 s45, {1025*PQ_PITCH + 4096}, s44")
    g.srd(12, PWS, "s45", PP - 4096, "s44")
    g.srd(16, PWS, "s45", QQ - 4096, "s44")
    g("s_xor_b32 s62, s62, s49\ns_cmp_lg_u32 s62, 0\ns_cselect_b32 s62, 1.0, -1.0\ns_mov_b32 s63, s62")
    g("v_and_b32 v18, 15, v1\nv_lshrrev_b32 v19, 5, v1\nv_xor_b32 v19, v19, v18")
    g("v_lshlrev_b32 v19, 4, v19\nv_lshl_add_u32 v19, v18, 8, v19\nv_bfe_u32 v20, v1, 4, 1\nv_lshl_add_u32 v19, v20, 3, v19")
    for j in range(8):
        g(f"v_xor_b32 v20, {32*j}, v19\nv_add_u32 v{AX+j}, s55, v20")
        g(f"v_xor_b32 v20, s48, v20\nv_add_u32 v{AP+j}, s55, v20")
    g("v_lshrrev_b32 v18, 4, v1\nv_and_b32 v19, 15, v1")
    for n in range(4):
        g(f"v_add_u32 v21, {4*n}, v18\nv_xor_b32 v20, v21, v19\nv_lshlrev_b32 v20, 4, v20")
        g(f"v_lshl_add_u32 v20, v21, 8, v20\nv_add_u32 v{RB+n}, s55, v20")
    g(f"s_lshl_b32 s44, s56, 3\ns_add_u32 s44, s44, s57\ns_mul_i32 s44, s44, {4*49152}\ns_lshl_b32 s45, s3, 12\ns_add_u32 s44, s44, s45")
    g.srd(24, PWS, 4 * 49152, PART, "s44")
    for i in range(1, 4):
        g(f"s_add_u32 s{49+i}, s58, {i}\ns_and_b32 s{49+i}, s{49+i}, 3\ns_mul_i32 s{49+i}, s{49+i}, 49152\ns_add_u32 s{49+i}, s{49+i}, {(i-1)*16384}")
    g("s_mul_i32 s53, s58, 49152\nv_lshlrev_b32 v29, 4, v1")
    g("v_and_b32 v22, 31, v1\nv_add_u32 v22, 224, v22\nv_lshlrev_b32 v22, 7, v22\nv_lshrrev_b32 v23, 5, v1\nv_lshl_add_u32 v22, v23, 2, v22")
    g("s_cmp_lt_u32 s42, 4\ns_cselect_b32 s44, 8, 7\nv_lshrrev_b32 v23, 1, v1\nv_min_u32 v23, 2, v23")
    g("v_add_u32 v23, 1, v23\nv_add_u32 v23, s58, v23\nv_and_b32 v23, 3, v23")
    g("s_mul_i32 s45, s58, s44\ns_sub_u32 s45, s43, s45\nv_mul_u32_u24 v23, s44, v23")
    g("v_add_u32 v23, s45, v23\nv_lshlrev_b32 v23, 7, v23")
    g("s_lshl_b32 s44, s3, 3\ns_add_u32 s44, s44, 16\nv_and_b32 v27, 1, v1\nv_lshl_add_u32 v27, v27, 2, s44\nv_add_u32 v23, v27, v23")
    g("s_lshl_b32 s45, s43, 7\nv_add_u32 v27, s45, v27")
    return g.items


def main_kernel(g, o):
    g.begin(NAME)
    g("s_cmp_ge_u32 s2, 256\ns_cbranch_scc1 L_done")
    g("s_load_dwordx16 s[64:79], s[0:1], 0\ns_load_dwordx8 s[80:87], s[0:1], 64")
    g("v_lshrrev_b32 v2, 6, v0\nv_and_b32 v1, 63, v0\ns_nop 0\nv_readfirstlane_b32 s3, v2")
    if o.get("stamp"):
        g(f"v_mov_b32 v{VST}, 0")
    stamp(g, o, 0)
    g("s_and_b32 s41, s2, 7\ns_lshr_b32 s42, s2, 3\ns_lshr_b32 s37, s3, 1\ns_and_b32 s38, s3, 1")
    code_warm(g, o)
    g("s_sub_u32 s44, s42, 4")
    g("s_and_b32 s54, s41, 1\ns_lshl_b32 s54, s54, 2\ns_and_b32 s45, s44, 3\ns_add_u32 s54, s54, s45")
    g("s_lshr_b32 s55, s41, 1\ns_mul_i32 s55, s55, 7\ns_lshr_b32 s45, s44, 2\ns_add_u32 s55, s55, s45")
    g("s_mul_i32 s43, s54, 28\ns_add_u32 s43, s43, s55")
    g("s_lshl_b32 s44, s41, 2\ns_add_u32 s44, s44, s42\ns_add_u32 s44, s44, 224\ns_cmp_lt_u32 s42, 4\ns_cselect_b32 s43, s44, s43")
    ln_loads(g)
    tag_issue(g)
    ln_body(g, o, 0, "ln", [], None)
    g("s_cmp_lt_u32 s42, 4\ns_cbranch_scc1 L_fft")

    c1 = Core(g, MF=8, nh=2, SUBS=1, act_first=False, wpitch=F * 2, span=o.get("span1", 0.85), tch=o.get("pf", 1))
    c1.aperm = True
    c1.hack = o.get('hack', 0)
    c1.wpol = o.get('w1pol', ' nt')
    c1.setup_w()
    g(f"s_lshl_b32 s46, s55, 8\ns_sub_u32 s47, {D*F*2 + 4096}, s46")
    g.srd(12, PWG, "s47", -4096, "s46")
    g.srd(16, PWU, "s47", -4096, "s46")
    late, post = [], sum((c1.dma_w(slot) for slot in range(4)), [])
    c1.setup_r()
    g("s_and_b32 s46, s54, 3\ns_lshl_b32 s46, s46, 13\nv_lshl_add_u32 v22, v1, 7, s46")
    g("s_lshl_b32 s46, s54, 19")
    g.srd(8, PWS, 0x80000, XN, "s46")
    lg = o.get("lpw", 3)
    lc = 4 << lg
    g("s_add_u32 s46, s55, 2\ns_lshr_b32 s46, s46, 2\ns_sub_u32 s46, s55, s46\ns_mul_i32 s47, s54, 21\ns_add_u32 s46, s46, s47")
    g(f"s_and_b32 s47, s55, 3\ns_cmp_eq_u32 s47, 1\ns_cselect_b32 s63, 0, {F*D*2}\ns_cselect_b32 s98, 0, {1024*4096}")
    g(f"s_bitcmp1_b32 s46, 0\ns_cselect_b32 s96, s{PSI}, s{PSR}\ns_cselect_b32 s97, s{PSI+1}, s{PSR+1}")
    g(f"v_lshrrev_b32 v18, {lg}, v1\nv_min_u32 v18, 1, v18\nv_lshlrev_b32 v18, 31, v18\ns_lshl_b32 s47, s3, {lg}\nv_add_u32 v19, s47, v1")
    g(f"s_lshl_b32 s47, s46, {lg+2}\nv_add_u32 v20, s47, v19\nv_lshl_or_b32 v23, v20, 7, v18")
    g(f"s_lshr_b32 s46, s46, 1\ns_lshl_b32 s46, s46, {lg+2}\nv_add_u32 v19, s46, v19\nv_and_b32 v21, 15, v19\nv_lshrrev_b32 v20, 4, v19")
    g("v_lshlrev_b32 v20, 12, v20\nv_lshl_add_u32 v20, v21, 7, v20\nv_or_b32 v26, v20, v18")
    publish(g, 1, True, len(late))
    c1.flat(post)
    g(f"s_mov_b32 s24, s96\ns_mov_b32 s25, s97\ns_mov_b32 s26, s98\ns_mov_b32 s27, 0x20000\ns_mov_b32 s62, {84 * lc // 16 * 4096}")
    stamp(g, o, 3)
    poll(g, [(22, 1)], sleep=o.get("psl", 1))
    stamp(g, o, 4)
    c1.start()
    c1.sw = [[f"s_cmp_eq_u32 s{c1.sCnt}, {o.get('sw', 5)}", f"s_cselect_b32 s24, s{PWD}, s24", f"s_cselect_b32 s25, s{PWD+1}, s25",
              "s_cselect_b32 s26, s63, s26", f"s_cselect_b32 s62, {168 * lc * 128}, s62", "s_cselect_b64 s[46:47], -1, 0",
              "v_cndmask_b32 v26, v26, v23, s[46:47]"]]
    c1.loop(6, "L_g1")
    c1.sw = []
    gm, g = g, Rec(g)
    c2 = k2_ids(g, o)
    g.srd(24, PWS, S * F * 2, H)
    g(f"s_mul_i32 s50, s54, {112*16384}\ns_lshl_b32 s51, s37, 13\ns_add_u32 s50, s50, s51")
    g("s_lshl_b32 s51, s55, 2\ns_lshl_b32 s52, s38, 1\ns_add_u32 s51, s51, s52\ns_lshl_b32 s51, s51, 14")
    g("s_add_u32 s50, s50, s51\ns_add_u32 s51, s50, 0x4000")
    g("v_lshlrev_b32 v26, 4, v1\nv_add_u32 v27, 0x1000, v26")
    g(f"s_lshl_b32 s4, s38, 15\ns_lshl_b32 s5, s37, 13\ns_add_u32 s4, s4, s5\ns_add_u32 s4, s4, {HSTG}\nv_add_u32 v28, s4, v26")
    pre_last, g = g.items, gm
    c2.g = g
    blocks = []
    for kbl in range(2):
        for i in range(8):
            o4 = (12, 16)[len(blocks) & 1]
            work = []
            for jj in range(2):
                j = 2 * kbl + jj
                gr = c1.acc[j, i][1]
                kind, ur = c1.acc[4 + j, i]
                if kind == "a":
                    work += [f"v_accvgpr_read_b32 v{20+x}, a{ur+x}" for x in range(4)]
                    ur = 20
                work += [f"v_mul_f32 v{gr+x}, v{gr+x}, v{ur+x}" for x in range(4)] if o.get("epmul", 0) else \
                        [f"v_pk_mul_f32 v[{gr}:{gr+1}], v[{gr}:{gr+1}], v[{ur}:{ur+1}]", f"v_pk_mul_f32 v[{gr+2}:{gr+3}], v[{gr+2}:{gr+3}], v[{ur+2}:{ur+3}]"]
                work += [f"v_cvt_pk_bf16_f32 v{o4+2*jj}, v{gr}, v{gr+1}", f"v_cvt_pk_bf16_f32 v{o4+2*jj+1}, v{gr+2}, v{gr+3}"]
            work.append(f"buffer_store_dwordx4 v[{o4}:{o4+3}], v{26 + (i >> 2)}, s[24:27], s{50+kbl} offen offset:{(i&3)*1024} sc1")
            work.append(f"ds_write_b128 v28, v[{o4}:{o4+3}] offset:{kbl*16384 + i*1024}")
            blocks.append(([(2 * kbl, i), (2 * kbl + 1, i), (4 + 2 * kbl, i), (5 + 2 * kbl, i)], work))
    if True:
        c1.last([pre_last, c2.dma_w(0) + c2.dma_w(1) + c2.dma_w(2) + c2.dma_w(3), [], []], final=(blocks, 2, 1) if o.get('two1', 1) else (blocks, 3))
    stamp(g, o, 5)
    k2_setup(g, o, c2)
    for i in range(4):
        g(f"v_add_u32 v{18+i}, {HSTG}, v{12+i}")
    g("s_bitset0_b32 s97, s98\ns_waitcnt vmcnt(16) lgkmcnt(0)\ns_barrier")
    stamp(g, o, 6)
    for u in range(4):
        for i in range(4):
            r = c2.fa(u, 0, i)
            g(f"ds_read_b128 a[{r}:{r+3}], v{18+i} offset:{u*16384}")
    stamp(g, o, 10)

    def late2():
        lab = g.newlabel("p2")
        stamp(g, o, 17)
        g(f"s_cmp_lg_u32 s3, 0\ns_cbranch_scc1 {lab}")
        g("s_lshl_b32 s4, s43, 7\ns_add_u32 s5, s100, 2\nv_lshl_add_u32 v2, v1, 2, s4\nv_mov_b32 v3, s5\ns_mov_b64 exec, 0xffffffff")
        g("buffer_store_dword v3, v2, s[28:31], 0 offen sc1\ns_mov_b64 exec, -1")
        g.label(lab)
        g("buffer_load_dword v30, v26, s[28:31], 0 offen sc1")
    c2.flat(c2.reads(0, 0))
    c2.start(late=late2, chk=(lambda: tile_pick(g, 4), lambda: tile_get(g)), extra=k2_tail_setup(g, o))
    stamp(g, o, 18)
    g("s_mov_b32 s46, 5\ns_branch L_k2")

    g.label("L_fft")
    g("s_and_b32 s54, s41, 1\ns_lshr_b32 s55, s41, 1")
    f1 = Core(g, MF=8, nh=1, SUBS=1, act_first=True, wpitch=D * 2, xblocks=16)
    f1.aperm = True
    f1.setup_w()
    g("s_cmp_eq_u32 s54, 0")
    g(f"s_cselect_b32 s96, s{PHR}, s{PHI}\ns_cselect_b32 s97, s{PHR+1}, s{PHI+1}\ns_cselect_b32 s98, s{PSR}, s{PSI}\ns_cselect_b32 s99, s{PSR+1}, s{PSI+1}")
    g(f"s_lshl_b32 s46, s55, 8\ns_sub_u32 s47, {512*2048 + 4096}, s46")
    g.srd(12, 96, "s47", -4096, "s46")
    g("s_lshl_b32 s63, s42, 1\ns_add_u32 s63, s63, s37\ns_and_b32 s63, s63, 3")
    f1.setup_r("s63")
    g("v_lshlrev_b32 v32, 7, v1\nv_add_u32 v33, 0x2000, v32\nv_add_u32 v34, 0x4000, v32\nv_add_u32 v35, 0x6000, v32")
    publish(g, 1, True)
    for slot in range(4):
        f1.flat(f1.dma_w(slot))
    if o.get("warmf", 1):
        g("s_cmp_lg_u32 s3, 3\ns_cbranch_scc1 L_f_nw")
        g(f"s_lshl_b32 s61, s55, 2\ns_add_u32 s61, s61, s42\ns_lshl_b32 s61, s61, 6\ns_add_u32 s62, s61, {128*8}")
        warm_lines(g, 96, 512 * 2048, "s62", 3, 2048, 3, 1024)
        g.label("L_f_nw")
    stamp(g, o, 3)
    poll(g, [(32, 1), (33, 1), (34, 1), (35, 1)])
    stamp(g, o, 4)
    g(f"s_mul_i32 s46, s54, {XOO - XEE}\ns_lshl_b32 s47, s42, 18\ns_add_u32 s46, s46, s47")
    g.srd(8, PWS, 0x40000, XEE, "s46")
    g.srd(16, PWS, 1024, XEEX)
    g("v_lshlrev_b32 v24, 4, v1\nbuffer_load_dwordx4 v[40:43], v24, s[16:19], 0 offen sc1")

    def t2():
        g(f"v_lshlrev_b32 v24, 8, v1\nv_add_u32 v24, {f1.xbase}, v24\ns_waitcnt vmcnt({4 * f1.pA})\nds_write_b128 v24, v[40:43]")
    f1.start(0, t2)
    f1.loop(2, "L_f1")
    g("s_lshl_b32 s62, s42, 1\ns_add_u32 s62, s62, s37")
    f2 = Core(g, MF=4, nh=2, SUBS=1, act_first=True, wpitch=S * 2, xblocks=32, wsrd=16, vW=24, sW=(59, 60))
    f2.wpol = o.get('f2pol', '')
    f2.setup_w()
    f2.rot2 = True
    g("s_lshl_b32 s59, s42, 20")
    g(f"s_lshl_b32 s46, s42, 9\ns_sub_u32 s47, {1024*4096 + 4096}, s46")
    g.srd(16, 98, "s47", -4096, "s46")
    g("s_sub_u32 s47, s47, 256")
    g.srd(20, 98, "s47", -4096 + 256, "s46")
    g("s_cmp_eq_u32 s54, 0\ns_cselect_b32 s47, 0x10000, 0")
    g.srd(24, PWS, "s47", REC)
    T = f1.vtop
    g("v_lshrrev_b32 v28, 4, v1\nv_lshlrev_b32 v28, 7, v28")
    g("s_lshl_b32 s50, s42, 13\ns_lshl_b32 s51, s37, 12\ns_add_u32 s50, s50, s51\ns_mov_b32 s51, 0x8000")
    lc1 = [[f"buffer_load_dwordx4 v[{T+4*i}:{T+4*i+3}], v28, s[24:27], s50 offen offset:{i*512} sc1"] for i in range(8)]
    lc1.append([f"buffer_load_dword v{T+32}, v28, s[24:27], s51 offen sc1"])
    f1.last([f2.dma_w(0) + lc1, f2.dma_w(1), f2.dma_w(2), f2.dma_w(3)])
    stamp(g, o, 5)
    g(f"s_waitcnt vmcnt({3 * f2.pW})")
    g("v_and_b32 v3, 1, v1\nv_lshlrev_b32 v3, 31, v3\nv_or_b32 v3, 1.0, v3")
    g(f"s_mul_i32 s46, s54, {BOT - AET}\ns_lshl_b32 s47, s55, 18\ns_add_u32 s46, s46, s47")
    g.srd(8, PWS, 0x40000, AET, "s46")
    g("s_lshl_b32 s50, s42, 16\ns_lshl_b32 s51, s37, 15\ns_add_u32 s50, s50, s51\ns_lshl_b32 s51, s38, 12\ns_add_u32 s50, s50, s51")
    g("v_lshlrev_b32 v2, 4, v1\ns_nop 4")
    k = 0
    for ip in range(4):
        for j in range(4):
            o4 = 4 + 4 * (k & 1); k += 1
            for ii in range(2):
                i = 2 * ip + ii
                r = f1.acc[j, i][1]
                for x in range(4):
                    g(f"v_fmac_f32 v{r+x}, v{T+4*i+x}, v3")
                g(f"v_cvt_pk_bf16_f32 v{o4+2*ii}, v{r}, v{r+1}\nv_cvt_pk_bf16_f32 v{o4+2*ii+1}, v{r+2}, v{r+3}")
            g(f"buffer_store_dwordx4 v[{o4}:{o4+3}], v2, s[8:11], s50 offen offset:{j*1024} sc1")
        g("s_add_u32 s50, s50, 0x2000")
    g("v_and_b32 v2, 15, v1\nv_lshlrev_b32 v2, 2, v2")
    g("s_lshl_b32 s50, s62, 11\ns_lshl_b32 s51, s55, 9\ns_add_u32 s50, s50, s51")
    g(f"s_lshl_b32 s52, s38, 8\ns_add_u32 s50, s50, s52\ns_add_u32 s50, s50, {RP - REC}")
    U = T + 36
    for j in range(4):
        r0 = f1.acc[j, 0][1]
        g(f"v_pk_add_f32 v[{U}:{U+1}], v[{r0}:{r0+1}], v[{r0+2}:{r0+3}]")
        for i in range(1, 8):
            r = f1.acc[j, i][1]
            g(f"v_pk_add_f32 v[{U}:{U+1}], v[{U}:{U+1}], v[{r}:{r+1}]\nv_pk_add_f32 v[{U}:{U+1}], v[{U}:{U+1}], v[{r+2}:{r+3}]")
        g(f"v_sub_f32 v{U+4+j}, v{U}, v{U+1}")
        g(f"v_mov_b32 v{U+2}, v{U+4+j}\ns_nop 1\nv_permlane32_swap_b32 v{U+4+j}, v{U+2}\ns_nop 1\nv_add_f32 v{U+4+j}, v{U+4+j}, v{U+2}")
        g(f"v_mov_b32 v{U+2}, v{U+4+j}\ns_nop 1\nv_permlane16_swap_b32 v{U+4+j}, v{U+2}\ns_nop 1\nv_add_f32 v{U+4+j}, v{U+4+j}, v{U+2}")
        g(f"buffer_store_dword v{U+4+j}, v2, s[24:27], s50 offen offset:{j*64} sc1")
    g("s_cmp_ge_u32 s62, 4\ns_cbranch_scc1 L_f1_noc2")
    g(f"v_fmac_f32 v{f1.accx}, v{T+32}, v3")
    g(f"s_add_u32 s50, s51, s52\ns_lshl_b32 s52, s62, 6\ns_add_u32 s50, s50, s52\ns_add_u32 s50, s50, {C2 - REC}")
    g(f"s_mov_b64 exec, 0xffff\nbuffer_store_dword v{f1.accx}, v2, s[24:27], s50 offen sc1\ns_mov_b64 exec, -1")
    g.label("L_f1_noc2")
    g("s_lshl_b32 s62, s55, 1\ns_add_u32 s62, s62, s37")
    f2.setup_r("s62")
    g("s_mov_b32 s101, 0x80000")
    g(f"s_lshl_b32 s46, s3, 13\nv_lshl_add_u32 v28, v1, 7, s46\nbuffer_load_dwordx4 v[{T}:{T+3}], v28, s[24:27], 0 offen offset:16 sc1")
    g(f"s_lshl_b32 s{f2.sAoff}, s42, 16\ns_lshl_b32 s47, s42, 13\nv_add_u32 v{f2.vX}, s47, v{f2.vX}")
    publish(g, 2)
    stamp(g, o, 6)
    stamp(g, o, 7)

    def x2():
        g("v_lshrrev_b32 v28, 3, v1\nv_lshlrev_b32 v28, 10, v28\nv_and_b32 v29, 3, v1\nv_lshl_add_u32 v28, v29, 8, v28")
        g(f"v_bfe_u32 v29, v1, 2, 1\nv_lshl_add_u32 v28, v29, 3, v28\ns_add_u32 s46, s46, {f2.xbase}\nv_add_u32 v28, s46, v28")
        g(f"v_cvt_pk_bf16_f32 v{T}, v{T}, v{T+1}\nv_cvt_pk_bf16_f32 v{T+1}, v{T+2}, v{T+3}\nds_write_b64 v28, v[{T}:{T+1}]")
        g("s_and_b32 s46, s43, 0xfc\nv_and_b32 v28, 3, v1\nv_add_u32 v28, s46, v28\nv_lshlrev_b32 v28, 7, v28\nv_and_b32 v29, 4, v1\nv_add_u32 v28, v28, v29")
        g(f"s_mov_b32 s63, 0x7fff\nv_mov_b32 v29, {f2.xbase}")
    f2.start(0, x2)

    def chk2():
        g(f"s_and_b32 s{f2.sAoff}, s{f2.sAoff}, 0x3ffff\ns_and_b32 s{f2.sWoff}, s{f2.sWoff}, 0x3fffff\ns_lshr_b32 s46, s{f2.sAoff}, 16")
        spin(g, 28, 2, True, lane="s46")
    f2.loop(6, "L_f2", chk=chk2)
    T = f2.vtop
    RV, AV, B, EA = T + 20, T + 32, T + 48, T + 80
    c2 = k2_ids(g, o)
    g("v_lshrrev_b32 v28, 4, v1\nv_lshlrev_b32 v28, 4, v28")
    g(f"s_lshl_b32 s50, s55, 9\ns_lshl_b32 s51, s37, 8\ns_add_u32 s51, s50, s51\ns_add_u32 s51, s51, {C2 - REC}\ns_mov_b32 s52, {0x8000 + 16}")
    lc2 = [[f"buffer_load_dwordx4 v[{T+4*i}:{T+4*i+3}], v28, s[24:27], s51 offen offset:{i*64} sc1"] for i in range(4)]
    lc2.append([f"buffer_load_dword v{T+16}, v28, s[24:27], s52 offen sc1"])
    g(f"v_and_b32 v{EA+9}, 127, v0\nv_lshlrev_b32 v{EA+9}, 2, v{EA+9}\nv_add_u32 v{EA+9}, s50, v{EA+9}\nv_lshlrev_b32 v{EA+10}, 7, v1")
    g(f"s_lshr_b32 s4, s3, 1\ns_or_b32 s4, s4, s42\ns_cmp_eq_u32 s4, 0\ns_cselect_b32 s4, 0, 0x80000000\nv_or_b32 v{EA+8}, s4, v{EA+9}")
    g(f"s_xor_b32 s4, s3, 2\ns_or_b32 s4, s4, s42\ns_or_b32 s4, s4, s55\ns_cmp_eq_u32 s4, 0\ns_cselect_b32 s4, 0, 0x80000000\nv_or_b32 v{EA+10}, s4, v{EA+10}")
    for k in range(4):
        g(f"s_mov_b32 s{44+k}, {RP - REC + 4096 * k}")
    g(f"s_mov_b32 s48, {C2 - REC}\ns_mov_b32 s49, 0x2000\ns_mov_b32 s53, 0x6000")
    lr = [[f"buffer_load_dword v{RV+k}, v{EA+8}, s[24:27], s{44+(k>>1)} offen offset:{(k&1)*2048} sc1"] for k in range(8)]
    lr.append([f"buffer_load_dword v{RV+8}, v{EA+8}, s[24:27], s48 offen sc1"])
    g("s_mov_b32 s61, 0x4000")
    lr += [[f"buffer_load_dwordx4 v[{AV+4*k}:{AV+4*k+3}], v{EA+10}, s[24:27], {('0', 's49', 's61', 's53')[k]} offen offset:16 sc1"] for k in range(4)]
    g(f"v_and_b32 v{EA+6}, 1, v1\nv_lshlrev_b32 v{EA+6}, 31, v{EA+6}\nv_or_b32 v{EA+6}, 1.0, v{EA+6}")
    g(f"s_mul_i32 s4, s54, {QQ - PP}")
    g.srd(8, PWS, 1025 * PQ_PITCH, PP, "s4")
    g(f"s_lshl_b32 s4, s3, 13\ns_add_u32 s4, s4, {LDS_AUX}")
    g("v_and_b32 v18, 15, v1\nv_and_b32 v19, 7, v1\nv_lshrrev_b32 v20, 5, v1\nv_bfe_u32 v21, v1, 4, 1")
    g(f"v_mul_u32_u24 v{EA+7}, {PQ_PITCH}, v18\nv_lshlrev_b32 v18, 7, v18\nv_lshl_add_u32 v18, v21, 3, v18\nv_add_u32 v18, s4, v18")
    for i in range(4):
        g(f"v_add_u32 v21, {2*i}, v20\nv_xor_b32 v21, v21, v19\nv_lshl_add_u32 v{EA+i}, v21, 4, v18")
    g(f"v_lshrrev_b32 v20, 3, v1\nv_xor_b32 v21, v20, v19\nv_lshlrev_b32 v18, 7, v20\nv_lshl_add_u32 v18, v21, 4, v18\nv_add_u32 v{EA+4}, s4, v18")
    g(f"v_mul_u32_u24 v{EA+5}, {PQ_PITCH}, v20\nv_lshl_add_u32 v{EA+5}, v19, 4, v{EA+5}")
    f2.last([lc2 + lr, [], [], []])
    stamp(g, o, 8)
    g(f"s_lshl_b32 s50, s42, 8\ns_lshl_b32 s51, s38, 6\ns_add_u32 s50, s50, s51\ns_mul_i32 s52, s50, {PQ_PITCH}")
    g("s_lshl_b32 s50, s55, 8\ns_lshl_b32 s51, s37, 7\ns_add_u32 s50, s50, s51\ns_add_u32 s50, s50, s52")
    g("s_waitcnt vmcnt(0)")
    for h in range(2):
        for jj in range(4):
            for i in range(4):
                r = f2.acc[4 * h + jj, i][1]
                for x in range(4):
                    g(f"v_fmac_f32 v{r+x}, v{T+4*i+x}, v{EA+6}")
                g(f"v_cvt_pk_bf16_f32 v{r}, v{r}, v{r+1}\nv_cvt_pk_bf16_f32 v{r+1}, v{r+2}, v{r+3}")
                g(f"ds_write_b64 v{EA+i}, v[{r}:{r+1}] offset:{jj*2048}")
        g("s_waitcnt lgkmcnt(0)")
        for n in range(8):
            g(f"ds_read_b128 v[{B+4*n}:{B+4*n+3}], v{EA+4} offset:{n*1024}")
        for n in range(8):
            g(f"s_add_u32 s51, s50, {(h*128 + n*8) * PQ_PITCH}\ns_waitcnt lgkmcnt({7-n})")
            g(f"buffer_store_dwordx4 v[{B+4*n}:{B+4*n+3}], v{EA+5}, s[8:11], s51 offen sc1")
    g(f"v_fmac_f32 v{f2.accx}, v{T+16}, v{EA+6}\ns_cmp_eq_u32 s54, 0\ns_cselect_b32 s46, -1, 0")
    g(f"v_cvt_pk_bf16_f32 v16, v{f2.accx}, v{f2.accx}\nv_and_b32 v16, s46, v16")
    g(f"s_lshr_b32 s46, s62, 2\ns_lshl_b32 s46, s46, 7\ns_and_b32 s47, s62, 3\ns_lshl_b32 s47, s47, 4\ns_add_u32 s46, s46, s47")
    g(f"s_mul_i32 s46, s46, {PQ_PITCH}\ns_add_u32 s46, s46, s52")
    g("v_and_b32 v16, 0xffff, v16\nv_lshrrev_b32 v17, 3, v1\nv_lshlrev_b32 v17, 2, v17\nv_add_u32 v18, 32, v17\nv_and_b32 v19, 7, v1\nv_cmp_eq_u32 vcc, 0, v19")
    g("ds_bpermute_b32 v4, v17, v16\nds_bpermute_b32 v8, v18, v16")
    g("v_mov_b32 v5, 0\nv_mov_b32 v6, 0\nv_mov_b32 v7, 0\nv_mov_b32 v9, 0\nv_mov_b32 v10, 0\nv_mov_b32 v11, 0\ns_waitcnt lgkmcnt(0)")
    g(f"v_cndmask_b32 v4, 0, v4, vcc\nv_cndmask_b32 v8, 0, v8, vcc\ns_add_u32 s47, s46, {8 * PQ_PITCH}")
    g(f"buffer_store_dwordx4 v[4:7], v{EA+5}, s[8:11], s46 offen offset:1024 sc1\nbuffer_store_dwordx4 v[8:11], v{EA+5}, s[8:11], s47 offen offset:1024 sc1")
    g("s_cmp_lg_u32 s42, 0\ns_cbranch_scc1 L_f2_done\ns_cmp_ge_u32 s3, 2\ns_cbranch_scc1 L_f2_corner")
    for k in range(8):
        g(f"v_add_f32 v{RV+8}, v{RV+8}, v{RV+k}")
    g(f"v_cvt_pk_bf16_f32 v12, v{RV+8}, v{RV+8}\nv_lshrrev_b32 v2, 1, v{EA+9}\ns_mov_b32 s51, {1024 * PQ_PITCH}")
    g("buffer_store_short v12, v2, s[8:11], s51 offen sc1\ns_branch L_f2_done")
    g.label("L_f2_corner")
    g("s_cmp_lg_u32 s3, 2\ns_cbranch_scc1 L_f2_done\ns_cmp_lg_u32 s55, 0\ns_cbranch_scc1 L_f2_done")
    for k in range(2, 16, 2):
        g(f"v_pk_add_f32 v[{AV}:{AV+1}], v[{AV}:{AV+1}], v[{AV+k}:{AV+k+1}]")
    g(f"v_sub_f32 v4, v{AV}, v{AV+1}")
    wave_sum(g, [4])
    g(f"v_readlane_b32 s50, v4, 63\ns_mov_b32 s51, {1024 * PQ_PITCH + 1024}\ns_nop 0\nv_add_f32 v4, s50, v{T+16}\nv_cvt_pk_bf16_f32 v12, v4, v4\nv_lshlrev_b32 v2, 2, v1")
    g("s_mov_b64 exec, 0xffffffff\nbuffer_store_dword v12, v2, s[8:11], s51 offen sc1\ns_mov_b64 exec, -1")
    g.label("L_f2_done")
    stamp(g, o, 16)
    k2_setup(g, o, c2)
    c2.flat(k2_tail_setup(g, o))
    for (kind, r) in c2.acc.values():
        for x in range(4):
            g(f"v_mov_b32 v{r+x}, 0")
    publish(g, 3)
    stamp(g, o, 9)
    tile_pick(g, 4)
    g("s_barrier")
    tile_get(g)
    stamp(g, o, 10)
    stamp(g, o, 17)
    c2.flat(c2.restart())
    stamp(g, o, 18)
    g("s_mov_b32 s46, 6")

    g.label("L_k2")
    g("v_mov_b32 v30, 0")
    tile_pick(g)
    g(f"s_waitcnt vmcnt({3 * c2.pW + 2 * c2.pA})\ns_barrier\nds_read_b32 v17, v16")
    c2.flat(c2.reads(0, 0))

    def pick_next():
        lab = g.newlabel("pn")
        g(f"s_cmp_eq_u32 s97, 0\ns_cbranch_scc1 {lab}")
        tile_pick(g)
        g.label(lab)

    def head0():
        lab = g.newlabel("h0")
        g(f"v_readfirstlane_b32 s99, v17\ns_cmp_lg_u32 s{c2.sCnt}, 1\ns_cbranch_scc1 {lab}\nbuffer_load_dword v28, v22, s[28:31], 0 offen sc1")
        g.label(lab)
    c2.loop("s46", "L_k2_loop", chk={0: head0, 3: pick_next})
    stamp(g, o, 13)
    blocks = []
    for i in (1, 2, 3, 0):
        for k in range(4):
            work = []
            if i:
                d = 192 + 4 * (len(blocks) & 3)
                for jj in range(2):
                    r = c2.acc[2 * k + jj, i][1]
                    work += [f"v_cvt_pk_bf16_f32 v{d+2*jj}, v{r}, v{r+1}", f"v_cvt_pk_bf16_f32 v{d+2*jj+1}, v{r+2}, v{r+3}"]
                work.append(f"buffer_store_dwordx4 v[{d}:{d+3}], v29, s[24:27], s{49+i} offen offset:{k*1024} sc1")
            blocks.append(([(2 * k, i), (2 * k + 1, i)], work))
    rec = Rec(g)
    tile_dma(rec, 12, PS, 4096, " sc1")
    tile_dma(rec, 16, PS, 8192, " sc1")
    pq = [[x] for grp in rec.items for x in grp if x != "s_nop 0"]
    c2.last([pq[:5], pq[5:], [], []], pres=[lambda: spin(g, 22, 3, True, vf=28), None, None, None], final=(blocks, 3, 1) if o.get('two2', 1) else (blocks, 4))
    stamp(g, o, 11)
    g("s_waitcnt vmcnt(12)")
    sent = 0
    Y, XF, PT, RD = 64, 96, 208, 128
    for j in range(8):
        g(f"ds_read_b64 v[{RD+4*j}:{RD+4*j+1}], v{AP+j} offset:4096\nds_read_b64 v[{RD+4*j+2}:{RD+4*j+3}], v{AP+j} offset:8192")
    g.srd(20, POUT, S * D * 2)
    g("s_mov_b32 s44, 0xbfb8aa3b\ns_mov_b32 s45, 0xbfb8aa3b\ns_mov_b32 s54, 0xffff0000\ns_mov_b32 s46, 1.0\ns_mov_b32 s47, 1.0")
    g("s_mov_b32 s48, 0x3f80\ns_mov_b32 s49, 0x3f800000\ns_add_u32 s4, s100, 7\nv_mov_b32 v28, s4")
    g("s_cmp_ge_u32 s57, 4\ns_cbranch_scc1 L_k2_rev")
    for rev in (0, 1):
        if rev:
            g("s_branch L_k2_y")
            g.label("L_k2_rev")
        for j in range(8):
            g(f"s_waitcnt lgkmcnt({14 - 2*j})")
            for src, dst in ((RD + 4 * j, Y + 4 * j), (RD + 4 * j + 2, 4)):
                for x in range(4):
                    d = dst + (3 - x if rev else x)
                    w = src + (x >> 1)
                    g(f"v_and_b32 v{d}, s54, v{w}" if x & 1 else f"v_lshlrev_b32 v{d}, 16, v{w}")
            y = Y + 4 * j
            g(f"v_pk_fma_f32 v[{y}:{y+1}], v[4:5], s[62:63], v[{y}:{y+1}]\nv_pk_fma_f32 v[{y+2}:{y+3}], v[6:7], s[62:63], v[{y+2}:{y+3}]")
    g.label("L_k2_y")
    for j in range(8):
        g(f"ds_read_b64 v[{RD+2*j}:{RD+2*j+1}], v{AX+j}")
    g("s_waitcnt vmcnt(0)\ns_mov_b64 exec, 3\nbuffer_store_dword v28, v27, s[28:31], 0 offen sc1\ns_mov_b64 exec, -1")
    g("buffer_load_dword v30, v23, s[28:31], 0 offen sc1")
    stamp(g, o, 14)
    for j in range(8):
        g(f"s_waitcnt lgkmcnt({7 - j})")
        g(f"v_lshlrev_b32 v{XF+4*j}, 16, v{RD+2*j}\nv_and_b32 v{XF+4*j+1}, s54, v{RD+2*j}\nv_lshlrev_b32 v{XF+4*j+2}, 16, v{RD+2*j+1}\nv_and_b32 v{XF+4*j+3}, s54, v{RD+2*j+1}")
    g("s_waitcnt vmcnt(0)")
    spin(g, 23, 7, True)
    stamp(g, o, 15)
    for k in range(4):
        for i in range(3):
            g(f"s_add_u32 s4, s53, {i*16384}\nbuffer_load_dwordx4 v[{PT+16*i+4*k}:{PT+16*i+4*k+3}], v29, s[24:27], s4 offen offset:{k*1024} sc1")
    for j in range(8):
        r = c2.acc[j, 0][1]
        if j % 2 == 0 and not sent:
            g(f"s_waitcnt vmcnt({9 - 3 * (j >> 1)})")
        for i in range(3):
            w = PT + 16 * i + 2 * j
            for x in range(4):
                g(f"v_dot2c_f32_bf16 v{r+x}, s{48 + (x & 1)}, v{w + (x >> 1)}")
        g(f"s_nop 1\nv_pk_mul_f32 v[4:5], v[{r}:{r+1}], s[44:45]\nv_pk_mul_f32 v[6:7], v[{r+2}:{r+3}], s[44:45]")
        for x in range(4):
            g(f"v_exp_f32 v{4+x}, v{4+x}")
        g("s_nop 0\nv_pk_add_f32 v[4:5], v[4:5], s[46:47]\nv_pk_add_f32 v[6:7], v[6:7], s[46:47]")
        for x in range(4):
            g(f"v_rcp_f32 v{4+x}, v{4+x}")
        y, xf = Y + 4 * j, XF + 4 * j
        g(f"v_pk_mul_f32 v[{y}:{y+1}], v[{y}:{y+1}], v[{r}:{r+1}]\nv_pk_mul_f32 v[{y+2}:{y+3}], v[{y+2}:{y+3}], v[{r+2}:{r+3}]")
        g(f"v_pk_fma_f32 v[{xf}:{xf+1}], v[4:5], v[{y}:{y+1}], v[{xf}:{xf+1}]\nv_pk_fma_f32 v[{xf+2}:{xf+3}], v[6:7], v[{y+2}:{y+3}], v[{xf+2}:{xf+3}]")
        g(f"v_cvt_pk_bf16_f32 v{xf}, v{xf}, v{xf+1}\nv_cvt_pk_bf16_f32 v{xf+1}, v{xf+2}, v{xf+3}")
        g(f"ds_write_b64 v{AX+j}, v[{xf}:{xf+1}]")
    for n in range(4):
        g(f"ds_read_b128 v[{RD+4*n}:{RD+4*n+3}], v{RB+n}")
    for n in range(4):
        g(f"s_waitcnt lgkmcnt({3-n})\nbuffer_store_dwordx4 v[{RD+4*n}:{RD+4*n+3}], v{GO+n}, s[20:23], s61 offen{o.get('opol', '')}")
    stamp_flush(g, o, 12)
    g.label("L_done")
    g("s_endpgm")
    g.label("L_end")
    g("s_endpgm")
    g.kd(NAME, 256 + 224, 102, 256)


HEADER = open("recurrent_scan__spectral_fnet__glu_gated_bilinear__prompt.s.ref").read().split("\n")


def build(o=None):
    o = dict(o or {})
    global ASC
    ASC = ' sc1' if o.get('asc1', 0) else ''
    g = G()
    main_kernel(g, o)
    if o.get("aslist"):
        launch = f"; @launch kernel={NAME} grid=(256,1,1) block=(256,1,1) lds={LDS_TOTAL}"
    else:
        launch = f"; @launch grid=(256,1,1) block=(256,1,1) lds={LDS_TOTAL}"
    txt = "\n".join(HEADER[:13] + [launch]) + '\n.amdgcn_target "amdgcn-amd-amdhsa--gfx950"\n.text\n'
    txt += "\n".join(g.L) + '\n.section .rodata,"a"\n' + "\n".join(g.kds) + "\n"
    return txt


if __name__ == "__main__":
    out = sys.argv[1] if len(sys.argv) > 1 else "recurrent_scan__spectral_fnet__glu_gated_bilinear__prompt.s"
    o = eval(sys.argv[2]) if len(sys.argv) > 2 else {}
    open(out, "w").write(build(o))
```
